```python
import torch

def _softmax(x, axis=-1):
    return torch.softmax(x, dim=axis)
def _gelu(x):
    return torch.nn.functional.gelu(x, approximate="tanh")
def _silu(x):
    return torch.nn.functional.silu(x)
def _sigmoid(x):
    return torch.sigmoid(x)
def _layernorm(x, axis=-1, eps=1e-5):
    m = x.mean(dim=axis, keepdim=True)
    v = x.var(dim=axis, keepdim=True, unbiased=False)
    return (x - m) / torch.sqrt(v + eps)
def _scatter_add(tgt, idx, src, axis=0):
    return tgt.clone().index_add_(axis, idx, src)
def _segment_sum(src, seg, n):
    out = torch.zeros((n,) + src.shape[1:], dtype=src.dtype)
    return out.index_add_(0, seg, src)
def _pad(x, pw):
    flat = tuple(v for pair in reversed(pw) for v in pair)
    return torch.nn.functional.pad(x, flat)

kernel_name = 'parallel_sum__sliding_block_cached__mixer_channel_mlp__decode'

def setup_inputs():

    _w = (lambda a: (lambda t: t.to(torch.bfloat16) if t.is_floating_point() else t)(torch.as_tensor(a)))
    def _A_setup():
        B, Sq, D = 2, 1, 1024
        Hq, Hkv, Sk, Dh = 32, 4, 16384, 128
        assert Hq % Hkv == 0, (Hq, Hkv)
        return {
            "x": _w((lambda *s: torch.randn(*s, dtype=torch.bfloat16) * 0.05)(B, Sq, D)),
            "k_cache": _w((lambda *s: torch.randn(*s, dtype=torch.bfloat16) * 3.2)(B, Hkv, Sk, Dh)),
            "v_cache": _w((lambda *s: torch.randn(*s, dtype=torch.bfloat16) * 0.4)(B, Hkv, Sk, Dh)),
            "wq": _w((lambda *s: torch.randn(*s, dtype=torch.bfloat16) * 3.2)(D, Hq * Dh) * (D ** -0.5)),
            "wo": _w((lambda *s: torch.randn(*s, dtype=torch.bfloat16) * 0.4)(Hq * Dh, D) * ((Hq * Dh) ** -0.5)),
        }
    _A_in = _A_setup()

    def _B_setup():
        B, S, D, F = 2, 1, 1024, 3584
        return {
            "x": _w((lambda *s: torch.randn(*s, dtype=torch.bfloat16) * 0.05)(B, S, D)),
            "w1": _w((lambda *s: torch.randn(*s, dtype=torch.bfloat16) * 1.6)(D, F) * (D ** -0.5)),
            "b1": _w((lambda *s: torch.randn(*s, dtype=torch.bfloat16) * 0.8)(F)),
            "w2": _w((lambda *s: torch.randn(*s, dtype=torch.bfloat16) * 0.1)(F, D) * (F ** -0.5)),
            "b2": _w((lambda *s: torch.randn(*s, dtype=torch.bfloat16) * 0.1)(D)),
        }
    _B_in = _B_setup()

    return {
        "A_x": _A_in["x"],
        "A_k_cache": _A_in["k_cache"],
        "A_v_cache": _A_in["v_cache"],
        "A_wq": _A_in["wq"],
        "A_wo": _A_in["wo"],
        "B_x": _B_in["x"],
        "B_w1": _B_in["w1"],
        "B_b1": _B_in["b1"],
        "B_w2": _B_in["w2"],
        "B_b2": _B_in["b2"],
    }

def reference(A_x, A_k_cache, A_v_cache, A_wq, A_wo, B_x, B_w1, B_b1, B_w2, B_b2):
    def _A_ref(x, k_cache, v_cache, wq, wo):
        B, Sq, D = x.shape
        Hq, Dh = 32, 128
        Hkv, Sk = k_cache.shape[1], k_cache.shape[2]
        W = min(4096, max(256, Sk // 4))
        rep = Hq // Hkv
        q = (lambda x, *d: x.permute(*d))((x @ wq).reshape(B, Sq, Hq, Dh), 0, 2, 1, 3)
        k = (lambda x, n, axis: torch.repeat_interleave(x, n, dim=axis))(k_cache[:, :, Sk - W:, :], rep, axis=1)
        v = (lambda x, n, axis: torch.repeat_interleave(x, n, dim=axis))(v_cache[:, :, Sk - W:, :], rep, axis=1)
        scores = torch.einsum("bhqd,bhkd->bhqk", q, k) * (Dh ** -0.5)
        p = _softmax(scores, axis=-1)
        o = torch.einsum("bhqk,bhkd->bhqd", p, v)
        return (lambda x, *d: x.permute(*d))(o, 0, 2, 1, 3).reshape(B, Sq, Hq * Dh) @ wo

    def _B_ref(x, w1, b1, w2, b2):
        y = _layernorm(x, axis=-1)
        h = _gelu(torch.einsum("bsd,df->bsf", y, w1) + b1)
        return torch.einsum("bsf,fd->bsd", h, w2) + b2

    x = A_x
    xn = _layernorm(x, axis=-1)
    return x + _A_ref(xn, A_k_cache, A_v_cache, A_wq, A_wo) + _B_ref(xn, B_w1, B_b1, B_w2, B_b2)
```

```python
import re
TRANS = ("v_exp_f32","v_log_f32","v_rcp_f32","v_rsq_f32","v_sqrt_f32","v_sin_f32","v_cos_f32")
def regs(tok):
    tok = tok.strip()
    tok = re.sub(r"^(-|abs\(|\|)+", "", tok).rstrip(")|")
    m = re.fullmatch(r"([vsa])(\d+)", tok)
    if m: return {(m.group(1), int(m.group(2)))}
    m = re.fullmatch(r"([vsa])\[(\d+):(\d+)\]", tok)
    if m: return {(m.group(1), i) for i in range(int(m.group(2)), int(m.group(3))+1)}
    if tok == "vcc": return {("s", 106), ("s", 107)}
    if tok == "exec": return {("s", 126), ("s", 127)}
    if tok == "m0": return {("s", 124)}
    return set()
def parse(line):
    s = line.split(";")[0].strip()
    if not s or s.endswith(":") or s.startswith("."): return None
    p = s.split(None, 1)
    op = p[0]
    rest = p[1] if len(p) > 1 else ""
    ops = []; cur = ""; d = 0
    for ch in rest:
        if ch == "[": d += 1
        if ch == "]": d -= 1
        if ch == "," and d == 0: ops.append(cur); cur = ""
        else: cur += ch
    if cur: ops.append(cur)
    mods = ""
    if ops:
        last = ops[-1].strip().split(None, 1)
        ops[-1] = last[0]
        mods = last[1] if len(last) > 1 else ""
    ops = [o.strip() for o in ops]
    I = dict(op=op, ops=ops, mods=mods, rd=set(), wr=set(), cls="other")
    base = re.sub(r"_(e32|e64|dpp|sdwa)$", "", op)
    I["base"] = base
    R = lambda idxs: set().union(*[regs(ops[i]) for i in idxs if i < len(ops)]) if idxs else set()
    n = len(ops)
    if op.startswith("v_mfma"):
        I["cls"] = "mfma"; I["wr"] = R([0]); I["rdAB"] = R([1,2]); I["rdC"] = R([3]); I["rd"] = I["rdAB"] | I["rdC"]
        I["passes"] = 8 if "32x32" in op else 4
    elif op.startswith("v_"):
        I["cls"] = "valu"
        if base.startswith("v_cmp"):
            I["wr"] = R([0]); I["rd"] = R(range(1, n))
            if base.startswith("v_cmpx"): I["wr"] |= regs("exec")
        elif base in ("v_readfirstlane_b32", "v_readlane_b32"):
            I["wr"] = R([0]); I["rd"] = R(range(1, n)); I["lane"] = True
        elif base.startswith("v_permlane"):
            I["wr"] = R([0,1]); I["rd"] = R([0,1]); I["perm"] = True
        elif base in ("v_add_co_u32","v_sub_co_u32","v_addc_co_u32"):
            I["wr"] = R([0,1]); I["rd"] = R(range(2, n))
        else:
            I["wr"] = R([0]); I["rd"] = R(range(1, n))
            if base in ("v_fmac_f32","v_pk_fmac_f32","v_dot2c_f32_bf16","v_writelane_b32"): I["rd"] |= R([0])
            if base == "v_cndmask_b32" and n == 3: I["rd"] |= regs("vcc")
        if re.search(r"(quad_perm|row_|wave_|bcast)", mods) or op.endswith("_dpp"):
            I["dpp"] = True; I["rd"] |= R([0])
        if base in TRANS: I["trans"] = True
    elif op.startswith("buffer_") or op.startswith("global_"):
        I["cls"] = "vmem"
        lds = " lds" in (" " + mods) or "_lds_" in op
        if op.startswith("buffer_load"):
            if lds: I["rd"] = R(range(0, n)) | regs("m0"); I["ldsdma"] = True
            else: I["wr"] = R([0]); I["rd"] = R(range(1, n))
        elif op.startswith("global_load"):
            if lds: I["rd"] = R(range(0, n)) | regs("m0"); I["ldsdma"] = True
            else: I["wr"] = R([0]); I["rd"] = R(range(1, n))
        elif op.startswith("buffer_store"):
            I["rd"] = R(range(0, n)); I["sdata"] = R([0]) if re.search("x[34]", op) else set()
        elif op.startswith("global_store"):
            I["rd"] = R(range(0, n)); I["sdata"] = R([1]) if re.search("x[34]", op) else set()
        else:
            I["rd"] = R(range(0, n))
    elif op.startswith("ds_"):
        I["cls"] = "ds"
        if op.startswith("ds_read") or "permute" in op or "swizzle" in op:
            I["wr"] = R([0]); I["rd"] = R(range(1, n))
        else:
            I["rd"] = R(range(0, n))
    elif op.startswith("s_"):
        I["cls"] = "salu"
        if op == "s_nop": I["nop"] = int(ops[0], 0) + 1
        elif op.startswith(("s_cmp", "s_cbranch", "s_branch", "s_waitcnt", "s_barrier", "s_endpgm", "s_setprio", "s_sleep", "s_bitcmp", "s_setpc", "s_cmpk")):
            I["rd"] = R(range(0, n))
        else:
            I["wr"] = R([0]); I["rd"] = R(range(1, n))
            if "saveexec" in op: I["wr"] |= regs("exec")
    return I
def need(prod, cons):
    w = 0
    pv = {r for r in prod["wr"] if r[0] in "va"}; ps = {r for r in prod["wr"] if r[0] == "s"}
    if prod["cls"] == "valu":
        if cons["cls"] == "valu":
            if cons.get("dpp") and pv & cons["rd"]: w = max(w, 2)
            if cons.get("perm") and pv & cons["rd"]: w = max(w, 2)
            if cons.get("lane") and pv & cons["rd"]: w = max(w, 1)
            if prod.get("trans") and not cons.get("trans") and pv & cons["rd"]: w = max(w, 1)
            if prod.get("trans") and pv & cons["rd"]: w = max(w, 1)
            if ps & cons["rd"]: w = max(w, 4 if cons.get("lane") else 2)
            if regs("exec") & ps and (cons.get("dpp")): w = max(w, 5)
            if regs("exec") & ps and (cons.get("perm") or cons.get("lane")): w = max(w, 4)
            if "op_sel" in prod["mods"] and not prod["base"].startswith("v_pk_") and pv & (cons["rd"] | cons["wr"]): w = max(w, 1)
        if cons["cls"] == "mfma":
            if pv & cons["rd"]: w = max(w, 2)
            if regs("exec") & ps: w = max(w, 4)
        if cons["cls"] == "vmem" and ps & cons["rd"]: w = max(w, 5)
        if prod.get("trans") and cons["cls"] in ("vmem", "ds") and pv & cons["rd"]: w = max(w, 1)
        if cons["cls"] == "salu" and ps & cons["rd"]: w = max(w, 1)
    if prod["cls"] == "mfma":
        p = prod["passes"]
        if cons["cls"] == "mfma":
            if prod["wr"] & cons["rdAB"]: w = max(w, {4: 8, 8: 12}[p])
            if prod["wr"] & cons["rdC"]:
                if not (prod["wr"] == cons["rdC"] and cons["passes"] == p): w = max(w, {4: 6, 8: 10}[p])
        elif cons["cls"] in ("valu", "vmem", "ds"):
            if prod["wr"] & (cons["rd"] | cons["wr"]): w = max(w, {4: 8, 8: 12}[p])
            if cons["cls"] == "valu" and prod["rdC"] & cons["wr"]: w = max(w, {4: 3, 8: 7}[p])
    if prod["cls"] == "vmem" and prod.get("sdata"):
        if prod["sdata"] & cons["wr"]: w = max(w, 2)
    if prod["cls"] == "salu" and ("s", 124) in prod["wr"] and cons.get("ldsdma"): w = max(w, 1)
    if prod["cls"] == "salu" and regs("exec") & prod["wr"] and cons["cls"] == "valu" and cons.get("dpp"): w = max(w, 1)
    return w
def pad(text, verbose=False):
    out = []; hist = []
    nadd = 0
    for line in text.split("\n"):
        I = parse(line)
        if I is None:
            out.append(line); continue
        req = 0
        dist = 0
        for P in reversed(hist):
            r = need(P, I) - dist
            if r > req: req = r
            dist += P.get("nop", 1)
            if dist > 20: break
        if req > 0:
            out.append(f"    s_nop {req-1}    ; hz")
            hist.append(dict(op="s_nop", cls="salu", rd=set(), wr=set(), nop=req, mods="", base="s_nop"))
            nadd += 1
        out.append(line)
        hist.append(I)
        hist = hist[-24:]
    return "\n".join(out), nadd
```

```python
import sys, os
sys.path.insert(0, os.path.dirname(__file__))
import hz
NAME = "parallel_sum__sliding_block_cached__mixer_channel_mlp__decode"
OPT = dict(stamps=0, nt=1, kfirst=4, g1pos=2, spin=1 << 16)
for a in sys.argv[2:]:
    k, v = a.split("="); OPT[k] = int(v)
NT = " nt" if OPT["nt"] else ""
L = []
def A(s):
    for x in s.split("\n"): L.append("    " + x.strip() if not x.strip().endswith(":") else x.strip())
class Alloc:
    def __init__(s, start): s.n = start
    def __call__(s, cnt=1, al=1):
        s.n = (s.n + al - 1) // al * al
        r = s.n; s.n += cnt; return r
VA = Alloc(1)
def vr(r, n): return f"v[{r}:{r+n-1}]"
sX, sK, sV, sWQ, sWO, sW1, sW2, sB1, sB2, sOUT, sWS = range(8, 52, 4)
def srd(r): return f"s[{r}:{r+3}]"
sx8, si32, sS, sS1, sWave, sKV, sLW, sT, sT32, sT6, sHI, sT2, sSpin, sT3, sT4, sT5 = range(52, 68)
sRA = 68
sC63 = 70; sRetry = 71
STB = 72
nst = [0]
def stamp():
    if OPT["stamps"]:
        i = nst[0]; nst[0] += 1
        A(f"s_memrealtime s[{STB+2*i}:{STB+2*i+1}]")
P1, P4, P2, P3, WSSZ = 0x10000, 0x40000, 0x100000, 0x200000, 0x400000
LWQ, LW1, LK, LV, M = 0, 32768, 65536, 98304, 131072
XN, YN, QL = M, M + 4096, M + 8192
RED1 = M + 10496; RED2 = RED1 + 2048; ML = RED2 + 2048; FIN = ML + 256; LDS_END = FIN + 128
OX = 0; OXH = 528; OXW = 8 * OXH
vm = []
def issue(tag, s): A(s); vm.append(tag)
def waitvm(tag, extra=""):
    idx = max(i for i, t in enumerate(vm) if t == tag)
    n = len(vm) - 1 - idx
    assert n <= 63
    A(f"s_waitcnt vmcnt({n}){extra}")
def waitvm_n(tag, k):
    idxs = [i for i, t in enumerate(vm) if t == tag]
    n = len(vm) - 1 - idxs[k-1]
    A(f"s_waitcnt vmcnt({n})")

vLane, vG4, vN16, vTmp, vTmp2, vTmp3 = [VA() for _ in range(6)]
vXoff, vWQoff, vW1off, vRow = [VA() for _ in range(4)]
vKoff = VA(4); vVoff = VA(2)
aW = VA(4); aK = VA(4); aV = VA(8); aQ = VA(); aXN = VA(); aYN = VA(); aXW = VA()
aRedW = VA(); aRedR = VA(); vPub = VA(); vG1 = VA(); aQW = VA(); aOXW = VA(); aMLW = VA(); aOXR = VA(); aMLR = VA()
vG2 = VA(); vG4o = VA(); vB1o = VA(); vP3 = VA(); vG3 = VA(); vOo = VA(); aFin = VA()
vMask = VA(4)
vP = VA(16, 4)
vU = VA(32, 4)
vS = VA(8, 4)
vXB = VA(8, 4)
vF = VA(32, 4)
vAcc = VA(32, 4)
vQ = VA(16, 4)
vG = VA(16, 4)
vH = vQ
aWO = 0; aW2 = 32
vAo = vF; vAh = vF + 16
vSm = VA(8, 4)
vOut = vAcc
NARCH = (VA.n + 3) // 4 * 4
NV = NARCH + 64
def ar(r, n): return f"a[{r}:{r+n-1}]"

def allred(reg, op, steps, tmp):
    regs_ = reg if isinstance(reg, list) else [reg]
    tmps = tmp if isinstance(tmp, list) else [tmp]
    dpp = dict(q1="quad_perm:[1,0,3,2]", q2="quad_perm:[2,3,0,1]", hm="row_half_mirror", m="row_mirror",
               r2="row_ror:2", r4="row_ror:4", r8="row_ror:8")
    for st in steps:
        if st in dpp:
            for r in regs_: A(f"{op}_dpp v{r}, v{r}, v{r} {dpp[st]} row_mask:0xf bank_mask:0xf")
        else:
            ins = "v_permlane16_swap_b32" if st == "p16" else "v_permlane32_swap_b32"
            for r, t in zip(regs_, tmps): A(f"v_mov_b32 v{t}, v{r}")
            for r, t in zip(regs_, tmps): A(f"{ins} v{r}, v{t}")
            for r, t in zip(regs_, tmps): A(f"{op} v{r}, v{r}, v{t}")
def unpack(dlo, dhi, src):
    A(f"v_lshlrev_b32 v{dlo}, 16, v{src}\nv_and_b32 v{dhi}, s{sHI}, v{src}")
def setexec(m):
    A(f"s_mov_b32 exec_lo, {m & 0xffffffff:#x}\ns_mov_b32 exec_hi, {(m >> 32) & 0xffffffff:#x}")
def fullexec(): A("s_mov_b64 exec, -1")

if OPT.get("padto"): A("s_memrealtime s[100:101]")
stamp()
A("s_cmp_ge_u32 s2, 256\ns_cbranch_scc1 L_end")
for r, off in ((sX, 0), (sWQ, 24), (sK, 8), (sWS, 96), (sV, 16), (sWO, 32), (sW1, 48), (sB1, 56), (sW2, 64), (sB2, 72), (sOUT, 80)):
    A(f"s_load_dwordx2 s[{r}:{r+1}], s[0:1], {off}")
A(f"s_and_b32 s{sx8}, s2, 7\ns_lshr_b32 s{si32}, s2, 3")
A(f"s_lshl_b32 s{sS}, s{sx8}, 5\ns_add_u32 s{sS}, s{sS}, s{si32}")
A(f"v_lshrrev_b32 v{vTmp}, 6, v0\nv_and_b32 v{vLane}, 63, v0")
A(f"v_readfirstlane_b32 s{sWave}, v{vTmp}")
A(f"v_lshrrev_b32 v{vG4}, 4, v{vLane}\nv_and_b32 v{vN16}, 15, v{vLane}")
A(f"v_lshlrev_b32 v{vXoff}, 6, v{vLane}")
A(f"s_mul_i32 s{sS1}, s{sx8}, 28\ns_add_u32 s{sS1}, s{sS1}, s{si32}")
A(f"s_lshl_b32 s{sT}, s{sx8}, 2\ns_add_u32 s{sT}, s{sT}, s{si32}\ns_add_u32 s{sT}, s{sT}, {224-28}")
A(f"s_cmp_lt_u32 s{si32}, 28\ns_cselect_b32 s{sS1}, s{sS1}, s{sT}")
A(f"s_cselect_b32 s{sW1+2}, {1024*7168}, 0\ns_cselect_b32 s{sW2+2}, {3584*2048}, 0\ns_cselect_b32 s{sB1+2}, 7168, 0")
for r, sz in ((sX, 4096), (sWQ, 1 << 23), (sK, 1 << 25), (sV, 1 << 25), (sWO, 1 << 23), (sB2, 2048), (sOUT, 4096), (sWS, WSSZ)):
    A(f"s_mov_b32 s{r+2}, {sz:#x}")
for r in (sX, sWQ, sK, sV, sWO, sW1, sW2, sB1, sB2, sOUT, sWS):
    A(f"s_mov_b32 s{r+3}, 0x20000")
A(f"s_mov_b32 s{sHI}, 0xffff0000\ns_mov_b32 s{sC63}, 63\ns_mov_b32 s{sRetry}, 0")
A(f"v_lshrrev_b32 v{vTmp2}, 3, v{vLane}\nv_lshl_add_u32 v{vTmp2}, v{vTmp}, 6, v{vTmp2}")
A(f"v_and_b32 v{vTmp3}, 7, v{vLane}\nv_lshlrev_b32 v{vS}, 1, v{vG4}\nv_xor_b32 v{vTmp3}, v{vTmp3}, v{vS}\nv_lshlrev_b32 v{vTmp3}, 4, v{vTmp3}")
A(f"v_lshl_add_u32 v{vWQoff}, v{vTmp2}, 13, v{vTmp3}")
A(f"v_mul_u32_u24 v{vW1off}, 7168, v{vTmp2}\nv_add_u32 v{vW1off}, v{vW1off}, v{vTmp3}")
A(f"v_lshlrev_b32 v{vTmp2}, 13, v{vTmp}\nv_lshl_add_u32 v{vTmp2}, v{vG4}, 8, v{vTmp2}")
A(f"v_xor_b32 v{vTmp3}, v{vN16}, v{vG4}\nv_lshl_add_u32 v{vKoff}, v{vTmp3}, 4, v{vTmp2}")
for q in (1, 2, 3): A(f"v_xor_b32 v{vKoff+q}, {64*q}, v{vKoff}")
A(f"v_xor_b32 v{vTmp3}, v{vN16}, v{vS}\nv_lshl_add_u32 v{vVoff}, v{vTmp3}, 4, v{vTmp2}\nv_xor_b32 v{vVoff+1}, 128, v{vVoff}")
A(f"s_and_b32 s{sKV}, s{sx8}, 1\ns_lshl_b32 s{sKV}, s{sKV}, 2\ns_lshr_b32 s{sT}, s{sx8}, 1\ns_add_u32 s{sKV}, s{sKV}, s{sT}\ns_lshl_b32 s{sKV}, s{sKV}, 22")
A(f"s_lshl_b32 s{sT}, s{si32}, 15\ns_add_u32 s{sKV}, s{sKV}, s{sT}\ns_add_u32 s{sKV}, s{sKV}, 0x300000")
A(f"s_lshl_b32 s{sLW}, s{sWave}, 13")
A(f"s_lshr_b32 s{sT}, s{sS}, 2\ns_lshl_b32 s{sT}, s{sT}, 7\ns_and_b32 s{sT2}, s{sS}, 3\ns_lshl_b32 s{sT2}, s{sT2}, 21\ns_add_u32 s{sT}, s{sT}, s{sT2}")
A(f"s_mov_b32 m0, s{sLW}")
A("s_waitcnt lgkmcnt(0)")
stamp()
A(f"s_load_dword s{sT32}, s[{sWS}:{sWS+1}], 0")
for t in range(4): issue("X", f"buffer_load_dwordx4 {vr(vP+4*t,4)}, v{vXoff}, {srd(sX)}, 0 offen offset:{16*t}")
def ld_tile(tag, s_, voff, rowb):
    for t in range(8):
        if t: A(f"s_add_u32 m0, m0, 1024\ns_add_u32 s{sT}, s{sT}, {8*rowb}")
        issue(tag, f"buffer_load_dwordx4 v{voff}, {srd(s_)}, s{sT} offen{NT} lds")
def ld_kv(tag, s_, voff, nreg, base, ts):
    for t in ts:
        if t % 4 == 0 or t == ts[0]:
            A(f"s_add_u32 m0, s{sLW}, {base + 4096*(t//4)}\ns_add_u32 s{sT2}, s{sKV}, {4096*(t//4)}")
        issue(tag, f"buffer_load_dwordx4 v{voff + t % nreg}, {srd(s_)}, s{sT2} offen offset:{1024*(t%4)}{NT} lds")
def ld_rows(tag, s_, sidx, vb, rhos):
    for rho in rhos:
        A(f"s_lshl_b32 s{sT}, s{sidx}, 15")
        if rho: A(f"s_add_u32 s{sT}, s{sT}, {2048*rho}")
        for u in range(2):
            issue(tag, f"buffer_load_dwordx4 {ar(vb+8*rho+4*u,4)}, v{vRow}, {srd(s_)}, s{sT} offen offset:{256*u}{NT}")
ld_tile("WQ", sWQ, vWQoff, 8192)
kf = OPT["kfirst"]
if kf: ld_kv("K", sK, vKoff, 4, LK, list(range(kf)))
j = vTmp
r_, c4 = vTmp2, vTmp3
A(f"v_lshrrev_b32 v{r_}, 2, v{vN16}\nv_and_b32 v{c4}, 3, v{vN16}")
t0, t1, t2 = vS, vS+1, vS+2
A(f"v_lshl_add_u32 v{t0}, v{vG4}, 2, v{r_}")
A(f"v_lshrrev_b32 v{t1}, 1, v{t0}\nv_and_b32 v{t1}, 3, v{t1}")
A(f"v_lshlrev_b32 v{t2}, 3, v{c4}\nv_lshl_add_u32 v{t2}, v{j}, 13, v{t2}")
A(f"v_lshl_add_u32 v{aW}, v{t0}, 7, v{t2}\nv_lshl_add_u32 v{aW}, v{t1}, 5, v{aW}")
for ct in (1, 2, 3): A(f"v_xor_b32 v{aW+ct}, {32*ct}, v{aW}")
A(f"v_and_b32 v{t1}, 7, v{t0}\nv_lshl_add_u32 v{aV}, v{t0}, 8, v{t2}\nv_lshl_add_u32 v{aV}, v{t1}, 5, v{aV}\nv_add_u32 v{aV}, {LV}, v{aV}")
for dt in range(1, 8): A(f"v_xor_b32 v{aV+dt}, {32*dt}, v{aV}")
A(f"v_xor_b32 v{t1}, v{vG4}, v{vN16}\nv_lshlrev_b32 v{t1}, 4, v{t1}\nv_lshl_add_u32 v{t1}, v{vN16}, 8, v{t1}\nv_lshl_add_u32 v{t1}, v{j}, 13, v{t1}\nv_add_u32 v{aK}, {LK}, v{t1}")
for s_ in (1, 2, 3): A(f"v_xor_b32 v{aK+s_}, {64*s_}, v{aK}")
A(f"v_and_b32 v{t1}, 7, v{vN16}\nv_mul_u32_u24 v{aQ}, 272, v{t1}\nv_lshl_add_u32 v{aQ}, v{vG4}, 4, v{aQ}\nv_add_u32 v{aQ}, {QL}, v{aQ}")
A(f"v_mul_u32_u24 v{aOXW}, {OXH}, v{t1}\nv_mul_u32_u24 v{t2}, {OXW}, v{j}\nv_add_u32 v{aOXW}, v{aOXW}, v{t2}\nv_lshl_add_u32 v{aOXW}, v{vG4}, 4, v{aOXW}")
A(f"v_lshlrev_b32 v{aMLW}, 3, v{t1}\nv_lshl_add_u32 v{aMLW}, v{j}, 6, v{aMLW}\nv_add_u32 v{aMLW}, {ML}, v{aMLW}")
A(f"v_and_b32 v{t1}, 1, v{vN16}\nv_lshlrev_b32 v{t1}, 11, v{t1}\nv_lshl_add_u32 v{t1}, v{j}, 7, v{t1}\nv_lshl_add_u32 v{t1}, v{vG4}, 3, v{t1}")
A(f"s_and_b32 s{sT}, s{sS}, 3\ns_lshl_b32 s{sT}, s{sT}, 9\ns_add_u32 s{sT}, s{sT}, {XN}\nv_add_u32 v{aXN}, s{sT}, v{t1}")
A(f"s_and_b32 s{sT}, s{sS1}, 3\ns_lshl_b32 s{sT}, s{sT}, 9\ns_add_u32 s{sT}, s{sT}, {YN}\nv_add_u32 v{aYN}, s{sT}, v{t1}")
A(f"v_add_u32 v{aXW}, {XN}, v{vXoff}")
A(f"v_lshlrev_b32 v{t1}, 8, v{vN16}\nv_lshl_add_u32 v{t1}, v{j}, 9, v{t1}\nv_lshl_add_u32 v{t1}, v{vG4}, 4, v{t1}\nv_add_u32 v{aRedW}, {RED1}, v{t1}")
A(f"v_and_b32 v{t0}, 7, v{vLane}\nv_lshlrev_b32 v{t1}, 4, v{t0}\nv_lshl_add_u32 v{t1}, v{j}, 7, v{t1}\nv_add_u32 v{aRedR}, {RED1}, v{t1}")
A(f"v_lshrrev_b32 v{t2}, 1, v{j}\nv_mul_u32_u24 v{t2}, {16384-256}, v{t2}\nv_add_u32 v{vPub}, v{t1}, v{t2}")
A(f"v_lshlrev_b32 v{vG1}, 4, v0")
A(f"v_lshrrev_b32 v{t1}, 5, v0\nv_and_b32 v{t2}, 31, v0")
A(f"v_mul_u32_u24 v{aQW}, 272, v{t1}\nv_lshl_add_u32 v{aQW}, v{t2}, 3, v{aQW}\nv_add_u32 v{aQW}, {QL}, v{aQW}")
A(f"v_mul_u32_u24 v{aOXR}, {OXH}, v{t1}\nv_lshl_add_u32 v{aOXR}, v{t2}, 4, v{aOXR}")
A(f"v_lshlrev_b32 v{aMLR}, 3, v{t1}\nv_add_u32 v{aMLR}, {ML}, v{aMLR}")
A(f"v_lshrrev_b32 v{t1}, 3, v{vN16}\nv_lshlrev_b32 v{t2}, 4, v{vG4}")
A(f"v_lshl_add_u32 v{vG2}, v{t1}, 17, v{t2}\nv_lshl_add_u32 v{vG2}, v{t0}, 14, v{vG2}")
A(f"v_lshl_add_u32 v{vG4o}, v{t1}, 8, v{t2}\nv_lshlrev_b32 v{vB1o}, 3, v{vG4}")
A(f"v_lshlrev_b32 v{vRow}, 13, v{vG4}\nv_lshl_add_u32 v{vRow}, v{j}, 9, v{vRow}\nv_lshl_add_u32 v{vRow}, v{vN16}, 4, v{vRow}")
A(f"v_lshrrev_b32 v{t1}, 1, v{vG4}\nv_lshlrev_b32 v{vP3}, 12, v{t1}\nv_lshl_add_u32 v{vP3}, v{j}, 10, v{vP3}\nv_lshl_add_u32 v{vP3}, v{vN16}, 5, v{vP3}\nv_and_b32 v{t1}, 1, v{vG4}\nv_lshl_add_u32 v{vP3}, v{t1}, 4, v{vP3}")
A(f"v_lshrrev_b32 v{t1}, 1, v{vLane}\nv_lshl_add_u32 v{t1}, v{j}, 6, v{t1}\nv_and_b32 v{t2}, 1, v{vLane}\nv_lshlrev_b32 v{vOo}, 3, v{t2}\nv_lshlrev_b32 v{t2}, 4, v{t2}\nv_lshl_add_u32 v{vG3}, v{t1}, 13, v{t2}")
A(f"v_lshl_add_u32 v{aFin}, v{j}, 5, v{t2}\nv_add_u32 v{aFin}, {FIN}, v{aFin}")
A(f"v_lshlrev_b32 v{t1}, 1, v{vOo}\nv_mov_b32 v{t2}, 0xffff\nv_lshlrev_b32 v{t1}, v{t1}, v{t2}\nv_lshrrev_b32 v{t0}, 1, v{t0}")
for r in range(4):
    A(f"v_cmp_eq_u32 vcc, {r}, v{t0}\nv_cndmask_b32 v{vMask+r}, 0, v{t1}, vcc")
waitvm("X")
stamp()
A(f"s_call_b64 s[{sRA}:{sRA+1}], L_ln")
for t in range(4): A(f"ds_write_b128 v{aXW}, {vr(vP+4*t,4)} offset:{16*t}")
if kf < 8: ld_kv("K", sK, vKoff, 4, LK, list(range(kf, 8)))
A("s_waitcnt lgkmcnt(0)")
A(f"s_add_u32 s{sT32}, s{sT32}, 1\ns_and_b32 s{sT6}, s{sT32}, 63")
A(f"ds_read2_b64 {vr(vXB,4)}, v{aXN} offset0:0 offset1:4\nds_read2_b64 {vr(vXB+4,4)}, v{aXN} offset0:8 offset1:12")
waitvm("WQ")
stamp()
ld_kv("V", sV, vVoff, 2, LV, list(range(8)))
def proj(base, red_off, pub_soff_code, pub_v, tag):
    for k in range(2):
        for ct in range(4):
            f = vF + 16*k + 4*ct
            A(f"ds_read_b64_tr_b16 {vr(f,2)}, v{aW+ct} offset:{base + 4096*k}")
            A(f"ds_read_b64_tr_b16 {vr(f+2,2)}, v{aW+ct} offset:{base + 4096*k + 2048}")
    for k in range(2):
        for ct in range(4):
            f = vF + 16*k + 4*ct
            A(f"s_waitcnt lgkmcnt({min(15, 14 - 2*(4*k+ct))})")
            c = "0" if k == 0 else vr(vAcc+4*ct, 4)
            A(f"v_mfma_f32_16x16x32_bf16 {vr(vAcc+4*ct,4)}, {vr(f,4)}, {vr(vXB+4*k,4)}, {c}")
    A(pub_soff_code)
    setexec(0x0003000300030003)
    for ct in range(4): A(f"ds_write_b128 v{aRedW}, {vr(vAcc+4*ct,4)} offset:{red_off + 64*ct}")
    fullexec()
    A("s_waitcnt lgkmcnt(0)\ns_barrier")
    for wv in range(4): A(f"ds_read_b128 {vr(vU+4*wv,4)}, v{aRedR} offset:{red_off + 512*wv}")
    A(f"v_mov_b32 v{vS}, s{sT6}")
    A("s_waitcnt lgkmcnt(2)")
    A(f"v_pk_add_f32 {vr(vU,2)}, {vr(vU,2)}, {vr(vU+4,2)}\nv_pk_add_f32 {vr(vU+2,2)}, {vr(vU+2,2)}, {vr(vU+6,2)}")
    A("s_waitcnt lgkmcnt(0)")
    A(f"v_pk_add_f32 {vr(vU+8,2)}, {vr(vU+8,2)}, {vr(vU+12,2)}\nv_pk_add_f32 {vr(vU+10,2)}, {vr(vU+10,2)}, {vr(vU+14,2)}")
    A(f"v_pk_add_f32 {vr(vU,2)}, {vr(vU,2)}, {vr(vU+8,2)}\nv_pk_add_f32 {vr(vU+2,2)}, {vr(vU+2,2)}, {vr(vU+10,2)}")
    for r in range(4): A(f"v_add_u32 v{vU+r}, 32, v{vU+r}")
    for r in range(4): A(f"v_bfi_b32 v{vU+r}, s{sC63}, v{vS}, v{vU+r}")
    setexec(0xff)
    issue(tag, f"buffer_store_dwordx4 {vr(vU,4)}, v{pub_v}, {srd(sWS)}, s{sT3} offen sc1")
    fullexec()
proj(LWQ, 0,
     f"s_lshr_b32 s{sT3}, s{sx8}, 1\ns_lshl_b32 s{sT3}, s{sT3}, 15\ns_and_b32 s{sT}, s{sS}, 3\ns_lshl_b32 s{sT}, s{sT}, 12\ns_add_u32 s{sT3}, s{sT3}, s{sT}\n"
     f"s_bfe_u32 s{sT}, s{sS}, {2 | (4 << 16):#x}\ns_lshl_b32 s{sT}, s{sT}, 8\ns_add_u32 s{sT3}, s{sT3}, s{sT}\ns_add_u32 s{sT3}, s{sT3}, {P1:#x}",
     vPub, "S1")
stamp()
A(f"s_lshl_b32 s{sT}, s{sS}, 4\ns_and_b32 s{sT2}, s{sT}, 2047\ns_lshl_b32 s{sT3}, s{sS1}, 5")
issue("SM", f"buffer_load_dwordx2 {vr(vSm,2)}, v{vOo}, {srd(sX)}, s{sT} offen")
issue("SM", f"buffer_load_dwordx2 {vr(vSm+2,2)}, v{vOo}, {srd(sB2)}, s{sT2} offen")
issue("SM", f"buffer_load_dwordx2 {vr(vSm+4,2)}, v{vB1o}, {srd(sB1)}, s{sT3} offen")
A("s_nop 1")
A(f"s_call_b64 s[{sRA}:{sRA+1}], L_ln")
for t in range(4): A(f"ds_write_b128 v{aXW}, {vr(vP+4*t,4)} offset:{4096 + 16*t}")
A(f"s_lshl_b32 s{sT}, s{sx8}, 14\ns_add_u32 s{sT}, s{sT}, {P1:#x}\ns_add_u32 s{sT2}, s{sT}, 4096\ns_add_u32 s{sT3}, s{sT}, 8192\ns_add_u32 s{sT4}, s{sT}, 12288")
if OPT["g1pos"] == 0: waitvm("K")
else: waitvm_n("V", OPT["g1pos"])
stamp()
def g1(tag):
    for k, so in enumerate((sT, sT2, sT3, sT4)):
        s = f"buffer_load_dwordx4 {vr(vG+4*k,4)}, v{vG1}, {srd(sWS)}, s{so} offen sc1"
        if tag: issue(tag, s)
        else: A(s)
g1("G1")
A(f"s_lshr_b32 s{sT5}, s{sS1}, 2\ns_lshl_b32 s{sT5}, s{sT5}, 7\ns_and_b32 s{sSpin}, s{sS1}, 3\ns_mul_i32 s{sSpin}, s{sSpin}, {256*7168}\ns_add_u32 s{sT5}, s{sT5}, s{sSpin}")
A(f"s_add_u32 m0, s{sLW}, {LW1}")
for t in range(8):
    if t: A(f"s_add_u32 m0, m0, 1024\ns_add_u32 s{sT5}, s{sT5}, {8*7168}")
    issue("W1", f"buffer_load_dwordx4 v{vW1off}, {srd(sW1)}, s{sT5} offen{NT} lds")
A(f"s_mov_b32 s{sSpin}, {OPT['spin']}")
waitvm("G1")
def chk6(base, n, lab_ok, lab_retry, reissue):
    A(f"{lab_retry}:")
    for r in range(n): A(f"v_xor_b32 v{base+r}, s{sT6}, v{base+r}")
    A(f"v_or3_b32 v{vS}, v{base}, v{base+1}, v{base+2}")
    r = 3
    while r + 1 < n:
        A(f"v_or3_b32 v{vS}, v{vS}, v{base+r}, v{base+r+1}"); r += 2
    if r < n: A(f"v_or_b32 v{vS}, v{vS}, v{base+r}")
    A(f"v_and_b32 v{vS}, 63, v{vS}\nv_cmp_ne_u32 vcc, 0, v{vS}\ns_cbranch_vccz {lab_ok}")
    A(f"s_add_u32 s{sRetry}, s{sRetry}, {reissue[1]}\ns_sub_u32 s{sSpin}, s{sSpin}, 1\ns_cbranch_scc1 L_end")
    reissue[0](None)
    A(f"s_waitcnt vmcnt(0)\ns_branch {lab_retry}")
    A(f"{lab_ok}:")
chk6(vG, 16, "L_g1ok", "L_g1chk", (g1, 1))
stamp()
ld_rows("WO", sWO, sS, aWO, range(4))
for r in (0, 2): A(f"v_pk_add_f32 {vr(vG+r,2)}, {vr(vG+r,2)}, {vr(vG+4+r,2)}\nv_pk_add_f32 {vr(vG+8+r,2)}, {vr(vG+8+r,2)}, {vr(vG+12+r,2)}")
for r in (0, 2): A(f"v_pk_add_f32 {vr(vG+r,2)}, {vr(vG+r,2)}, {vr(vG+8+r,2)}")
A(f"v_cvt_pk_bf16_f32 v{vG}, v{vG}, v{vG+1}\nv_cvt_pk_bf16_f32 v{vG+1}, v{vG+2}, v{vG+3}")
A(f"ds_write_b64 v{aQW}, {vr(vG,2)}")
for T in range(2):
    for s_ in range(4): A(f"ds_read_b128 {vr(vF+16*T+4*s_,4)}, v{aK+s_} offset:{4096*T}")
A("s_waitcnt lgkmcnt(8)\ns_barrier")
for s_ in range(4): A(f"ds_read_b128 {vr(vQ+4*s_,4)}, v{aQ} offset:{64*s_}")
for s_ in range(4):
    A(f"s_waitcnt lgkmcnt({3-s_})")
    for T in range(2):
        c = "0" if s_ == 0 else vr(vU+4*T, 4)
        A(f"v_mfma_f32_16x16x32_bf16 {vr(vU+4*T,4)}, {vr(vF+16*T+4*s_,4)}, {vr(vQ+4*s_,4)}, {c}")
A("s_nop 7")
for dt in range(8):
    A(f"ds_read_b64_tr_b16 {vr(vF+4*dt,2)}, v{aV+dt}\nds_read_b64_tr_b16 {vr(vF+4*dt+2,2)}, v{aV+dt} offset:4096")
for p in range(4): A(f"v_cvt_pk_bf16_f32 v{vU+8+p}, v{vU+2*p}, v{vU+2*p+1}")
for p in range(4): unpack(vU+2*p, vU+2*p+1, vU+8+p)
for r in range(8): A(f"v_mul_f32 v{vU+r}, 0x3db504f3, v{vU+r}")
for p in range(4): A(f"v_cvt_pk_bf16_f32 v{vU+8+p}, v{vU+2*p}, v{vU+2*p+1}")
for p in range(4): unpack(vU+2*p, vU+2*p+1, vU+8+p)
for r in range(8): A(f"v_mul_f32 v{vU+r}, 0x3fb8aa3b, v{vU+r}")
vM, vL = vS, vS+1
A(f"v_max3_f32 v{vM}, v{vU}, v{vU+1}, v{vU+2}\nv_max3_f32 v{vS+2}, v{vU+3}, v{vU+4}, v{vU+5}\nv_max3_f32 v{vM}, v{vM}, v{vU+6}, v{vU+7}\nv_max_f32 v{vM}, v{vM}, v{vS+2}")
allred(vM, "v_max_f32", ["p16", "p32"], vS+2)
for r in range(8): A(f"v_sub_f32 v{vU+r}, v{vU+r}, v{vM}")
for r in range(8): A(f"v_exp_f32 v{vU+r}, v{vU+r}")
for p in range(4): A(f"v_cvt_pk_bf16_f32 v{vU+8+p}, v{vU+2*p}, v{vU+2*p+1}")
A("s_waitcnt lgkmcnt(0)")
for dt in range(8):
    A(f"v_mfma_f32_16x16x32_bf16 {vr(vAcc+4*dt,4)}, {vr(vF+4*dt,4)}, {vr(vU+8,4)}, 0")
A(f"v_pk_add_f32 {vr(vU,2)}, {vr(vU,2)}, {vr(vU+2,2)}\nv_pk_add_f32 {vr(vU+4,2)}, {vr(vU+4,2)}, {vr(vU+6,2)}\nv_pk_add_f32 {vr(vU,2)}, {vr(vU,2)}, {vr(vU+4,2)}\nv_add_f32 v{vL}, v{vU}, v{vU+1}")
allred(vL, "v_add_f32", ["p16", "p32"], vS+2)
setexec(0x00ff00ff00ff00ff)
for dt in range(8): A(f"ds_write_b128 v{aOXW}, {vr(vAcc+4*dt,4)} offset:{64*dt}")
A(f"ds_write_b64 v{aMLW}, {vr(vM,2)}")
fullexec()
A("s_waitcnt lgkmcnt(0)\ns_barrier")
for wv in range(4): A(f"ds_read_b64 {vr(vU+16+2*wv,2)}, v{aMLR} offset:{64*wv}")
for wv in range(4): A(f"ds_read_b128 {vr(vU+4*wv,4)}, v{aOXR} offset:{OXW*wv}")
A(f"s_lshl_b32 s{sT}, s{sS}, 12\ns_add_u32 s{sT}, s{sT}, {P2:#x}")
A("s_waitcnt lgkmcnt(4)")
m = lambda wv: vU + 16 + 2*wv
A(f"v_max3_f32 v{vM}, v{m(0)}, v{m(1)}, v{m(2)}\nv_max_f32 v{vM}, v{vM}, v{m(3)}")
for wv in range(4): A(f"v_sub_f32 v{m(wv)}, v{m(wv)}, v{vM}")
for wv in range(4): A(f"v_exp_f32 v{m(wv)}, v{m(wv)}")
A(f"v_mul_f32 v{vL}, v{m(0)}, v{m(0)+1}")
for wv in range(1, 4): A(f"v_fmac_f32 v{vL}, v{m(wv)}, v{m(wv)+1}")
A(f"v_rcp_f32 v{vS+2}, v{vL}\nv_log_f32 v{vS+3}, v{vL}")
A("s_waitcnt lgkmcnt(0)")
for h in (0, 2): A(f"v_pk_mul_f32 {vr(vU+h,2)}, {vr(vU+h,2)}, {vr(m(0),2)} op_sel_hi:[1,0]")
for wv in range(1, 4):
    for h in (0, 2): A(f"v_pk_fma_f32 {vr(vU+h,2)}, {vr(vU+4*wv+h,2)}, {vr(m(wv),2)}, {vr(vU+h,2)} op_sel_hi:[1,0,1]")
for h in (0, 2): A(f"v_pk_mul_f32 {vr(vU+h,2)}, {vr(vU+h,2)}, {vr(vS+2,2)} op_sel_hi:[1,0]")
A(f"v_cvt_pk_bf16_f32 v{vU}, v{vU}, v{vU+1}\nv_cvt_pk_bf16_f32 v{vU+1}, v{vU+2}, v{vU+3}\nv_add_f32 v{vU+2}, v{vM}, v{vS+3}\nv_mov_b32 v{vU+3}, s{sT32}")
issue("S2", f"buffer_store_dwordx4 {vr(vU,4)}, v{vG1}, {srd(sWS)}, s{sT} offen sc1")
stamp()
A(f"ds_read2_b64 {vr(vXB,4)}, v{aYN} offset0:0 offset1:4\nds_read2_b64 {vr(vXB+4,4)}, v{aYN} offset0:8 offset1:12")
A(f"v_subrev_u32 v{vPub}, {RED1}, v{aRedR}")
waitvm("W1")
stamp()
proj(LW1, 2048, f"s_lshl_b32 s{sT3}, s{sS1}, 9\ns_add_u32 s{sT3}, s{sT3}, {P4:#x}", vPub, "S4")
A(f"s_lshr_b32 s{sT}, s{sx8}, 1\ns_lshl_b32 s{sT}, s{sT}, 18\ns_and_b32 s{sT2}, s{sS}, 63\ns_lshl_b32 s{sT2}, s{sT2}, 6\ns_add_u32 s{sT}, s{sT}, s{sT2}\ns_add_u32 s{sT}, s{sT}, {P2:#x}")
sG2 = [sT, sT2, sT3, sT4]
A(f"s_add_u32 s{sT2}, s{sT}, 4096\ns_add_u32 s{sT3}, s{sT}, 8192\ns_add_u32 s{sT4}, s{sT}, 12288")
def g2(tag):
    for k, so in enumerate(sG2):
        s = f"buffer_load_dwordx4 {vr(vG+4*k,4)}, v{vG2}, {srd(sWS)}, s{so} offen sc1"
        if tag: issue(tag, s)
        else: A(s)
g2("G2")
def ld_rows2(tag, s_, sidx, vb, rhos):
    for rho in rhos:
        A(f"s_lshl_b32 s{sT5}, s{sidx}, 15")
        if rho: A(f"s_add_u32 s{sT5}, s{sT5}, {2048*rho}")
        for u in range(2):
            issue(tag, f"buffer_load_dwordx4 {ar(vb+8*rho+4*u,4)}, v{vRow}, {srd(s_)}, s{sT5} offen offset:{256*u}{NT}")
ld_rows2("W2", sW2, sS1, aW2, (0, 1))
sG4 = sKV
A(f"s_lshr_b32 s{sG4}, s{sS1}, 2\ns_lshl_b32 s{sG4}, s{sG4}, 11\ns_and_b32 s{sT5}, s{sS1}, 3\ns_lshl_b32 s{sT5}, s{sT5}, 6\ns_add_u32 s{sG4}, s{sG4}, s{sT5}\ns_add_u32 s{sG4}, s{sG4}, {P4:#x}")
waitvm("WO")
stamp()
def g4(tag):
    for k in range(4):
        s = f"buffer_load_dwordx4 {vr(vH+4*k,4)}, v{vG4o}, {srd(sWS)}, s{sG4} offen offset:{512*k} sc1"
        if tag: issue(tag, s)
        else: A(s)
g4("G4")
ld_rows2("W2", sW2, sS1, aW2, (2, 3))
waitvm("G2")
A("L_g2chk:")
for k in range(4): A(f"v_xor_b32 v{vG+4*k+3}, s{sT32}, v{vG+4*k+3}")
A(f"v_or3_b32 v{vS}, v{vG+3}, v{vG+7}, v{vG+11}\nv_or_b32 v{vS}, v{vS}, v{vG+15}\nv_cmp_ne_u32 vcc, 0, v{vS}\ns_cbranch_vccz L_g2ok")
A(f"s_add_u32 s{sRetry}, s{sRetry}, 0x100\ns_sub_u32 s{sSpin}, s{sSpin}, 1\ns_cbranch_scc1 L_end")
g2(None)
A("s_waitcnt vmcnt(0)\ns_branch L_g2chk\nL_g2ok:")
stamp()
ls = lambda k: vG + 4*k + 2
A(f"v_max3_f32 v{vM}, v{ls(0)}, v{ls(1)}, v{ls(2)}\nv_max_f32 v{vM}, v{vM}, v{ls(3)}")
allred(vM, "v_max_f32", ["q1", "q2", "hm"], None)
for k in range(4): A(f"v_sub_f32 v{ls(k)}, v{ls(k)}, v{vM}")
for k in range(4): A(f"v_exp_f32 v{ls(k)}, v{ls(k)}")
for k in range(4):
    unpack(vU+4*k, vU+4*k+1, vG+4*k); unpack(vU+4*k+2, vU+4*k+3, vG+4*k+1)
A(f"v_add_f32 v{vL}, v{ls(0)}, v{ls(1)}\nv_add_f32 v{vS+2}, v{ls(2)}, v{ls(3)}\nv_add_f32 v{vL}, v{vL}, v{vS+2}")
for h in (0, 2): A(f"v_pk_mul_f32 {vr(vU+h,2)}, {vr(vU+h,2)}, {vr(ls(0),2)} op_sel_hi:[1,0]")
for k in range(1, 4):
    for h in (0, 2): A(f"v_pk_fma_f32 {vr(vU+h,2)}, {vr(vU+4*k+h,2)}, {vr(ls(k),2)}, {vr(vU+h,2)} op_sel_hi:[1,0,1]")
allred([vL, vU, vU+1, vU+2, vU+3], "v_add_f32", ["q1", "q2", "hm"], None)
A(f"v_rcp_f32 v{vS+2}, v{vL}")
for h in (0, 2): A(f"v_pk_mul_f32 {vr(vU+h,2)}, {vr(vU+h,2)}, {vr(vS+2,2)} op_sel_hi:[1,0]")
def aprep(dst, src):
    for rho in range(4): A(f"v_cvt_pk_bf16_f32 v{src+rho}, v{src+rho}, v{src+rho}")
    for rho in range(4):
        for r in range(4): A(f"v_and_b32 v{dst+4*rho+r}, v{src+rho}, v{vMask+r}")
aprep(vAo, vU)
for rho in range(4):
    for u in range(2):
        c = "0" if rho == 0 else vr(vOut+4*u, 4)
        A(f"v_mfma_f32_16x16x32_bf16 {vr(vOut+4*u,4)}, {vr(vAo+4*rho,4)}, {ar(aWO+8*rho+4*u,4)}, {c}")
waitvm("G4")
chk6(vH, 16, "L_g4ok", "L_g4chk", (g4, 0x10000))
stamp()
for r in (0, 2): A(f"v_pk_add_f32 {vr(vH+r,2)}, {vr(vH+r,2)}, {vr(vH+4+r,2)}\nv_pk_add_f32 {vr(vH+8+r,2)}, {vr(vH+8+r,2)}, {vr(vH+12+r,2)}")
for r in (0, 2): A(f"v_pk_add_f32 {vr(vH+r,2)}, {vr(vH+r,2)}, {vr(vH+8+r,2)}")
A(f"v_cvt_pk_bf16_f32 v{vH+4}, v{vH}, v{vH+1}\nv_cvt_pk_bf16_f32 v{vH+5}, v{vH+2}, v{vH+3}")
unpack(vH, vH+1, vH+4); unpack(vH+2, vH+3, vH+5)
unpack(vH+8, vH+9, vSm+4); unpack(vH+10, vH+11, vSm+5)
for r in (0, 2): A(f"v_pk_add_f32 {vr(vH+r,2)}, {vr(vH+r,2)}, {vr(vH+8+r,2)}")
A(f"v_cvt_pk_bf16_f32 v{vH+4}, v{vH}, v{vH+1}\nv_cvt_pk_bf16_f32 v{vH+5}, v{vH+2}, v{vH+3}")
unpack(vH, vH+1, vH+4); unpack(vH+2, vH+3, vH+5)
for r in range(4): A(f"v_mul_f32 v{vH+4+r}, v{vH+r}, v{vH+r}")
for r in range(4): A(f"v_mul_f32 v{vH+4+r}, 0xbdd2d3e8, v{vH+4+r}")
for r in range(4): A(f"v_add_f32 v{vH+4+r}, 0xc0135761, v{vH+4+r}")
for r in range(4): A(f"v_mul_f32 v{vH+4+r}, v{vH+r}, v{vH+4+r}")
for r in range(4): A(f"v_exp_f32 v{vH+4+r}, v{vH+4+r}")
for r in range(4): A(f"v_add_f32 v{vH+4+r}, 1.0, v{vH+4+r}")
for r in range(4): A(f"v_rcp_f32 v{vH+4+r}, v{vH+4+r}")
for r in range(4): A(f"v_mul_f32 v{vH+r}, v{vH+r}, v{vH+4+r}")
aprep(vAh, vH)
A(f"s_lshl_b32 s{sT}, s{sS}, 13\ns_add_u32 s{sT}, s{sT}, {P3:#x}\nv_mov_b32 v{vS}, s{sT6}")
for rho in range(4):
    waitvm_n("W2", 2*rho + 2)
    for u in range(2):
        A(f"v_mfma_f32_16x16x32_bf16 {vr(vOut+4*u,4)}, {vr(vAh+4*rho,4)}, {ar(aW2+8*rho+4*u,4)}, {vr(vOut+4*u,4)}")
stamp()
for u in range(2):
    for r in range(4): A(f"v_bfi_b32 v{vOut+4*u+r}, s{sC63}, v{vS}, v{vOut+4*u+r}")
    issue("S3", f"buffer_store_dwordx4 {vr(vOut+4*u,4)}, v{vP3}, {srd(sWS)}, s{sT} offen offset:{512*u} sc1")
A(f"s_lshl_b32 s{sT}, s{sS}, 5\ns_add_u32 s{sT}, s{sT}, {P3:#x}\ns_add_u32 s{sT2}, s{sT}, {32*8192}")
def g3(tag):
    for k, so in enumerate((sT, sT2)):
        A(f"buffer_load_dwordx4 {vr(vG+4*k,4)}, v{vG3}, {srd(sWS)}, s{so} offen sc1")
g3(None)
unpack(vH, vH+1, vSm); unpack(vH+2, vH+3, vSm+1); unpack(vH+4, vH+5, vSm+2); unpack(vH+6, vH+7, vSm+3)
for r in (0, 2): A(f"v_pk_add_f32 {vr(vH+r,2)}, {vr(vH+r,2)}, {vr(vH+4+r,2)}")
A("s_waitcnt vmcnt(0)")
chk6(vG, 8, "L_g3ok", "L_g3chk", (g3, 0x1000000))
stamp()
for r in (0, 2): A(f"v_pk_add_f32 {vr(vG+r,2)}, {vr(vG+r,2)}, {vr(vG+4+r,2)}")
allred([vG, vG+1, vG+2, vG+3], "v_add_f32", ["r2", "r4", "r8", "p16", "p32"], [vG+4, vG+5, vG+6, vG+7])
setexec(3)
A(f"ds_write_b128 v{aFin}, {vr(vG,4)}")
A("s_waitcnt lgkmcnt(0)\ns_barrier")
A(f"s_cmp_lg_u32 s{sWave}, 0\ns_cbranch_scc1 L_done")
for wv in range(4): A(f"ds_read_b128 {vr(vU+4*wv,4)}, v{aFin} offset:{32*wv}")
A(f"s_lshl_b32 s{sT}, s{sS}, 4")
for wv in range(4):
    A(f"s_waitcnt lgkmcnt({3-wv})")
    for r in (0, 2): A(f"v_pk_add_f32 {vr(vH+r,2)}, {vr(vH+r,2)}, {vr(vU+4*wv+r,2)}")
A(f"v_cvt_pk_bf16_f32 v{vH}, v{vH}, v{vH+1}\nv_cvt_pk_bf16_f32 v{vH+1}, v{vH+2}, v{vH+3}")
A(f"buffer_store_dwordx2 {vr(vH,2)}, v{vOo}, {srd(sOUT)}, s{sT} offen")
A(f"s_cmp_lg_u32 s2, 0\ns_cbranch_scc1 L_done")
A(f"v_mov_b32 v{vS}, s{sT32}\nv_mov_b32 v{vS+1}, 0")
setexec(1)
A(f"buffer_store_dword v{vS}, v{vS+1}, {srd(sWS)}, 0 offen sc1")
A("L_done:")
if OPT.get("padto"):
    A(f"L_pad:\ns_memrealtime s[98:99]\ns_waitcnt lgkmcnt(0)\ns_sub_u32 s98, s98, s100\ns_cmp_lt_u32 s98, {OPT['padto']}\ns_cbranch_scc1 L_pad")
if OPT["stamps"]:
    stamp()
    n = nst[0]
    A(f"s_cmp_lg_u32 s{sWave}, {OPT.get('swave', 0)}\ns_cbranch_scc1 L_end")
    setexec(1)
    A(f"s_waitcnt lgkmcnt(0)\ns_lshl_b32 s{sT}, s2, 8\ns_add_u32 s{sT}, s{sT}, 0x8000000\ns_mov_b32 s{sWS+2}, 0x10000000\nv_mov_b32 v{vS+2}, 0")
    for i in range(n):
        A(f"v_mov_b32 v{vS}, s{STB+2*i}\nv_mov_b32 v{vS+1}, s{STB+2*i+1}\nbuffer_store_dwordx2 {vr(vS,2)}, v{vS+2}, {srd(sWS)}, s{sT} offen offset:{8*i}\ns_nop 1")
    A(f"v_mov_b32 v{vS}, s{sRetry}\nv_mov_b32 v{vS+1}, 0\nbuffer_store_dwordx2 {vr(vS,2)}, v{vS+2}, {srd(sWS)}, s{sT} offen offset:{8*31}")
    print("nstamps", n, file=sys.stderr)
A("L_end:\ns_endpgm")
A("L_ln:")
for i in range(16): unpack(vU+2*i, vU+2*i+1, vP+i)
a0, a1 = vS, vS+2
A(f"v_pk_add_f32 {vr(a0,2)}, {vr(vU,2)}, {vr(vU+2,2)}\nv_pk_add_f32 {vr(a1,2)}, {vr(vU+4,2)}, {vr(vU+6,2)}")
for i in range(4, 16, 2): A(f"v_pk_add_f32 {vr(a0,2)}, {vr(a0,2)}, {vr(vU+2*i,2)}\nv_pk_add_f32 {vr(a1,2)}, {vr(a1,2)}, {vr(vU+2*i+2,2)}")
A(f"v_pk_add_f32 {vr(a0,2)}, {vr(a0,2)}, {vr(a1,2)}\nv_add_f32 v{a0}, v{a0}, v{a0+1}")
allred(a0, "v_add_f32", ["q1", "q2", "hm", "m", "p16"], a1)
mean = vS+6
A(f"v_mul_f32 v{mean}, 0x3a800000, v{a0}")
d0 = vS+4
for i in range(16):
    acc = a0 if i % 2 == 0 else a1
    dd = vXB + 2*(i % 4)
    A(f"v_pk_add_f32 {vr(dd,2)}, {vr(vU+2*i,2)}, {vr(mean,2)} op_sel_hi:[1,0] neg_lo:[0,1] neg_hi:[0,1]")
    if i < 2: A(f"v_pk_mul_f32 {vr(acc,2)}, {vr(dd,2)}, {vr(dd,2)}")
    else: A(f"v_pk_fma_f32 {vr(acc,2)}, {vr(dd,2)}, {vr(dd,2)}, {vr(acc,2)}")
A(f"v_pk_add_f32 {vr(a0,2)}, {vr(a0,2)}, {vr(a1,2)}\nv_add_f32 v{a0}, v{a0}, v{a0+1}")
allred(a0, "v_add_f32", ["q1", "q2", "hm", "m", "p16"], a1)
A(f"v_mul_f32 v{a0}, 0x3a800000, v{a0}\nv_cvt_pk_bf16_f32 v{a0}, v{a0}, v{mean}")
A(f"v_and_b32 v{mean}, s{sHI}, v{a0}\nv_lshlrev_b32 v{a0}, 16, v{a0}\nv_add_f32 v{a0}, 0x3727c5ac, v{a0}")
A(f"v_cvt_pk_bf16_f32 v{a0}, v{a0}, v{a0}\nv_lshlrev_b32 v{a0}, 16, v{a0}\nv_sqrt_f32 v{a0}, v{a0}")
A(f"v_cvt_pk_bf16_f32 v{a0}, v{a0}, v{a0}\nv_lshlrev_b32 v{a0}, 16, v{a0}\nv_rcp_f32 v{a0}, v{a0}")
for i in range(16): A(f"v_pk_add_f32 {vr(vU+2*i,2)}, {vr(vU+2*i,2)}, {vr(mean,2)} op_sel_hi:[1,0] neg_lo:[0,1] neg_hi:[0,1]")
for i in range(16): A(f"v_cvt_pk_bf16_f32 v{vP+i}, v{vU+2*i}, v{vU+2*i+1}")
for i in range(16): unpack(vU+2*i, vU+2*i+1, vP+i)
for i in range(16): A(f"v_pk_mul_f32 {vr(vU+2*i,2)}, {vr(vU+2*i,2)}, {vr(a0,2)} op_sel_hi:[1,0]")
for i in range(16): A(f"v_cvt_pk_bf16_f32 v{vP+i}, v{vU+2*i}, v{vU+2*i+1}")
A(f"s_setpc_b64 s[{sRA}:{sRA+1}]")

body, nadd = hz.pad("\n".join(L))
hdr = open(os.path.join(os.path.dirname(__file__), "header.txt")).read()
out = f"""{hdr}; @launch grid=(256,1,1) block=(256,1,1) lds={LDS_END}
.amdgcn_target "amdgcn-amd-amdhsa--gfx950"
.text
.globl {NAME}_kernel
.p2align 8
.type {NAME}_kernel,@function
{NAME}_kernel:
{body}
.section .rodata,"a"
.p2align 6
.amdhsa_kernel {NAME}_kernel
  .amdhsa_next_free_vgpr {NV}
  .amdhsa_next_free_sgpr 102
  .amdhsa_accum_offset {NARCH}
  .amdhsa_group_segment_fixed_size 0
  .amdhsa_kernarg_size 104
  .amdhsa_user_sgpr_count 2
  .amdhsa_user_sgpr_kernarg_segment_ptr 1
  .amdhsa_system_sgpr_workgroup_id_x 1
  .amdhsa_float_denorm_mode_32 3
.end_amdhsa_kernel
"""
open(sys.argv[1], "w").write(out)
print("NV", NV, "LDS", LDS_END, "nops added", nadd, file=sys.stderr)
```

```python
import sys, os
sys.path.insert(0, os.path.dirname(__file__))
import hz
NAME = "parallel_sum__sliding_block_cached__mixer_channel_mlp__decode"
OPT = dict(stamps=0, nt=1, kfirst=4, g1pos=2, spin=1 << 16)
for a in sys.argv[2:]:
    k, v = a.split("="); OPT[k] = int(v)
NT = " nt" if OPT["nt"] else ""
L = []
def A(s):
    for x in s.split("\n"): L.append("    " + x.strip() if not x.strip().endswith(":") else x.strip())
class Alloc:
    def __init__(s, start): s.n = start
    def __call__(s, cnt=1, al=1):
        s.n = (s.n + al - 1) // al * al
        r = s.n; s.n += cnt; return r
VA = Alloc(1)
def vr(r, n): return f"v[{r}:{r+n-1}]"
sX, sK, sV, sWQ, sWO, sW1, sW2, sB1, sB2, sOUT, sWS = range(8, 52, 4)
def srd(r): return f"s[{r}:{r+3}]"
sx8, si32, sS, sS1, sWave, sKV, sLW, sT, sT32, sT6, sHI, sT2, sSpin, sT3, sT4, sT5 = range(52, 68)
sRA = 68
sC63 = 70; sRetry = 71
STB = 72
nst = [0]
def stamp():
    if OPT["stamps"]:
        i = nst[0]; nst[0] += 1
        A(f"s_memrealtime s[{STB+2*i}:{STB+2*i+1}]")
P1, P4, P2, P3, WSSZ = 0x10000, 0x40000, 0x100000, 0x200000, 0x400000
LWQ, LW1, LK, LV, M = 0, 32768, 65536, 98304, 131072
XN, YN, QL = M, M + 4096, M + 8192
RED1 = M + 10496; RED2 = RED1 + 2048; ML = RED2 + 2048; FIN = ML + 256; LDS_END = FIN + 128
OX = 0; OXH = 528; OXW = 8 * OXH
vm = []
def issue(tag, s): A(s); vm.append(tag)
def waitvm(tag, extra=""):
    idx = max(i for i, t in enumerate(vm) if t == tag)
    n = len(vm) - 1 - idx
    assert n <= 63
    A(f"s_waitcnt vmcnt({n}){extra}")
def waitvm_n(tag, k):
    idxs = [i for i, t in enumerate(vm) if t == tag]
    n = len(vm) - 1 - idxs[k-1]
    A(f"s_waitcnt vmcnt({n})")

vLane, vG4, vN16, vTmp, vTmp2, vTmp3 = [VA() for _ in range(6)]
vXoff, vWQoff, vW1off, vRow = [VA() for _ in range(4)]
vKoff = VA(4); vVoff = VA(2)
aW = VA(4); aK = VA(4); aV = VA(8); aQ = VA(); aXN = VA(); aYN = VA(); aXW = VA()
aRedW = VA(); aRedR = VA(); vPub = VA(); vG1 = VA(); aQW = VA(); aOXW = VA(); aMLW = VA(); aOXR = VA(); aMLR = VA()
vG2 = VA(); vG4o = VA(); vB1o = VA(); vP3 = VA(); vG3 = VA(); vOo = VA(); aFin = VA()
vMask = VA(4)
vP = VA(16, 4)
vU = VA(32, 4)
vS = VA(8, 4)
vXB = VA(8, 4)
vF = VA(32, 4)
vAcc = VA(32, 4)
vQ = VA(16, 4)
vG = VA(16, 4)
vH = vQ
aWO = 0; aW2 = 32
vAo = vF; vAh = vF + 16
vSm = VA(8, 4)
vOut = vAcc
NARCH = (VA.n + 3) // 4 * 4
NV = NARCH + 64
def ar(r, n): return f"a[{r}:{r+n-1}]"

def allred(reg, op, steps, tmp):
    regs_ = reg if isinstance(reg, list) else [reg]
    tmps = tmp if isinstance(tmp, list) else [tmp]
    dpp = dict(q1="quad_perm:[1,0,3,2]", q2="quad_perm:[2,3,0,1]", hm="row_half_mirror", m="row_mirror",
               r2="row_ror:2", r4="row_ror:4", r8="row_ror:8")
    for st in steps:
        if st in dpp:
            for r in regs_: A(f"{op}_dpp v{r}, v{r}, v{r} {dpp[st]} row_mask:0xf bank_mask:0xf")
        else:
            ins = "v_permlane16_swap_b32" if st == "p16" else "v_permlane32_swap_b32"
            for r, t in zip(regs_, tmps): A(f"v_mov_b32 v{t}, v{r}")
            for r, t in zip(regs_, tmps): A(f"{ins} v{r}, v{t}")
            for r, t in zip(regs_, tmps): A(f"{op} v{r}, v{r}, v{t}")
def unpack(dlo, dhi, src):
    A(f"v_lshlrev_b32 v{dlo}, 16, v{src}\nv_and_b32 v{dhi}, s{sHI}, v{src}")
def setexec(m):
    A(f"s_mov_b32 exec_lo, {m & 0xffffffff:#x}\ns_mov_b32 exec_hi, {(m >> 32) & 0xffffffff:#x}")
def fullexec(): A("s_mov_b64 exec, -1")

if OPT.get("padto"): A("s_memrealtime s[100:101]")
stamp()
A("s_cmp_ge_u32 s2, 256\ns_cbranch_scc1 L_end")
for r, off in ((sX, 0), (sWQ, 24), (sK, 8), (sWS, 96), (sV, 16), (sWO, 32), (sW1, 48), (sB1, 56), (sW2, 64), (sB2, 72), (sOUT, 80)):
    A(f"s_load_dwordx2 s[{r}:{r+1}], s[0:1], {off}")
A(f"s_and_b32 s{sx8}, s2, 7\ns_lshr_b32 s{si32}, s2, 3")
A(f"s_lshl_b32 s{sS}, s{sx8}, 5\ns_add_u32 s{sS}, s{sS}, s{si32}")
A(f"v_lshrrev_b32 v{vTmp}, 6, v0\nv_and_b32 v{vLane}, 63, v0")
A(f"v_readfirstlane_b32 s{sWave}, v{vTmp}")
A(f"v_lshrrev_b32 v{vG4}, 4, v{vLane}\nv_and_b32 v{vN16}, 15, v{vLane}")
A(f"v_lshlrev_b32 v{vXoff}, 6, v{vLane}")
A(f"s_mul_i32 s{sS1}, s{sx8}, 28\ns_add_u32 s{sS1}, s{sS1}, s{si32}")
A(f"s_lshl_b32 s{sT}, s{sx8}, 2\ns_add_u32 s{sT}, s{sT}, s{si32}\ns_add_u32 s{sT}, s{sT}, {224-28}")
A(f"s_cmp_lt_u32 s{si32}, 28\ns_cselect_b32 s{sS1}, s{sS1}, s{sT}")
A(f"s_cselect_b32 s{sW1+2}, {1024*7168}, 0\ns_cselect_b32 s{sW2+2}, {3584*2048}, 0\ns_cselect_b32 s{sB1+2}, 7168, 0")
for r, sz in ((sX, 4096), (sWQ, 1 << 23), (sK, 1 << 25), (sV, 1 << 25), (sWO, 1 << 23), (sB2, 2048), (sOUT, 4096), (sWS, WSSZ)):
    A(f"s_mov_b32 s{r+2}, {sz:#x}")
for r in (sX, sWQ, sK, sV, sWO, sW1, sW2, sB1, sB2, sOUT, sWS):
    A(f"s_mov_b32 s{r+3}, 0x20000")
A(f"s_mov_b32 s{sHI}, 0xffff0000\ns_mov_b32 s{sC63}, 63\ns_mov_b32 s{sRetry}, 0")
A(f"v_lshrrev_b32 v{vTmp2}, 3, v{vLane}\nv_lshl_add_u32 v{vTmp2}, v{vTmp}, 6, v{vTmp2}")
A(f"v_and_b32 v{vTmp3}, 7, v{vLane}\nv_lshlrev_b32 v{vS}, 1, v{vG4}\nv_xor_b32 v{vTmp3}, v{vTmp3}, v{vS}\nv_lshlrev_b32 v{vTmp3}, 4, v{vTmp3}")
A(f"v_lshl_add_u32 v{vWQoff}, v{vTmp2}, 13, v{vTmp3}")
A(f"v_mul_u32_u24 v{vW1off}, 7168, v{vTmp2}\nv_add_u32 v{vW1off}, v{vW1off}, v{vTmp3}")
A(f"v_lshlrev_b32 v{vTmp2}, 13, v{vTmp}\nv_lshl_add_u32 v{vTmp2}, v{vG4}, 8, v{vTmp2}")
A(f"v_xor_b32 v{vTmp3}, v{vN16}, v{vG4}\nv_lshl_add_u32 v{vKoff}, v{vTmp3}, 4, v{vTmp2}")
for q in (1, 2, 3): A(f"v_xor_b32 v{vKoff+q}, {64*q}, v{vKoff}")
A(f"v_xor_b32 v{vTmp3}, v{vN16}, v{vS}\nv_lshl_add_u32 v{vVoff}, v{vTmp3}, 4, v{vTmp2}\nv_xor_b32 v{vVoff+1}, 128, v{vVoff}")
A(f"s_and_b32 s{sKV}, s{sx8}, 1\ns_lshl_b32 s{sKV}, s{sKV}, 2\ns_lshr_b32 s{sT}, s{sx8}, 1\ns_add_u32 s{sKV}, s{sKV}, s{sT}\ns_lshl_b32 s{sKV}, s{sKV}, 22")
A(f"s_lshl_b32 s{sT}, s{si32}, 15\ns_add_u32 s{sKV}, s{sKV}, s{sT}\ns_add_u32 s{sKV}, s{sKV}, 0x300000")
A(f"s_lshl_b32 s{sLW}, s{sWave}, 13")
A(f"s_lshr_b32 s{sT}, s{sS}, 2\ns_lshl_b32 s{sT}, s{sT}, 7\ns_and_b32 s{sT2}, s{sS}, 3\ns_lshl_b32 s{sT2}, s{sT2}, 21\ns_add_u32 s{sT}, s{sT}, s{sT2}")
A(f"s_mov_b32 m0, s{sLW}")
A("s_waitcnt lgkmcnt(0)")
stamp()
A(f"s_load_dword s{sT32}, s[{sWS}:{sWS+1}], 0")
for t in range(4): issue("X", f"buffer_load_dwordx4 {vr(vP+4*t,4)}, v{vXoff}, {srd(sX)}, 0 offen offset:{16*t}")
def ld_tile(tag, s_, voff, rowb):
    for t in range(8):
        if t: A(f"s_add_u32 m0, m0, 1024\ns_add_u32 s{sT}, s{sT}, {8*rowb}")
        issue(tag, f"buffer_load_dwordx4 v{voff}, {srd(s_)}, s{sT} offen{NT} lds")
def ld_kv(tag, s_, voff, nreg, base, ts):
    for t in ts:
        if t % 4 == 0 or t == ts[0]:
            A(f"s_add_u32 m0, s{sLW}, {base + 4096*(t//4)}\ns_add_u32 s{sT2}, s{sKV}, {4096*(t//4)}")
        issue(tag, f"buffer_load_dwordx4 v{voff + t % nreg}, {srd(s_)}, s{sT2} offen offset:{1024*(t%4)}{NT} lds")
def ld_rows(tag, s_, sidx, vb, rhos):
    for rho in rhos:
        A(f"s_lshl_b32 s{sT}, s{sidx}, 15")
        if rho: A(f"s_add_u32 s{sT}, s{sT}, {2048*rho}")
        for u in range(2):
            issue(tag, f"buffer_load_dwordx4 {ar(vb+8*rho+4*u,4)}, v{vRow}, {srd(s_)}, s{sT} offen offset:{256*u}{NT}")
ld_tile("WQ", sWQ, vWQoff, 8192)
kf = OPT["kfirst"]
if kf: ld_kv("K", sK, vKoff, 4, LK, list(range(kf)))
j = vTmp
r_, c4 = vTmp2, vTmp3
A(f"v_lshrrev_b32 v{r_}, 2, v{vN16}\nv_and_b32 v{c4}, 3, v{vN16}")
t0, t1, t2 = vS, vS+1, vS+2
A(f"v_lshl_add_u32 v{t0}, v{vG4}, 2, v{r_}")
A(f"v_lshrrev_b32 v{t1}, 1, v{t0}\nv_and_b32 v{t1}, 3, v{t1}")
A(f"v_lshlrev_b32 v{t2}, 3, v{c4}\nv_lshl_add_u32 v{t2}, v{j}, 13, v{t2}")
A(f"v_lshl_add_u32 v{aW}, v{t0}, 7, v{t2}\nv_lshl_add_u32 v{aW}, v{t1}, 5, v{aW}")
for ct in (1, 2, 3): A(f"v_xor_b32 v{aW+ct}, {32*ct}, v{aW}")
A(f"v_and_b32 v{t1}, 7, v{t0}\nv_lshl_add_u32 v{aV}, v{t0}, 8, v{t2}\nv_lshl_add_u32 v{aV}, v{t1}, 5, v{aV}\nv_add_u32 v{aV}, {LV}, v{aV}")
for dt in range(1, 8): A(f"v_xor_b32 v{aV+dt}, {32*dt}, v{aV}")
A(f"v_xor_b32 v{t1}, v{vG4}, v{vN16}\nv_lshlrev_b32 v{t1}, 4, v{t1}\nv_lshl_add_u32 v{t1}, v{vN16}, 8, v{t1}\nv_lshl_add_u32 v{t1}, v{j}, 13, v{t1}\nv_add_u32 v{aK}, {LK}, v{t1}")
for s_ in (1, 2, 3): A(f"v_xor_b32 v{aK+s_}, {64*s_}, v{aK}")
A(f"v_and_b32 v{t1}, 7, v{vN16}\nv_mul_u32_u24 v{aQ}, 272, v{t1}\nv_lshl_add_u32 v{aQ}, v{vG4}, 4, v{aQ}\nv_add_u32 v{aQ}, {QL}, v{aQ}")
A(f"v_mul_u32_u24 v{aOXW}, {OXH}, v{t1}\nv_mul_u32_u24 v{t2}, {OXW}, v{j}\nv_add_u32 v{aOXW}, v{aOXW}, v{t2}\nv_lshl_add_u32 v{aOXW}, v{vG4}, 4, v{aOXW}")
A(f"v_lshlrev_b32 v{aMLW}, 3, v{t1}\nv_lshl_add_u32 v{aMLW}, v{j}, 6, v{aMLW}\nv_add_u32 v{aMLW}, {ML}, v{aMLW}")
A(f"v_and_b32 v{t1}, 1, v{vN16}\nv_lshlrev_b32 v{t1}, 11, v{t1}\nv_lshl_add_u32 v{t1}, v{j}, 7, v{t1}\nv_lshl_add_u32 v{t1}, v{vG4}, 3, v{t1}")
A(f"s_and_b32 s{sT}, s{sS}, 3\ns_lshl_b32 s{sT}, s{sT}, 9\ns_add_u32 s{sT}, s{sT}, {XN}\nv_add_u32 v{aXN}, s{sT}, v{t1}")
A(f"s_and_b32 s{sT}, s{sS1}, 3\ns_lshl_b32 s{sT}, s{sT}, 9\ns_add_u32 s{sT}, s{sT}, {YN}\nv_add_u32 v{aYN}, s{sT}, v{t1}")
A(f"v_add_u32 v{aXW}, {XN}, v{vXoff}")
A(f"v_lshlrev_b32 v{t1}, 8, v{vN16}\nv_lshl_add_u32 v{t1}, v{j}, 9, v{t1}\nv_lshl_add_u32 v{t1}, v{vG4}, 4, v{t1}\nv_add_u32 v{aRedW}, {RED1}, v{t1}")
A(f"v_and_b32 v{t0}, 7, v{vLane}\nv_lshlrev_b32 v{t1}, 4, v{t0}\nv_lshl_add_u32 v{t1}, v{j}, 7, v{t1}\nv_add_u32 v{aRedR}, {RED1}, v{t1}")
A(f"v_lshrrev_b32 v{t2}, 1, v{j}\nv_mul_u32_u24 v{t2}, {16384-256}, v{t2}\nv_add_u32 v{vPub}, v{t1}, v{t2}")
A(f"v_lshlrev_b32 v{vG1}, 4, v0")
A(f"v_lshrrev_b32 v{t1}, 5, v0\nv_and_b32 v{t2}, 31, v0")
A(f"v_mul_u32_u24 v{aQW}, 272, v{t1}\nv_lshl_add_u32 v{aQW}, v{t2}, 3, v{aQW}\nv_add_u32 v{aQW}, {QL}, v{aQW}")
A(f"v_mul_u32_u24 v{aOXR}, {OXH}, v{t1}\nv_lshl_add_u32 v{aOXR}, v{t2}, 4, v{aOXR}")
A(f"v_lshlrev_b32 v{aMLR}, 3, v{t1}\nv_add_u32 v{aMLR}, {ML}, v{aMLR}")
A(f"v_lshrrev_b32 v{t1}, 3, v{vN16}\nv_lshlrev_b32 v{t2}, 4, v{vG4}")
A(f"v_lshl_add_u32 v{vG2}, v{t1}, 17, v{t2}\nv_lshl_add_u32 v{vG2}, v{t0}, 14, v{vG2}")
A(f"v_lshl_add_u32 v{vG4o}, v{t1}, 8, v{t2}\nv_lshlrev_b32 v{vB1o}, 3, v{vG4}")
A(f"v_lshlrev_b32 v{vRow}, 13, v{vG4}\nv_lshl_add_u32 v{vRow}, v{j}, 9, v{vRow}\nv_lshl_add_u32 v{vRow}, v{vN16}, 4, v{vRow}")
A(f"v_lshrrev_b32 v{t1}, 1, v{vG4}\nv_lshlrev_b32 v{vP3}, 12, v{t1}\nv_lshl_add_u32 v{vP3}, v{j}, 10, v{vP3}\nv_lshl_add_u32 v{vP3}, v{vN16}, 5, v{vP3}\nv_and_b32 v{t1}, 1, v{vG4}\nv_lshl_add_u32 v{vP3}, v{t1}, 4, v{vP3}")
A(f"v_lshrrev_b32 v{t1}, 1, v{vLane}\nv_lshl_add_u32 v{t1}, v{j}, 6, v{t1}\nv_and_b32 v{t2}, 1, v{vLane}\nv_lshlrev_b32 v{vOo}, 3, v{t2}\nv_lshlrev_b32 v{t2}, 4, v{t2}\nv_lshl_add_u32 v{vG3}, v{t1}, 13, v{t2}")
A(f"v_lshl_add_u32 v{aFin}, v{j}, 5, v{t2}\nv_add_u32 v{aFin}, {FIN}, v{aFin}")
A(f"v_lshlrev_b32 v{t1}, 1, v{vOo}\nv_mov_b32 v{t2}, 0xffff\nv_lshlrev_b32 v{t1}, v{t1}, v{t2}\nv_lshrrev_b32 v{t0}, 1, v{t0}")
for r in range(4):
    A(f"v_cmp_eq_u32 vcc, {r}, v{t0}\nv_cndmask_b32 v{vMask+r}, 0, v{t1}, vcc")
waitvm("X")
stamp()
A(f"s_call_b64 s[{sRA}:{sRA+1}], L_ln")
for t in range(4): A(f"ds_write_b128 v{aXW}, {vr(vP+4*t,4)} offset:{16*t}")
if kf < 8: ld_kv("K", sK, vKoff, 4, LK, list(range(kf, 8)))
A("s_waitcnt lgkmcnt(0)")
A(f"s_add_u32 s{sT32}, s{sT32}, 1\ns_and_b32 s{sT6}, s{sT32}, 63")
A(f"ds_read2_b64 {vr(vXB,4)}, v{aXN} offset0:0 offset1:4\nds_read2_b64 {vr(vXB+4,4)}, v{aXN} offset0:8 offset1:12")
waitvm("WQ")
stamp()
ld_kv("V", sV, vVoff, 2, LV, list(range(8)))
def proj(base, red_off, pub_soff_code, pub_v, tag):
    for k in range(2):
        for ct in range(4):
            f = vF + 16*k + 4*ct
            A(f"ds_read_b64_tr_b16 {vr(f,2)}, v{aW+ct} offset:{base + 4096*k}")
            A(f"ds_read_b64_tr_b16 {vr(f+2,2)}, v{aW+ct} offset:{base + 4096*k + 2048}")
    for k in range(2):
        for ct in range(4):
            f = vF + 16*k + 4*ct
            A(f"s_waitcnt lgkmcnt({min(15, 14 - 2*(4*k+ct))})")
            c = "0" if k == 0 else vr(vAcc+4*ct, 4)
            A(f"v_mfma_f32_16x16x32_bf16 {vr(vAcc+4*ct,4)}, {vr(f,4)}, {vr(vXB+4*k,4)}, {c}")
    A(pub_soff_code)
    setexec(0x0003000300030003)
    for ct in range(4): A(f"ds_write_b128 v{aRedW}, {vr(vAcc+4*ct,4)} offset:{red_off + 64*ct}")
    fullexec()
    A("s_waitcnt lgkmcnt(0)\ns_barrier")
    for wv in range(4): A(f"ds_read_b128 {vr(vU+4*wv,4)}, v{aRedR} offset:{red_off + 512*wv}")
    A(f"v_mov_b32 v{vS}, s{sT6}")
    A("s_waitcnt lgkmcnt(2)")
    A(f"v_pk_add_f32 {vr(vU,2)}, {vr(vU,2)}, {vr(vU+4,2)}\nv_pk_add_f32 {vr(vU+2,2)}, {vr(vU+2,2)}, {vr(vU+6,2)}")
    A("s_waitcnt lgkmcnt(0)")
    A(f"v_pk_add_f32 {vr(vU+8,2)}, {vr(vU+8,2)}, {vr(vU+12,2)}\nv_pk_add_f32 {vr(vU+10,2)}, {vr(vU+10,2)}, {vr(vU+14,2)}")
    A(f"v_pk_add_f32 {vr(vU,2)}, {vr(vU,2)}, {vr(vU+8,2)}\nv_pk_add_f32 {vr(vU+2,2)}, {vr(vU+2,2)}, {vr(vU+10,2)}")
    for r in range(4): A(f"v_add_u32 v{vU+r}, 32, v{vU+r}")
    for r in range(4): A(f"v_bfi_b32 v{vU+r}, s{sC63}, v{vS}, v{vU+r}")
    setexec(0xff)
    issue(tag, f"buffer_store_dwordx4 {vr(vU,4)}, v{pub_v}, {srd(sWS)}, s{sT3} offen sc1")
    fullexec()
proj(LWQ, 0,
     f"s_lshr_b32 s{sT3}, s{sx8}, 1\ns_lshl_b32 s{sT3}, s{sT3}, 15\ns_and_b32 s{sT}, s{sS}, 3\ns_lshl_b32 s{sT}, s{sT}, 12\ns_add_u32 s{sT3}, s{sT3}, s{sT}\n"
     f"s_bfe_u32 s{sT}, s{sS}, {2 | (4 << 16):#x}\ns_lshl_b32 s{sT}, s{sT}, 8\ns_add_u32 s{sT3}, s{sT3}, s{sT}\ns_add_u32 s{sT3}, s{sT3}, {P1:#x}",
     vPub, "S1")
stamp()
A(f"s_lshl_b32 s{sT}, s{sS}, 4\ns_and_b32 s{sT2}, s{sT}, 2047\ns_lshl_b32 s{sT3}, s{sS1}, 5")
issue("SM", f"buffer_load_dwordx2 {vr(vSm,2)}, v{vOo}, {srd(sX)}, s{sT} offen")
issue("SM", f"buffer_load_dwordx2 {vr(vSm+2,2)}, v{vOo}, {srd(sB2)}, s{sT2} offen")
issue("SM", f"buffer_load_dwordx2 {vr(vSm+4,2)}, v{vB1o}, {srd(sB1)}, s{sT3} offen")
A("s_nop 1")
A(f"s_call_b64 s[{sRA}:{sRA+1}], L_ln")
for t in range(4): A(f"ds_write_b128 v{aXW}, {vr(vP+4*t,4)} offset:{4096 + 16*t}")
A(f"s_lshl_b32 s{sT}, s{sx8}, 14\ns_add_u32 s{sT}, s{sT}, {P1:#x}\ns_add_u32 s{sT2}, s{sT}, 4096\ns_add_u32 s{sT3}, s{sT}, 8192\ns_add_u32 s{sT4}, s{sT}, 12288")
if OPT["g1pos"] == 0: waitvm("K")
else: waitvm_n("V", OPT["g1pos"])
stamp()
def g1(tag):
    for k, so in enumerate((sT, sT2, sT3, sT4)):
        s = f"buffer_load_dwordx4 {vr(vG+4*k,4)}, v{vG1}, {srd(sWS)}, s{so} offen sc1"
        if tag: issue(tag, s)
        else: A(s)
g1("G1")
A(f"s_lshr_b32 s{sT5}, s{sS1}, 2\ns_lshl_b32 s{sT5}, s{sT5}, 7\ns_and_b32 s{sSpin}, s{sS1}, 3\ns_mul_i32 s{sSpin}, s{sSpin}, {256*7168}\ns_add_u32 s{sT5}, s{sT5}, s{sSpin}")
A(f"s_add_u32 m0, s{sLW}, {LW1}")
for t in range(8):
    if t: A(f"s_add_u32 m0, m0, 1024\ns_add_u32 s{sT5}, s{sT5}, {8*7168}")
    issue("W1", f"buffer_load_dwordx4 v{vW1off}, {srd(sW1)}, s{sT5} offen{NT} lds")
A(f"s_mov_b32 s{sSpin}, {OPT['spin']}")
waitvm("G1")
def chk6(base, n, lab_ok, lab_retry, reissue):
    A(f"{lab_retry}:")
    for r in range(n): A(f"v_xor_b32 v{base+r}, s{sT6}, v{base+r}")
    A(f"v_or3_b32 v{vS}, v{base}, v{base+1}, v{base+2}")
    r = 3
    while r + 1 < n:
        A(f"v_or3_b32 v{vS}, v{vS}, v{base+r}, v{base+r+1}"); r += 2
    if r < n: A(f"v_or_b32 v{vS}, v{vS}, v{base+r}")
    A(f"v_and_b32 v{vS}, 63, v{vS}\nv_cmp_ne_u32 vcc, 0, v{vS}\ns_cbranch_vccz {lab_ok}")
    A(f"s_add_u32 s{sRetry}, s{sRetry}, {reissue[1]}\ns_sub_u32 s{sSpin}, s{sSpin}, 1\ns_cbranch_scc1 L_end")
    reissue[0](None)
    A(f"s_waitcnt vmcnt(0)\ns_branch {lab_retry}")
    A(f"{lab_ok}:")
chk6(vG, 16, "L_g1ok", "L_g1chk", (g1, 1))
stamp()
ld_rows("WO", sWO, sS, aWO, range(4))
for r in (0, 2): A(f"v_pk_add_f32 {vr(vG+r,2)}, {vr(vG+r,2)}, {vr(vG+4+r,2)}\nv_pk_add_f32 {vr(vG+8+r,2)}, {vr(vG+8+r,2)}, {vr(vG+12+r,2)}")
for r in (0, 2): A(f"v_pk_add_f32 {vr(vG+r,2)}, {vr(vG+r,2)}, {vr(vG+8+r,2)}")
A(f"v_cvt_pk_bf16_f32 v{vG}, v{vG}, v{vG+1}\nv_cvt_pk_bf16_f32 v{vG+1}, v{vG+2}, v{vG+3}")
A(f"ds_write_b64 v{aQW}, {vr(vG,2)}")
for T in range(2):
    for s_ in range(4): A(f"ds_read_b128 {vr(vF+16*T+4*s_,4)}, v{aK+s_} offset:{4096*T}")
A("s_waitcnt lgkmcnt(8)\ns_barrier")
for s_ in range(4): A(f"ds_read_b128 {vr(vQ+4*s_,4)}, v{aQ} offset:{64*s_}")
for s_ in range(4):
    A(f"s_waitcnt lgkmcnt({3-s_})")
    for T in range(2):
        c = "0" if s_ == 0 else vr(vU+4*T, 4)
        A(f"v_mfma_f32_16x16x32_bf16 {vr(vU+4*T,4)}, {vr(vF+16*T+4*s_,4)}, {vr(vQ+4*s_,4)}, {c}")
A("s_nop 7")
for dt in range(8):
    A(f"ds_read_b64_tr_b16 {vr(vF+4*dt,2)}, v{aV+dt}\nds_read_b64_tr_b16 {vr(vF+4*dt+2,2)}, v{aV+dt} offset:4096")
for p in range(4): A(f"v_cvt_pk_bf16_f32 v{vU+8+p}, v{vU+2*p}, v{vU+2*p+1}")
for p in range(4): unpack(vU+2*p, vU+2*p+1, vU+8+p)
for r in range(8): A(f"v_mul_f32 v{vU+r}, 0x3db504f3, v{vU+r}")
for p in range(4): A(f"v_cvt_pk_bf16_f32 v{vU+8+p}, v{vU+2*p}, v{vU+2*p+1}")
for p in range(4): unpack(vU+2*p, vU+2*p+1, vU+8+p)
for r in range(8): A(f"v_mul_f32 v{vU+r}, 0x3fb8aa3b, v{vU+r}")
vM, vL = vS, vS+1
A(f"v_max3_f32 v{vM}, v{vU}, v{vU+1}, v{vU+2}\nv_max3_f32 v{vS+2}, v{vU+3}, v{vU+4}, v{vU+5}\nv_max3_f32 v{vM}, v{vM}, v{vU+6}, v{vU+7}\nv_max_f32 v{vM}, v{vM}, v{vS+2}")
allred(vM, "v_max_f32", ["p16", "p32"], vS+2)
for r in range(8): A(f"v_sub_f32 v{vU+r}, v{vU+r}, v{vM}")
for r in range(8): A(f"v_exp_f32 v{vU+r}, v{vU+r}")
for p in range(4): A(f"v_cvt_pk_bf16_f32 v{vU+8+p}, v{vU+2*p}, v{vU+2*p+1}")
A("s_waitcnt lgkmcnt(0)")
for dt in range(8):
    A(f"v_mfma_f32_16x16x32_bf16 {vr(vAcc+4*dt,4)}, {vr(vF+4*dt,4)}, {vr(vU+8,4)}, 0")
A(f"v_pk_add_f32 {vr(vU,2)}, {vr(vU,2)}, {vr(vU+2,2)}\nv_pk_add_f32 {vr(vU+4,2)}, {vr(vU+4,2)}, {vr(vU+6,2)}\nv_pk_add_f32 {vr(vU,2)}, {vr(vU,2)}, {vr(vU+4,2)}\nv_add_f32 v{vL}, v{vU}, v{vU+1}")
allred(vL, "v_add_f32", ["p16", "p32"], vS+2)
setexec(0x00ff00ff00ff00ff)
for dt in range(8): A(f"ds_write_b128 v{aOXW}, {vr(vAcc+4*dt,4)} offset:{64*dt}")
A(f"ds_write_b64 v{aMLW}, {vr(vM,2)}")
fullexec()
A("s_waitcnt lgkmcnt(0)\ns_barrier")
for wv in range(4): A(f"ds_read_b64 {vr(vU+16+2*wv,2)}, v{aMLR} offset:{64*wv}")
for wv in range(4): A(f"ds_read_b128 {vr(vU+4*wv,4)}, v{aOXR} offset:{OXW*wv}")
A(f"s_lshl_b32 s{sT}, s{sS}, 12\ns_add_u32 s{sT}, s{sT}, {P2:#x}")
A("s_waitcnt lgkmcnt(4)")
m = lambda wv: vU + 16 + 2*wv
A(f"v_max3_f32 v{vM}, v{m(0)}, v{m(1)}, v{m(2)}\nv_max_f32 v{vM}, v{vM}, v{m(3)}")
for wv in range(4): A(f"v_sub_f32 v{m(wv)}, v{m(wv)}, v{vM}")
for wv in range(4): A(f"v_exp_f32 v{m(wv)}, v{m(wv)}")
A(f"v_mul_f32 v{vL}, v{m(0)}, v{m(0)+1}")
for wv in range(1, 4): A(f"v_fmac_f32 v{vL}, v{m(wv)}, v{m(wv)+1}")
A(f"v_rcp_f32 v{vS+2}, v{vL}\nv_log_f32 v{vS+3}, v{vL}")
A("s_waitcnt lgkmcnt(0)")
for h in (0, 2): A(f"v_pk_mul_f32 {vr(vU+h,2)}, {vr(vU+h,2)}, {vr(m(0),2)} op_sel_hi:[1,0]")
for wv in range(1, 4):
    for h in (0, 2): A(f"v_pk_fma_f32 {vr(vU+h,2)}, {vr(vU+4*wv+h,2)}, {vr(m(wv),2)}, {vr(vU+h,2)} op_sel_hi:[1,0,1]")
for h in (0, 2): A(f"v_pk_mul_f32 {vr(vU+h,2)}, {vr(vU+h,2)}, {vr(vS+2,2)} op_sel_hi:[1,0]")
A(f"v_cvt_pk_bf16_f32 v{vU}, v{vU}, v{vU+1}\nv_cvt_pk_bf16_f32 v{vU+1}, v{vU+2}, v{vU+3}\nv_add_f32 v{vU+2}, v{vM}, v{vS+3}\nv_mov_b32 v{vU+3}, s{sT32}")
issue("S2", f"buffer_store_dwordx4 {vr(vU,4)}, v{vG1}, {srd(sWS)}, s{sT} offen sc1")
stamp()
A(f"ds_read2_b64 {vr(vXB,4)}, v{aYN} offset0:0 offset1:4\nds_read2_b64 {vr(vXB+4,4)}, v{aYN} offset0:8 offset1:12")
A(f"v_subrev_u32 v{vPub}, {RED1}, v{aRedR}")
waitvm("W1")
stamp()
proj(LW1, 2048, f"s_lshl_b32 s{sT3}, s{sS1}, 9\ns_add_u32 s{sT3}, s{sT3}, {P4:#x}", vPub, "S4")
A(f"s_lshr_b32 s{sT}, s{sx8}, 1\ns_lshl_b32 s{sT}, s{sT}, 18\ns_and_b32 s{sT2}, s{sS}, 63\ns_lshl_b32 s{sT2}, s{sT2}, 6\ns_add_u32 s{sT}, s{sT}, s{sT2}\ns_add_u32 s{sT}, s{sT}, {P2:#x}")
sG2 = [sT, sT2, sT3, sT4]
A(f"s_add_u32 s{sT2}, s{sT}, 4096\ns_add_u32 s{sT3}, s{sT}, 8192\ns_add_u32 s{sT4}, s{sT}, 12288")
def g2(tag):
    for k, so in enumerate(sG2):
        s = f"buffer_load_dwordx4 {vr(vG+4*k,4)}, v{vG2}, {srd(sWS)}, s{so} offen sc1"
        if tag: issue(tag, s)
        else: A(s)
g2("G2")
def ld_rows2(tag, s_, sidx, vb, rhos):
    for rho in rhos:
        A(f"s_lshl_b32 s{sT5}, s{sidx}, 15")
        if rho: A(f"s_add_u32 s{sT5}, s{sT5}, {2048*rho}")
        for u in range(2):
            issue(tag, f"buffer_load_dwordx4 {ar(vb+8*rho+4*u,4)}, v{vRow}, {srd(s_)}, s{sT5} offen offset:{256*u}{NT}")
ld_rows2("W2", sW2, sS1, aW2, (0, 1))
sG4 = sKV
A(f"s_lshr_b32 s{sG4}, s{sS1}, 2\ns_lshl_b32 s{sG4}, s{sG4}, 11\ns_and_b32 s{sT5}, s{sS1}, 3\ns_lshl_b32 s{sT5}, s{sT5}, 6\ns_add_u32 s{sG4}, s{sG4}, s{sT5}\ns_add_u32 s{sG4}, s{sG4}, {P4:#x}")
waitvm("WO")
stamp()
def g4(tag):
    for k in range(4):
        s = f"buffer_load_dwordx4 {vr(vH+4*k,4)}, v{vG4o}, {srd(sWS)}, s{sG4} offen offset:{512*k} sc1"
        if tag: issue(tag, s)
        else: A(s)
g4("G4")
ld_rows2("W2", sW2, sS1, aW2, (2, 3))
waitvm("G2")
A("L_g2chk:")
for k in range(4): A(f"v_xor_b32 v{vG+4*k+3}, s{sT32}, v{vG+4*k+3}")
A(f"v_or3_b32 v{vS}, v{vG+3}, v{vG+7}, v{vG+11}\nv_or_b32 v{vS}, v{vS}, v{vG+15}\nv_cmp_ne_u32 vcc, 0, v{vS}\ns_cbranch_vccz L_g2ok")
A(f"s_add_u32 s{sRetry}, s{sRetry}, 0x100\ns_sub_u32 s{sSpin}, s{sSpin}, 1\ns_cbranch_scc1 L_end")
g2(None)
A("s_waitcnt vmcnt(0)\ns_branch L_g2chk\nL_g2ok:")
stamp()
ls = lambda k: vG + 4*k + 2
A(f"v_max3_f32 v{vM}, v{ls(0)}, v{ls(1)}, v{ls(2)}\nv_max_f32 v{vM}, v{vM}, v{ls(3)}")
allred(vM, "v_max_f32", ["q1", "q2", "hm"], None)
for k in range(4): A(f"v_sub_f32 v{ls(k)}, v{ls(k)}, v{vM}")
for k in range(4): A(f"v_exp_f32 v{ls(k)}, v{ls(k)}")
for k in range(4):
    unpack(vU+4*k, vU+4*k+1, vG+4*k); unpack(vU+4*k+2, vU+4*k+3, vG+4*k+1)
A(f"v_add_f32 v{vL}, v{ls(0)}, v{ls(1)}\nv_add_f32 v{vS+2}, v{ls(2)}, v{ls(3)}\nv_add_f32 v{vL}, v{vL}, v{vS+2}")
for h in (0, 2): A(f"v_pk_mul_f32 {vr(vU+h,2)}, {vr(vU+h,2)}, {vr(ls(0),2)} op_sel_hi:[1,0]")
for k in range(1, 4):
    for h in (0, 2): A(f"v_pk_fma_f32 {vr(vU+h,2)}, {vr(vU+4*k+h,2)}, {vr(ls(k),2)}, {vr(vU+h,2)} op_sel_hi:[1,0,1]")
allred([vL, vU, vU+1, vU+2, vU+3], "v_add_f32", ["q1", "q2", "hm"], None)
A(f"v_rcp_f32 v{vS+2}, v{vL}")
for h in (0, 2): A(f"v_pk_mul_f32 {vr(vU+h,2)}, {vr(vU+h,2)}, {vr(vS+2,2)} op_sel_hi:[1,0]")
def aprep(dst, src):
    for rho in range(4): A(f"v_cvt_pk_bf16_f32 v{src+rho}, v{src+rho}, v{src+rho}")
    for rho in range(4):
        for r in range(4): A(f"v_and_b32 v{dst+4*rho+r}, v{src+rho}, v{vMask+r}")
aprep(vAo, vU)
for rho in range(4):
    for u in range(2):
        c = "0" if rho == 0 else vr(vOut+4*u, 4)
        A(f"v_mfma_f32_16x16x32_bf16 {vr(vOut+4*u,4)}, {vr(vAo+4*rho,4)}, {ar(aWO+8*rho+4*u,4)}, {c}")
waitvm("G4")
chk6(vH, 16, "L_g4ok", "L_g4chk", (g4, 0x10000))
stamp()
for r in (0, 2): A(f"v_pk_add_f32 {vr(vH+r,2)}, {vr(vH+r,2)}, {vr(vH+4+r,2)}\nv_pk_add_f32 {vr(vH+8+r,2)}, {vr(vH+8+r,2)}, {vr(vH+12+r,2)}")
for r in (0, 2): A(f"v_pk_add_f32 {vr(vH+r,2)}, {vr(vH+r,2)}, {vr(vH+8+r,2)}")
A(f"v_cvt_pk_bf16_f32 v{vH+4}, v{vH}, v{vH+1}\nv_cvt_pk_bf16_f32 v{vH+5}, v{vH+2}, v{vH+3}")
unpack(vH, vH+1, vH+4); unpack(vH+2, vH+3, vH+5)
unpack(vH+8, vH+9, vSm+4); unpack(vH+10, vH+11, vSm+5)
for r in (0, 2): A(f"v_pk_add_f32 {vr(vH+r,2)}, {vr(vH+r,2)}, {vr(vH+8+r,2)}")
A(f"v_cvt_pk_bf16_f32 v{vH+4}, v{vH}, v{vH+1}\nv_cvt_pk_bf16_f32 v{vH+5}, v{vH+2}, v{vH+3}")
unpack(vH, vH+1, vH+4); unpack(vH+2, vH+3, vH+5)
for r in range(4): A(f"v_mul_f32 v{vH+4+r}, v{vH+r}, v{vH+r}")
for r in range(4): A(f"v_mul_f32 v{vH+4+r}, 0xbdd2d3e8, v{vH+4+r}")
for r in range(4): A(f"v_add_f32 v{vH+4+r}, 0xc0135761, v{vH+4+r}")
for r in range(4): A(f"v_mul_f32 v{vH+4+r}, v{vH+r}, v{vH+4+r}")
for r in range(4): A(f"v_exp_f32 v{vH+4+r}, v{vH+4+r}")
for r in range(4): A(f"v_add_f32 v{vH+4+r}, 1.0, v{vH+4+r}")
for r in range(4): A(f"v_rcp_f32 v{vH+4+r}, v{vH+4+r}")
for r in range(4): A(f"v_mul_f32 v{vH+r}, v{vH+r}, v{vH+4+r}")
aprep(vAh, vH)
A(f"s_lshl_b32 s{sT}, s{sS}, 13\ns_add_u32 s{sT}, s{sT}, {P3:#x}\nv_mov_b32 v{vS}, s{sT6}")
for rho in range(4):
    waitvm_n("W2", 2*rho + 2)
    for u in range(2):
        A(f"v_mfma_f32_16x16x32_bf16 {vr(vOut+4*u,4)}, {vr(vAh+4*rho,4)}, {ar(aW2+8*rho+4*u,4)}, {vr(vOut+4*u,4)}")
stamp()
for u in range(2):
    for r in range(4): A(f"v_bfi_b32 v{vOut+4*u+r}, s{sC63}, v{vS}, v{vOut+4*u+r}")
    issue("S3", f"buffer_store_dwordx4 {vr(vOut+4*u,4)}, v{vP3}, {srd(sWS)}, s{sT} offen offset:{512*u} sc1")
A(f"s_lshl_b32 s{sT}, s{sS}, 5\ns_add_u32 s{sT}, s{sT}, {P3:#x}\ns_add_u32 s{sT2}, s{sT}, {32*8192}")
def g3(tag):
    for k, so in enumerate((sT, sT2)):
        A(f"buffer_load_dwordx4 {vr(vG+4*k,4)}, v{vG3}, {srd(sWS)}, s{so} offen sc1")
g3(None)
unpack(vH, vH+1, vSm); unpack(vH+2, vH+3, vSm+1); unpack(vH+4, vH+5, vSm+2); unpack(vH+6, vH+7, vSm+3)
for r in (0, 2): A(f"v_pk_add_f32 {vr(vH+r,2)}, {vr(vH+r,2)}, {vr(vH+4+r,2)}")
A("s_waitcnt vmcnt(0)")
chk6(vG, 8, "L_g3ok", "L_g3chk", (g3, 0x1000000))
stamp()
for r in (0, 2): A(f"v_pk_add_f32 {vr(vG+r,2)}, {vr(vG+r,2)}, {vr(vG+4+r,2)}")
allred([vG, vG+1, vG+2, vG+3], "v_add_f32", ["r2", "r4", "r8", "p16", "p32"], [vG+4, vG+5, vG+6, vG+7])
setexec(3)
A(f"ds_write_b128 v{aFin}, {vr(vG,4)}")
A("s_waitcnt lgkmcnt(0)\ns_barrier")
A(f"s_cmp_lg_u32 s{sWave}, 0\ns_cbranch_scc1 L_done")
for wv in range(4): A(f"ds_read_b128 {vr(vU+4*wv,4)}, v{aFin} offset:{32*wv}")
A(f"s_lshl_b32 s{sT}, s{sS}, 4")
for wv in range(4):
    A(f"s_waitcnt lgkmcnt({3-wv})")
    for r in (0, 2): A(f"v_pk_add_f32 {vr(vH+r,2)}, {vr(vH+r,2)}, {vr(vU+4*wv+r,2)}")
A(f"v_cvt_pk_bf16_f32 v{vH}, v{vH}, v{vH+1}\nv_cvt_pk_bf16_f32 v{vH+1}, v{vH+2}, v{vH+3}")
A(f"buffer_store_dwordx2 {vr(vH,2)}, v{vOo}, {srd(sOUT)}, s{sT} offen")
A(f"s_cmp_lg_u32 s2, 0\ns_cbranch_scc1 L_done")
A(f"v_mov_b32 v{vS}, s{sT32}\nv_mov_b32 v{vS+1}, 0")
setexec(1)
A(f"buffer_store_dword v{vS}, v{vS+1}, {srd(sWS)}, 0 offen sc1")
A("L_done:")
if OPT.get("padto"):
    A(f"L_pad:\ns_memrealtime s[98:99]\ns_waitcnt lgkmcnt(0)\ns_sub_u32 s98, s98, s100\ns_cmp_lt_u32 s98, {OPT['padto']}\ns_cbranch_scc1 L_pad")
if "probe" in OPT:
    stamp()
    k = OPT["probe"]
    A(f"s_waitcnt lgkmcnt(0)\ns_sub_u32 s{sT}, s{STB+2*k}, s{STB}\ns_lshl_b32 s{sT}, s{sT}, 2\ns_add_u32 s{sT}, s{sT}, 2000")
    A(f"L_pad:\ns_memrealtime s[{sT2+1}:{sT2+2}]\ns_waitcnt lgkmcnt(0)\ns_sub_u32 s{sT2+1}, s{sT2+1}, s{STB}\ns_cmp_lt_u32 s{sT2+1}, s{sT}\ns_cbranch_scc1 L_pad")
elif OPT["stamps"]:
    stamp()
    n = nst[0]
    A(f"s_cmp_lg_u32 s{sWave}, {OPT.get('swave', 0)}\ns_cbranch_scc1 L_end")
    setexec(1)
    A(f"s_waitcnt lgkmcnt(0)\ns_lshl_b32 s{sT}, s2, 8\ns_add_u32 s{sT}, s{sT}, 0x8000000\ns_mov_b32 s{sWS+2}, 0x10000000\nv_mov_b32 v{vS+2}, 0")
    for i in range(n):
        A(f"v_mov_b32 v{vS}, s{STB+2*i}\nv_mov_b32 v{vS+1}, s{STB+2*i+1}\nbuffer_store_dwordx2 {vr(vS,2)}, v{vS+2}, {srd(sWS)}, s{sT} offen offset:{8*i}\ns_nop 1")
    A(f"v_mov_b32 v{vS}, s{sRetry}\nv_mov_b32 v{vS+1}, 0\nbuffer_store_dwordx2 {vr(vS,2)}, v{vS+2}, {srd(sWS)}, s{sT} offen offset:{8*31}")
    print("nstamps", n, file=sys.stderr)
A("L_end:\ns_endpgm")
A("L_ln:")
for i in range(16): unpack(vU+2*i, vU+2*i+1, vP+i)
a0, a1 = vS, vS+2
A(f"v_pk_add_f32 {vr(a0,2)}, {vr(vU,2)}, {vr(vU+2,2)}\nv_pk_add_f32 {vr(a1,2)}, {vr(vU+4,2)}, {vr(vU+6,2)}")
for i in range(4, 16, 2): A(f"v_pk_add_f32 {vr(a0,2)}, {vr(a0,2)}, {vr(vU+2*i,2)}\nv_pk_add_f32 {vr(a1,2)}, {vr(a1,2)}, {vr(vU+2*i+2,2)}")
A(f"v_pk_add_f32 {vr(a0,2)}, {vr(a0,2)}, {vr(a1,2)}\nv_add_f32 v{a0}, v{a0}, v{a0+1}")
allred(a0, "v_add_f32", ["q1", "q2", "hm", "m", "p16"], a1)
mean = vS+6
A(f"v_mul_f32 v{mean}, 0x3a800000, v{a0}")
d0 = vS+4
for i in range(16):
    acc = a0 if i % 2 == 0 else a1
    dd = vXB + 2*(i % 4)
    A(f"v_pk_add_f32 {vr(dd,2)}, {vr(vU+2*i,2)}, {vr(mean,2)} op_sel_hi:[1,0] neg_lo:[0,1] neg_hi:[0,1]")
    if i < 2: A(f"v_pk_mul_f32 {vr(acc,2)}, {vr(dd,2)}, {vr(dd,2)}")
    else: A(f"v_pk_fma_f32 {vr(acc,2)}, {vr(dd,2)}, {vr(dd,2)}, {vr(acc,2)}")
A(f"v_pk_add_f32 {vr(a0,2)}, {vr(a0,2)}, {vr(a1,2)}\nv_add_f32 v{a0}, v{a0}, v{a0+1}")
allred(a0, "v_add_f32", ["q1", "q2", "hm", "m", "p16"], a1)
A(f"v_mul_f32 v{a0}, 0x3a800000, v{a0}\nv_cvt_pk_bf16_f32 v{a0}, v{a0}, v{mean}")
A(f"v_and_b32 v{mean}, s{sHI}, v{a0}\nv_lshlrev_b32 v{a0}, 16, v{a0}\nv_add_f32 v{a0}, 0x3727c5ac, v{a0}")
A(f"v_cvt_pk_bf16_f32 v{a0}, v{a0}, v{a0}\nv_lshlrev_b32 v{a0}, 16, v{a0}\nv_sqrt_f32 v{a0}, v{a0}")
A(f"v_cvt_pk_bf16_f32 v{a0}, v{a0}, v{a0}\nv_lshlrev_b32 v{a0}, 16, v{a0}\nv_rcp_f32 v{a0}, v{a0}")
for i in range(16): A(f"v_pk_add_f32 {vr(vU+2*i,2)}, {vr(vU+2*i,2)}, {vr(mean,2)} op_sel_hi:[1,0] neg_lo:[0,1] neg_hi:[0,1]")
for i in range(16): A(f"v_cvt_pk_bf16_f32 v{vP+i}, v{vU+2*i}, v{vU+2*i+1}")
for i in range(16): unpack(vU+2*i, vU+2*i+1, vP+i)
for i in range(16): A(f"v_pk_mul_f32 {vr(vU+2*i,2)}, {vr(vU+2*i,2)}, {vr(a0,2)} op_sel_hi:[1,0]")
for i in range(16): A(f"v_cvt_pk_bf16_f32 v{vP+i}, v{vU+2*i}, v{vU+2*i+1}")
A(f"s_setpc_b64 s[{sRA}:{sRA+1}]")

body, nadd = hz.pad("\n".join(L))
hdr = open(os.path.join(os.path.dirname(__file__), "header.txt")).read()
out = f"""{hdr}; @launch grid=(256,1,1) block=(256,1,1) lds={LDS_END}
.amdgcn_target "amdgcn-amd-amdhsa--gfx950"
.text
.globl {NAME}_kernel
.p2align 8
.type {NAME}_kernel,@function
{NAME}_kernel:
{body}
.section .rodata,"a"
.p2align 6
.amdhsa_kernel {NAME}_kernel
  .amdhsa_next_free_vgpr {NV}
  .amdhsa_next_free_sgpr 102
  .amdhsa_accum_offset {NARCH}
  .amdhsa_group_segment_fixed_size 0
  .amdhsa_kernarg_size 104
  .amdhsa_user_sgpr_count 2
  .amdhsa_user_sgpr_kernarg_segment_ptr 1
  .amdhsa_system_sgpr_workgroup_id_x 1
  .amdhsa_float_denorm_mode_32 3
.end_amdhsa_kernel
"""
open(sys.argv[1], "w").write(out)
print("NV", NV, "LDS", LDS_END, "nops added", nadd, file=sys.stderr)
```

```python
import sys, os
sys.path.insert(0, os.path.dirname(__file__))
import hz
NAME = "parallel_sum__sliding_block_cached__mixer_channel_mlp__decode"
OPT = dict(stamps=0, nt=1, spin=1 << 16, swave=0, Wq=36, Wk=20, Wv=20, W1=20, Wo=20, W2=20, g1=76, g2=168, g4=156)
STN = None
for a in sys.argv[2:]:
    k, v = a.split("=")
    if k == "st": STN = v.split(","); OPT["stamps"] = 1
    elif k == "W":
        for kk in ("Wk", "Wv", "W1", "Wo", "W2"): OPT[kk] = int(v)
    else: OPT[k] = int(v)
NT = " nt" if OPT["nt"] else ""
L = []
def A(s):
    for x in s.split("\n"): L.append("    " + x.strip() if not x.strip().endswith(":") else x.strip())
class Alloc:
    def __init__(s, start): s.n = start
    def __call__(s, cnt=1, al=1):
        s.n = (s.n + al - 1) // al * al
        r = s.n; s.n += cnt; return r
VA = Alloc(1)
def vr(r, n): return f"v[{r}:{r+n-1}]"
sX, sWQ, sK, sV, sW1, sWO, sW2 = range(8, 36, 4)
sB1, sB2, sOUT, sWS = sWQ, sK, sV, sW1
def srd(r): return f"s[{r}:{r+3}]"
(sx8, si32, sS, sCG2, sWave, sT, sT2, sT3, sT4, sT5, sT32, sT6, sHI, sSpin, sC63, sRetry, sW8, sW4, sNeed, sPB, sCnt, sM, sG, sAct) = range(36, 60)
sPub = sW8
sRA = 60; sMk = 62
STB = 68
nst = [0]; names = []
slots = {}
def stamp(name):
    if OPT["stamps"] and (STN is None or name in STN or name in ("start", "end")):
        i = nst[0]; nst[0] += 1
        slots[name] = (i, 0 if name == "start" else (len(STN) + 1 if name == "end" else STN.index(name) + 1))
        assert STB + 2*i + 1 <= 101
        A(f"s_memrealtime s[{STB+2*i}:{STB+2*i+1}]")
P1, P4, P2, P3, WSSZ = 0x10000, 0x40000, 0x100000, 0x200000, 0x400000
S0, S1, S2, S3, M = 0, 32768, 65536, 98304, 131072
XR, PX, XN, YN, QL = M, M + 4096, M + 8192, M + 9216, M + 10240
ML = QL + 2304; OL = ML + 256; HL = OL + 256; FLG = HL + 256
LDS_END = FLG + 64
LCO = 32
pX, pWQ, pK, pV, pW1, pWO, pW2, pEND = 0, 4, 36, 68, 100, 132, 164, 196

vLane, vG4, vN16, vJ, vTmp2, vTmp3 = [VA() for _ in range(6)]
aFL = VA(); aPW = VA()
aW = VA(4); aK = VA(4); aV = VA(2); aQ = VA(); aXB = VA(); aXW = VA(); aPj = VA(2)
vPub = VA(); vG1 = VA(); aQW = VA(); aPXW = VA(); aPXR = VA(); aMLW = VA(); aMLR = VA(); vS2o = VA()
vG2 = VA(); vP3 = VA(); vG3 = VA(); vOo = VA(); aOLW = VA(); aOLR = VA(); vSig = VA()
vP = VA(16, 4); vU = VA(32, 4); vS = VA(8, 4); vXB = VA(32, 4); vF = VA(32, 4); vAcc = VA(32, 4)
vQ = VA(16, 4); vG = VA(16, 4); vSm = VA(6, 2); vFl = VA(4, 2)
vKF = vXB
NV = (VA.n + 7) // 8 * 8
assert NV <= 256, NV

def allred(reg, op, steps, tmp):
    regs_ = reg if isinstance(reg, list) else [reg]
    tmps = tmp if isinstance(tmp, list) else [tmp]
    dpp = dict(q1="quad_perm:[1,0,3,2]", q2="quad_perm:[2,3,0,1]", hm="row_half_mirror", m="row_mirror",
               r2="row_ror:2", r4="row_ror:4", r8="row_ror:8")
    for st in steps:
        if st in dpp:
            for r in regs_: A(f"{op}_dpp v{r}, v{r}, v{r} {dpp[st]} row_mask:0xf bank_mask:0xf")
        else:
            ins = "v_permlane16_swap_b32" if st == "p16" else "v_permlane32_swap_b32"
            for r, t in zip(regs_, tmps): A(f"v_mov_b32 v{t}, v{r}")
            for r, t in zip(regs_, tmps): A(f"{ins} v{r}, v{t}")
            for r, t in zip(regs_, tmps): A(f"{op} v{r}, v{r}, v{t}")
def unpack(dlo, dhi, src):
    A(f"v_lshlrev_b32 v{dlo}, 16, v{src}\nv_and_b32 v{dhi}, s{sHI}, v{src}")
def setexec(m):
    lo, hi = m & 0xffffffff, (m >> 32) & 0xffffffff
    A(f"s_mov_b32 exec_lo, {lo:#x}\ns_mov_b32 exec_hi, {hi:#x}")
def fullexec(): A("s_mov_b64 exec, -1")
lab = [0]
SLP = f"s_sleep {OPT['slp']}\n" if OPT.get("slp") else ""
NOG = OPT.get("abl") == 2
def newlab(p):
    lab[0] += 1; return f"L_{p}{lab[0]}"
def waitLC(base, sreg=None):
    l = newlab("lc")
    if sreg is None: A(f"s_mov_b32 s{sNeed}, {base}")
    else: A(f"s_add_u32 s{sNeed}, s{sreg}, {base}")
    A(f"{l}:\n{SLP}ds_read_b32 v{vFl}, v{aFL} offset:{LCO}\ns_waitcnt lgkmcnt(0)\nv_cmp_le_i32 vcc, s{sNeed}, v{vFl}\ns_cbranch_vccz {l}")
def signal(stage):
    A(f"v_mov_b32 v{vFl}, {stage}\nds_write_b32 v{aPW}, v{vFl}")
def waitPW(stage):
    l = newlab("pw")
    A(f"{l}:\n{SLP}ds_read_b128 {vr(vFl,4)}, v{aFL}\ns_waitcnt lgkmcnt(0)\nv_min3_i32 v{vFl}, v{vFl}, v{vFl+1}, v{vFl+2}\nv_min_i32 v{vFl}, v{vFl}, v{vFl+3}\nv_cmp_le_i32 vcc, {stage}, v{vFl}\ns_cbranch_vccz {l}")
def waitMW(stage):
    l = newlab("mw")
    A(f"{l}:\n{SLP}ds_read_b64 {vr(vFl,2)}, v{aFL} offset:16\ns_waitcnt lgkmcnt(0)\nv_min_i32 v{vFl}, v{vFl}, v{vFl+1}\nv_cmp_le_i32 vcc, {stage}, v{vFl}\ns_cbranch_vccz {l}")
def LB(stage): signal(stage); waitPW(stage)
def dump_stamps(ws_loaded, pred, retry_slot):
    setexec(1)
    if not ws_loaded: A("s_load_dwordx2 s[4:5], s[0:1], 96")
    else: A(f"s_mov_b32 s4, s{sWS}\ns_mov_b32 s5, s{sWS+1}")
    A(f"s_waitcnt lgkmcnt(0)\ns_lshl_b32 s{sT}, s2, 8\ns_add_u32 s4, s4, s{sT}\ns_addc_u32 s5, s5, 0\ns_add_u32 s4, s4, 0x8000000\ns_addc_u32 s5, s5, 0\nv_mov_b32 v{vS+2}, 0")
    for nm, (i, sl) in slots.items():
        if pred(nm):
            A(f"v_mov_b32 v{vS}, s{STB+2*i}\nv_mov_b32 v{vS+1}, s{STB+2*i+1}\nglobal_store_dwordx2 v{vS+2}, {vr(vS,2)}, s[4:5] offset:{8*sl}\ns_nop 1")
    if retry_slot is not None:
        A(f"v_mov_b32 v{vS}, s{sRetry}\nglobal_store_dword v{vS+2}, v{vS}, s[4:5] offset:{retry_slot}")
DUMP = OPT["stamps"] and "probe" not in OPT

stamp("start")
A("s_cmp_ge_u32 s2, 256\ns_cbranch_scc1 L_end")
A(f"s_load_dwordx2 s[{sX}:{sX+1}], s[0:1], 0")
A(f"v_lshrrev_b32 v{vJ}, 6, v0\nv_and_b32 v{vLane}, 63, v0")
A(f"v_readfirstlane_b32 s{sWave}, v{vJ}")
A(f"s_and_b32 s{sx8}, s2, 7\ns_lshr_b32 s{si32}, s2, 3")
A(f"v_lshrrev_b32 v{vG4}, 4, v{vLane}\nv_mov_b32 v{aFL}, {FLG}")
A(f"s_mov_b32 s{sX+2}, 4096\ns_mov_b32 s{sX+3}, 0x20000")
A(f"s_cmp_lg_u32 s{sWave}, 6\ns_cbranch_scc1 L_notloader")
A("s_setprio 3")
for r, off in ((sWQ, 24), (sK, 8), (sV, 16), (sW1, 48), (sWO, 32), (sW2, 64)):
    A(f"s_load_dwordx2 s[{r}:{r+1}], s[0:1], {off}")
lX, lT8, lT7, lT2, lK, lV, lC = vP, vP+1, vP+2, vP+3, vP+4, vP+8, vP+10
A(f"v_lshlrev_b32 v{lX}, 4, v{vLane}")
A(f"v_lshrrev_b32 v{vTmp2}, 3, v{vLane}\nv_and_b32 v{vTmp3}, 7, v{vLane}\nv_lshlrev_b32 v{vS}, 1, v{vG4}\nv_xor_b32 v{vTmp3}, v{vTmp3}, v{vS}\nv_lshlrev_b32 v{vTmp3}, 4, v{vTmp3}")
A(f"v_lshl_add_u32 v{lT8}, v{vTmp2}, 13, v{vTmp3}")
A(f"s_mov_b32 s{sWQ+2}, {1<<23:#x}\ns_mov_b32 s{sWQ+3}, 0x20000")
def qidx(cg, ks, tmp):
    m = OPT.get("qmap", 0)
    if m == 0:
        A(f"s_lshr_b32 s{cg}, s{sx8}, 2\ns_lshl_b32 s{cg}, s{cg}, 5\ns_add_u32 s{cg}, s{cg}, s{si32}\ns_and_b32 s{ks}, s{sx8}, 3")
    elif m == 1:
        A(f"s_lshl_b32 s{cg}, s{sx8}, 3\ns_lshr_b32 s{tmp}, s{si32}, 2\ns_add_u32 s{cg}, s{cg}, s{tmp}\ns_and_b32 s{ks}, s{si32}, 3")
    else:
        A(f"s_lshr_b32 s{cg}, s{sx8}, 1\ns_lshl_b32 s{cg}, s{cg}, 4\ns_and_b32 s{tmp}, s{si32}, 15\ns_add_u32 s{cg}, s{cg}, s{tmp}\ns_and_b32 s{ks}, s{sx8}, 1\ns_lshl_b32 s{ks}, s{ks}, 1\ns_lshr_b32 s{tmp}, s{si32}, 4\ns_add_u32 s{ks}, s{ks}, s{tmp}")
def midx(cg, ks, tmp):
    if OPT.get("mmap", 0) == 0:
        A(f"s_lshr_b32 s{tmp}, s{sx8}, 2\ns_mul_i32 s{cg}, s{tmp}, 28\ns_lshl_b32 s{tmp}, s{tmp}, 2\ns_add_u32 s{tmp}, s{tmp}, 28\ns_cmp_lt_u32 s{si32}, 28\ns_cselect_b32 s{cg}, s{cg}, s{tmp}\ns_add_u32 s{cg}, s{cg}, s{si32}\ns_and_b32 s{ks}, s{sx8}, 3")
    else:
        A(f"s_mul_i32 s{cg}, s{sx8}, 7\ns_lshr_b32 s{tmp}, s{si32}, 2\ns_add_u32 s{cg}, s{cg}, s{tmp}\ns_add_u32 s{tmp}, s{sx8}, 56\ns_cmp_lt_u32 s{si32}, 28\ns_cselect_b32 s{cg}, s{cg}, s{tmp}\ns_and_b32 s{ks}, s{si32}, 3")
qidx(sG, sT3, sT)
A(f"s_lshl_b32 s{sG}, s{sG}, 7\ns_lshl_b32 s{sT}, s{sT3}, 21\ns_add_u32 s{sG}, s{sG}, s{sT}")
Wq = OPT["Wq"]
A(f"s_mov_b32 m0, {XR}\ns_mov_b32 s{sPub}, 0\nv_mov_b32 v{lC}, 0\ns_mov_b32 s{sRetry}, 0")
A(f"ds_write_b32 v{aFL}, v{lC} offset:{LCO}")
A("s_waitcnt lgkmcnt(0)")
stamp("l_karg")
for q in range(4): A(f"buffer_load_dwordx4 v{lX}, {srd(sX)}, 0 offen offset:{1024*q} lds")
curW = [Wq]
def pub():
    A(f"s_add_u32 s{sCnt}, s{sCnt}, 4\ns_max_i32 s{sPub}, s{sPub}, s{sCnt}\nv_mov_b32 v{lC}, s{sPub}\nds_write_b32 v{aFL}, v{lC} offset:{LCO}")
def trans(Wn):
    Wo = curW[0]
    assert Wn % 4 == 0
    if Wn < Wo:
        for k in range(Wo - 4, Wn - 1, -4):
            A(f"s_waitcnt vmcnt({k})"); pub()
    elif Wn > Wo: A(f"s_sub_u32 s{sCnt}, s{sCnt}, {Wn - Wo}")
    curW[0] = Wn
def tile_group(s_, voff, step):
    for q in range(4):
        A(f"s_waitcnt vmcnt({curW[0]-1})")
        A(f"buffer_load_dwordx4 v{voff}, {srd(s_)}, s{sG} offen{NT} lds")
        A(f"s_add_u32 m0, m0, 1024\ns_add_u32 s{sG}, s{sG}, {step}")
    pub()
def loop(n_end, body):
    l = newlab("ld")
    A(f"{l}:"); body()
    A(f"s_cmp_lg_u32 s{sCnt}, {(n_end - curW[0]) & 0xffffffff}\ns_cbranch_scc1 {l}")
npre = min(Wq, 36) // 4 - 1
A(f"s_mov_b32 m0, {S0}\ns_mov_b32 s{sCnt}, {npre}")
A("L_pre:")
for q in range(4):
    A(f"buffer_load_dwordx4 v{lT8}, {srd(sWQ)}, s{sG} offen{NT} lds")
    A(f"s_add_u32 m0, m0, 1024\ns_add_u32 s{sG}, s{sG}, 65536")
A(f"s_sub_u32 s{sCnt}, s{sCnt}, 1\ns_cmp_lg_u32 s{sCnt}, 0\ns_cbranch_scc1 L_pre")
A(f"s_mov_b32 s{sCnt}, {(4 + 4*npre - Wq) & 0xffffffff}")
A("s_barrier")
A(f"v_and_b32 v{vN16}, 15, v{vLane}")
A(f"v_mul_u32_u24 v{lT7}, 7168, v{vTmp2}\nv_add_u32 v{lT7}, v{lT7}, v{vTmp3}\nv_lshl_add_u32 v{lT2}, v{vTmp2}, 11, v{vTmp3}")
A(f"v_lshlrev_b32 v{vTmp2}, 8, v{vG4}\nv_xor_b32 v{vTmp3}, v{vN16}, v{vG4}\nv_lshl_add_u32 v{lK}, v{vTmp3}, 4, v{vTmp2}")
for q in (1, 2, 3): A(f"v_xor_b32 v{lK+q}, {64*q}, v{lK}")
A(f"v_xor_b32 v{vTmp3}, v{vN16}, v{vS}\nv_lshl_add_u32 v{lV}, v{vTmp3}, 4, v{vTmp2}\nv_xor_b32 v{lV+1}, 128, v{lV}")
for r, sz in ((sK, 1 << 25), (sV, 1 << 25), (sWO, 1 << 23)): A(f"s_mov_b32 s{r+2}, {sz:#x}")
for r in (sK, sV, sW1, sWO, sW2): A(f"s_mov_b32 s{r+3}, 0x20000")
A(f"s_cmp_lt_u32 s{si32}, 28\ns_cselect_b32 s{sW1+2}, {1024*7168}, 0\ns_cselect_b32 s{sW2+2}, {3584*2048}, 0")
sKV = sT4
A(f"s_and_b32 s{sKV}, s{sx8}, 1\ns_lshl_b32 s{sKV}, s{sKV}, 2\ns_lshr_b32 s{sT}, s{sx8}, 1\ns_add_u32 s{sKV}, s{sKV}, s{sT}\ns_lshl_b32 s{sKV}, s{sKV}, 22")
if OPT.get("kvtest") == 1: A(f"s_xor_b32 s{sKV}, s{sKV}, {3 << 22}")
if OPT.get("kvtest") == 2: A(f"s_lshr_b32 s{sKV}, s{si32}, 2\ns_lshl_b32 s{sKV}, s{sKV}, 22\ns_and_b32 s{sT}, s{si32}, 3\ns_lshl_b32 s{sT}, s{sT}, 3\ns_add_u32 s{sT}, s{sT}, s{sx8}\ns_lshl_b32 s{sT}, s{sT}, 15")
else: A(f"s_lshl_b32 s{sT}, s{si32}, 15")
A(f"s_add_u32 s{sKV}, s{sKV}, s{sT}\ns_add_u32 s{sKV}, s{sKV}, 0x300000")
midx(sT5, sT3, sT)
A(f"s_lshl_b32 s{sT5}, s{sT5}, 7\ns_mul_i32 s{sT}, s{sT3}, {256*7168}\ns_add_u32 s{sT5}, s{sT5}, s{sT}")
A(f"s_lshl_b32 s{sS}, s{sx8}, 5\ns_add_u32 s{sS}, s{sS}, s{si32}")
A(f"s_mul_i32 s{sCG2}, s{sx8}, 28\ns_add_u32 s{sCG2}, s{sCG2}, s{si32}\ns_lshr_b32 s{sCG2}, s{sCG2}, 2")
if npre < 8: loop(pK, lambda: tile_group(sWQ, lT8, 65536))
def kv_group(s_, voff, nreg):
    for q in range(4):
        A(f"s_waitcnt vmcnt({curW[0]-1})")
        A(f"buffer_load_dwordx4 v{voff + q % nreg}, {srd(s_)}, s{sG} offen offset:{1024*q}{NT} lds")
    A(f"s_add_u32 m0, m0, 4096\ns_add_u32 s{sG}, s{sG}, 4096")
    pub()
trans(OPT["Wk"])
A(f"s_mov_b32 s{sG}, s{sKV}")
loop(pV, lambda: kv_group(sK, lK, 4))
stamp("l_K")
trans(OPT["Wv"])
A(f"s_mov_b32 s{sG}, s{sKV}")
loop(pW1, lambda: kv_group(sV, lV, 2))
stamp("l_V")
trans(OPT["W1"])
A(f"s_mov_b32 s{sG}, s{sT5}")
loop(pWO, lambda: tile_group(sW1, lT7, 8*7168))
stamp("l_W1")
def fin_group(s_):
    A(f"s_mov_b32 m0, s{sM}\ns_mov_b32 s{sG}, s{sT}")
    for q in range(4):
        A(f"s_waitcnt vmcnt({curW[0]-1})")
        A(f"buffer_load_dwordx4 v{lT2}, {srd(s_)}, s{sG} offen{NT} lds")
        if q < 3: A(f"s_add_u32 m0, m0, 1024\ns_add_u32 s{sG}, s{sG}, 16384")
    A(f"s_add_u32 s{sM}, s{sM}, 8192\ns_add_u32 s{sT}, s{sT}, 128")
    pub()
def fin(s_, slot, p0, basecode):
    A(basecode)
    A(f"s_mov_b32 s{sM}, {slot}")
    loop(p0 + 16, lambda: fin_group(s_))
    A(f"s_mov_b32 s{sM}, {slot + 4096}\ns_add_u32 s{sT}, s{sT}, {65536 - 512}")
    loop(p0 + 32, lambda: fin_group(s_))
trans(OPT["Wo"])
waitPW(1)
A(f"s_and_b32 s{sT2}, s{si32}, 3\ns_lshl_b32 s{sT2}, s{sT2}, 9")
fin(sWO, S0, pWO, f"s_lshr_b32 s{sT}, s{sS}, 2\ns_lshl_b32 s{sT}, s{sT}, 17\ns_add_u32 s{sT}, s{sT}, s{sT2}")
stamp("l_WO")
trans(OPT["W2"])
waitPW(2)
fin(sW2, S1, pW2, f"s_lshl_b32 s{sT}, s{sCG2}, 17\ns_add_u32 s{sT}, s{sT}, s{sT2}")
stamp("l_W2")
trans(0)
stamp("l_end")
if DUMP: dump_stamps(False, lambda n: n.startswith("l_"), None)
A("s_endpgm")
nst[0] = 1 if OPT["stamps"] else 0
A("L_notloader:")
for r, off in ((sWS, 96), (sB1, 56), (sB2, 72), (sOUT, 80)):
    A(f"s_load_dwordx2 s[{r}:{r+1}], s[0:1], {off}")
j = vJ
A(f"v_lshl_add_u32 v{aPW}, v{j}, 2, v{aFL}")
A(f"s_cmp_lt_u32 s{sWave}, 2\ns_cselect_b32 s{sT}, 1, 0\nv_mov_b32 v{vFl}, s{sT}\nds_write_b32 v{aPW}, v{vFl}")
A(f"v_and_b32 v{vN16}, 15, v{vLane}")
A(f"s_cmp_lt_u32 s{si32}, 28\ns_cselect_b32 s{sAct}, 1, 0\ns_cselect_b32 s{sB1+2}, 7168, 0")
A(f"s_mov_b32 s{sB2+2}, 2048\ns_mov_b32 s{sOUT+2}, 4096\ns_mov_b32 s{sWS+2}, {WSSZ:#x}")
for r in (sB1, sB2, sOUT, sWS): A(f"s_mov_b32 s{r+3}, 0x20000")
A(f"s_mov_b32 s{sHI}, 0xffff0000\ns_mov_b32 s{sC63}, 63\ns_mov_b32 s{sRetry}, 0\ns_mov_b32 s{sSpin}, {OPT['spin']}")
A(f"s_lshl_b32 s{sS}, s{sx8}, 5\ns_add_u32 s{sS}, s{sS}, s{si32}")
A("s_waitcnt lgkmcnt(0)\ns_barrier")
if OPT.get("abl") == 1:
    A(f"v_mov_b32 v{vFl}, 100\nds_write_b32 v{aPW}, v{vFl}\ns_cmp_eq_u32 s{sWave}, 0\ns_cbranch_scc1 L_done\ns_endpgm")
A(f"s_load_dword s{sT32}, s[{sWS}:{sWS+1}], 0")
r_, c4 = vTmp2, vTmp3
t0, t1, t2 = vS, vS+1, vS+2
A(f"v_lshrrev_b32 v{r_}, 2, v{vN16}\nv_and_b32 v{c4}, 3, v{vN16}\nv_lshlrev_b32 v{c4}, 3, v{c4}")
A(f"v_lshl_add_u32 v{r_}, v{vG4}, 2, v{r_}")
A(f"v_bfe_u32 v{t1}, v{r_}, 1, 2")
A(f"v_lshl_add_u32 v{aW}, v{r_}, 7, v{c4}\nv_lshl_add_u32 v{aW}, v{t1}, 5, v{aW}")
A(f"s_cmp_lt_u32 s{sWave}, 2\ns_cbranch_scc1 L_attn")
A(f"s_and_b32 s{sT}, s{sWave}, 1\ns_lshl_b32 s{sT}, s{sT}, 6\nv_xor_b32 v{aPj}, s{sT}, v{aW}")
A(f"s_cmp_lt_u32 s{sWave}, 4\ns_cselect_b32 s{sT2}, {S0}, {S3}\ns_cselect_b32 s{sPB}, {pWQ}, {pW1}\ns_cselect_b32 s{sT3}, 0, {YN-XN}\ns_cselect_b32 s{sT4}, 1, 0\ns_cselect_b32 s{sT5}, 14, 8")
A(f"s_add_u32 s{sT3}, s{sT3}, {XN}")
A(f"v_add_u32 v{aPj}, s{sT2}, v{aPj}\nv_xor_b32 v{aPj+1}, 32, v{aPj}\nv_mov_b32 v{vSig}, s{sT4}")
A(f"v_and_b32 v{t0}, 1, v{vN16}\nv_lshlrev_b32 v{t1}, 3, v{vG4}\nv_lshl_add_u32 v{aXB}, v{t0}, 9, v{t1}\nv_add_u32 v{aXB}, s{sT3}, v{aXB}")
A(f"v_lshlrev_b32 v{vPub}, s{sT5}, v{t0}\nv_lshl_add_u32 v{vPub}, v{t1}, 1, v{vPub}\nv_bfe_u32 v{t0}, v{vN16}, 1, 1\nv_lshl_add_u32 v{vPub}, v{t0}, 6, v{vPub}\ns_lshl_b32 s{sT}, s{sT}, 1\nv_add_u32 v{vPub}, s{sT}, v{vPub}")
A(f"v_lshrrev_b32 v{t1}, 5, v{vLane}\nv_and_b32 v{t2}, 31, v{vLane}\nv_lshlrev_b32 v{t2}, 4, v{t2}")
A(f"v_lshl_add_u32 v{aXW}, v{t1}, 9, v{t2}\nv_add_u32 v{aXW}, s{sT3}, v{aXW}\nv_lshl_add_u32 v{t2}, v{t1}, 11, v{t2}")
sCGp, sKSp = sCnt, sG
qidx(sCGp, sKSp, sT)
A(f"s_cmp_lt_u32 s{sWave}, 4\ns_cbranch_scc1 L_isq")
midx(sCGp, sKSp, sT)
A("L_isq:")
for t in range(4):
    A(f"s_add_u32 s{sT}, s{sKSp}, {t}\ns_and_b32 s{sT}, s{sT}, 3\ns_lshl_b32 s{sT}, s{sT}, 9\ns_add_u32 s{sT}, s{sT}, {XR}\nv_add_u32 v{vXB+t}, s{sT}, v{t2}")
A(f"s_mov_b32 s{sMk}, 0x0c0c0c0c\ns_mov_b32 s{sMk+1}, 0x0c0c0c0c")
waitLC(pX + 4)
for t in range(4): A(f"ds_read_b128 {vr(vP+4*t,4)}, v{vXB+t}")
stamp("x")
A("s_waitcnt lgkmcnt(0)")
A(f"s_add_u32 s{sT32}, s{sT32}, 1\ns_and_b32 s{sT6}, s{sT32}, 63")
A(f"s_call_b64 s[{sRA}:{sRA+1}], L_ln")
A(f"s_cmp_lt_u32 s{sWave}, 4\ns_cbranch_scc0 L_mlp")
A(f"s_lshr_b32 s{sT3}, s{sCGp}, 4\ns_lshl_b32 s{sT3}, s{sT3}, 15\ns_and_b32 s{sT}, s{sCGp}, 15\ns_lshl_b32 s{sT}, s{sT}, 8\ns_add_u32 s{sT3}, s{sT3}, s{sT}")
A(f"s_lshl_b32 s{sT}, s{sKSp}, 12\ns_add_u32 s{sT3}, s{sT3}, s{sT}\ns_add_u32 s{sT3}, s{sT3}, {P1:#x}")
stamp("ln1")
A(f"s_call_b64 s[{sRA}:{sRA+1}], L_proj")
stamp("S1")
A("s_branch L_attn2")
A("L_mlp:")
def norm(q):
    a0, mean = vS, vS+6
    for i in range(4*q, 4*q+4): A(f"v_pk_add_f32 {vr(vU+2*i,2)}, {vr(vU+2*i,2)}, {vr(mean,2)} op_sel_hi:[1,0] neg_lo:[0,1] neg_hi:[0,1]")
    for i in range(4*q, 4*q+4): A(f"v_cvt_pk_bf16_f32 v{vP+i}, v{vU+2*i}, v{vU+2*i+1}")
    for i in range(4*q, 4*q+4): unpack(vU+2*i, vU+2*i+1, vP+i)
    for i in range(4*q, 4*q+4): A(f"v_pk_mul_f32 {vr(vU+2*i,2)}, {vr(vU+2*i,2)}, {vr(a0,2)} op_sel_hi:[1,0]")
    for i in range(4*q, 4*q+4): A(f"v_cvt_pk_bf16_f32 v{vP+i}, v{vU+2*i}, v{vU+2*i+1}")
mlp_first = nst[0]
for q in (1, 2, 3): norm(q)
A(f"s_call_b64 s[{sRA}:{sRA+1}], L_ln")
A(f"s_mul_i32 s{sCG2}, s{sx8}, 28\ns_add_u32 s{sCG2}, s{sCG2}, s{si32}\ns_lshr_b32 s{sCG2}, s{sCG2}, 2\ns_add_u32 s{sT}, s{sx8}, 56\ns_cmp_lg_u32 s{sAct}, 0\ns_cselect_b32 s{sCG2}, s{sCG2}, s{sT}")
A(f"s_lshl_b32 s{sT3}, s{sCGp}, 11\ns_lshl_b32 s{sT}, s{sKSp}, 9\ns_add_u32 s{sT3}, s{sT3}, s{sT}\ns_add_u32 s{sT3}, s{sT3}, {P4:#x}")
vG4o, vB1o, aHW = vG2, vG3, aOLW
A(f"s_and_b32 s{sT}, s{sWave}, 1\ns_lshl_b32 s{sT2}, s{sT}, 8\nv_lshlrev_b32 v{vB1o}, 3, v{vN16}\nv_lshlrev_b32 v{vG4o}, 9, v{vG4}\nv_lshl_add_u32 v{vG4o}, v{vN16}, 4, v{vG4o}\nv_add_u32 v{vG4o}, s{sT2}, v{vG4o}")
A(f"s_lshl_b32 s{sT}, s{sT}, 7\ns_add_u32 s{sT}, s{sT}, {HL}\nv_add_u32 v{aHW}, s{sT}, v{vB1o}\ns_lshl_b32 s{sT}, s{sCG2}, 7")
A(f"buffer_load_dwordx2 {vr(vSm,2)}, v{vB1o}, {srd(sB1)}, s{sT} offen")
stamp("m_ln2")
A(f"s_call_b64 s[{sRA}:{sRA+1}], L_proj")
stamp("m_S4")
A(f"s_lshl_b32 s{sT}, s{sCG2}, 11\ns_add_u32 s{sT}, s{sT}, {P4:#x}")
waitLC(OPT["g4"])
A("s_waitcnt vmcnt(0)")
stamp("m_g4i")
def g4():
  if not NOG: A(f"buffer_load_dwordx4 {vr(vG,4)}, v{vG4o}, {srd(sWS)}, s{sT} offen sc1")
g4()
unpack(vU+8, vU+9, vSm); unpack(vU+10, vU+11, vSm+1)
A("s_waitcnt vmcnt(0)")
def chk6(base, n, name, reissue, inc):
    A(f"L_{name}chk:")
    for r in range(n): A(f"v_xor_b32 v{base+r}, s{sT6}, v{base+r}")
    A(f"v_or3_b32 v{vS}, v{base}, v{base+1}, v{base+2}")
    r = 3
    while r + 1 < n:
        A(f"v_or3_b32 v{vS}, v{vS}, v{base+r}, v{base+r+1}"); r += 2
    if r < n: A(f"v_or_b32 v{vS}, v{vS}, v{base+r}")
    A(f"v_and_b32 v{vS}, 63, v{vS}\nv_cmp_ne_u32 vcc, 0, v{vS}\n" + ("s_branch" if NOG else "s_cbranch_vccz") + f" L_{name}ok")
    A(f"s_add_u32 s{sRetry}, s{sRetry}, {inc}\ns_sub_u32 s{sSpin}, s{sSpin}, 1\ns_cbranch_scc1 L_bail")
    reissue()
    A(f"s_waitcnt vmcnt(0)\ns_branch L_{name}chk")
    A(f"L_{name}ok:")
chk6(vG, 4, "g4", g4, 0x10000)
stamp("m_g4ok")
vH = vG
allred([vH, vH+1, vH+2, vH+3], "v_add_f32", ["p16", "p32"], [vH+4, vH+5, vH+6, vH+7])
A(f"v_cvt_pk_bf16_f32 v{vH+4}, v{vH}, v{vH+1}\nv_cvt_pk_bf16_f32 v{vH+5}, v{vH+2}, v{vH+3}")
unpack(vH, vH+1, vH+4); unpack(vH+2, vH+3, vH+5)
for r in (0, 2): A(f"v_pk_add_f32 {vr(vH+r,2)}, {vr(vH+r,2)}, {vr(vU+8+r,2)}")
A(f"v_cvt_pk_bf16_f32 v{vH+4}, v{vH}, v{vH+1}\nv_cvt_pk_bf16_f32 v{vH+5}, v{vH+2}, v{vH+3}")
unpack(vH, vH+1, vH+4); unpack(vH+2, vH+3, vH+5)
for r in range(4): A(f"v_mul_f32 v{vH+4+r}, v{vH+r}, v{vH+r}")
for r in range(4): A(f"v_mul_f32 v{vH+4+r}, 0xbdd2d3e8, v{vH+4+r}")
for r in range(4): A(f"v_add_f32 v{vH+4+r}, 0xc0135761, v{vH+4+r}")
for r in range(4): A(f"v_mul_f32 v{vH+4+r}, v{vH+r}, v{vH+4+r}")
for r in range(4): A(f"v_exp_f32 v{vH+4+r}, v{vH+4+r}")
for r in range(4): A(f"v_add_f32 v{vH+4+r}, 1.0, v{vH+4+r}")
for r in range(4): A(f"v_rcp_f32 v{vH+4+r}, v{vH+4+r}")
for r in range(4): A(f"v_mul_f32 v{vH+r}, v{vH+r}, v{vH+4+r}")
A(f"v_cvt_pk_bf16_f32 v{vH}, v{vH}, v{vH+1}\nv_cvt_pk_bf16_f32 v{vH+1}, v{vH+2}, v{vH+3}")
setexec(0xffff)
A(f"ds_write_b64 v{aHW}, {vr(vH,2)}")
signal(1)
stamp("m_h")
if DUMP:
    A(f"s_cmp_lg_u32 s{sWave}, 4\ns_cbranch_scc1 L_end"); dump_stamps(True, lambda n: n.startswith("m_"), 8*31+4)
A("s_endpgm")
nst[0] = mlp_first
A("L_attn:")
A("s_waitcnt lgkmcnt(0)")
A(f"s_add_u32 s{sT32}, s{sT32}, 1\ns_and_b32 s{sT6}, s{sT32}, 63")
A("L_attn2:")
A(f"s_lshl_b32 s{sW4}, s{sWave}, 2\ns_add_u32 s{sW4}, s{sW4}, 4\ns_lshl_b32 s{sW8}, s{sW4}, 1")
A(f"v_lshl_add_u32 v{aW}, v{j}, 13, v{aW}")
for ct in (1, 2, 3): A(f"v_xor_b32 v{aW+ct}, {32*ct}, v{aW}")
A(f"v_and_b32 v{t1}, 7, v{r_}\nv_lshlrev_b32 v{t2}, 1, v{j}\nv_xor_b32 v{t1}, v{t1}, v{t2}\nv_lshl_add_u32 v{aV}, v{r_}, 8, v{c4}\nv_lshl_add_u32 v{aV}, v{t1}, 5, v{aV}\nv_add_u32 v{aV}, {S2}, v{aV}\nv_xor_b32 v{aV+1}, 32, v{aV}")
A(f"v_xor_b32 v{t1}, v{vG4}, v{vN16}\nv_lshlrev_b32 v{t1}, 4, v{t1}\nv_lshl_add_u32 v{t1}, v{vN16}, 8, v{t1}\nv_lshl_add_u32 v{t1}, v{j}, 13, v{t1}\nv_add_u32 v{aK}, {S1}, v{t1}")
for s_ in (1, 2, 3): A(f"v_xor_b32 v{aK+s_}, {64*s_}, v{aK}")
A(f"v_and_b32 v{t1}, 7, v{vN16}\nv_mul_u32_u24 v{aQ}, 272, v{t1}\nv_lshl_add_u32 v{aQ}, v{vG4}, 4, v{aQ}\nv_add_u32 v{aQ}, {QL}, v{aQ}")
A(f"v_lshlrev_b32 v{aMLR}, 3, v{t1}\nv_add_u32 v{aMLR}, {ML}, v{aMLR}\nv_lshl_add_u32 v{aMLW}, v{j}, 6, v{aMLR}")
A(f"v_lshlrev_b32 v{vS2o}, 9, v{t1}\nv_lshl_add_u32 v{vS2o}, v{j}, 7, v{vS2o}\nv_lshrrev_b32 v{t1}, 3, v{vN16}\nv_lshl_add_u32 v{vS2o}, v{t1}, 6, v{vS2o}\nv_lshl_add_u32 v{vS2o}, v{vG4}, 4, v{vS2o}")
A(f"v_lshlrev_b32 v{vG1}, 4, v0\nv_add_u32 v{aPXW}, {PX}, v{vG1}\nv_lshlrev_b32 v{aPXR}, 4, v{vLane}\nv_add_u32 v{aPXR}, {PX}, v{aPXR}")
A(f"v_lshrrev_b32 v{t1}, 5, v0\nv_and_b32 v{t2}, 31, v0\nv_mul_u32_u24 v{aQW}, 272, v{t1}\nv_lshl_add_u32 v{aQW}, v{t2}, 3, v{aQW}\nv_add_u32 v{aQW}, {QL}, v{aQW}")
A(f"v_and_b32 v{t0}, 3, v{vLane}\nv_lshlrev_b32 v{t0}, 4, v{t0}\nv_lshl_add_u32 v{t0}, v{j}, 6, v{t0}\nv_lshrrev_b32 v{t1}, 5, v{vLane}\nv_bfe_u32 v{t2}, v{vLane}, 2, 3")
A(f"v_lshl_add_u32 v{vG2}, v{t1}, 17, v{t0}\nv_lshl_add_u32 v{vG2}, v{t2}, 14, v{vG2}")
A(f"v_lshrrev_b32 v{aOLW}, 1, v{t0}\nv_lshl_add_u32 v{aOLW}, v{t1}, 7, v{aOLW}\nv_add_u32 v{aOLW}, {OL}, v{aOLW}")
A(f"v_and_b32 v{t1}, 1, v{vLane}\nv_lshlrev_b32 v{aOLR}, 3, v{vG4}\nv_lshl_add_u32 v{aOLR}, v{t1}, 7, v{aOLR}\nv_add_u32 v{aOLR}, {OL}, v{aOLR}")
A(f"v_lshlrev_b32 v{vOo}, 3, v{t1}\nv_lshlrev_b32 v{vP3}, 10, v{t1}\nv_lshl_add_u32 v{vP3}, v{j}, 8, v{vP3}\nv_lshl_add_u32 v{vP3}, v{vG4}, 4, v{vP3}")
A(f"v_bfe_u32 v{t2}, v{vLane}, 1, 2\nv_lshl_add_u32 v{vP3}, v{t2}, 6, v{vP3}")
A(f"v_lshrrev_b32 v{t2}, 1, v{vLane}\nv_lshlrev_b32 v{vG3}, 4, v{t1}\nv_lshl_add_u32 v{vG3}, v{t2}, 11, v{vG3}")
for i, mk in enumerate((0x0c0c0c0c, 0x30303030, 0xc0c0c0c0)):
    A(f"s_mov_b32 s{sMk+2*i}, {mk:#x}\ns_mov_b32 s{sMk+2*i+1}, {mk:#x}")
sOo = sM
A(f"s_lshr_b32 s{sT}, s{sS}, 6\ns_lshl_b32 s{sT}, s{sT}, 9\ns_and_b32 s{sT2}, s{sS}, 31\ns_lshl_b32 s{sT2}, s{sT2}, 4\ns_add_u32 s{sT}, s{sT}, s{sT2}")
A(f"s_bfe_u32 s{sT2}, s{sS}, {5 | (1 << 16):#x}\ns_lshl_b32 s{sT2}, s{sT2}, 11\ns_add_u32 s{sOo}, s{sT}, s{sT2}")
A(f"s_cmp_lg_u32 s{sWave}, 0\ns_cbranch_scc1 L_nosm")
A(f"buffer_load_dwordx2 {vr(vSm,2)}, v{vOo}, {srd(sX)}, s{sOo} offen")
A(f"buffer_load_dwordx2 {vr(vSm+2,2)}, v{vOo}, {srd(sB2)}, s{sT} offen")
A("L_nosm:")
A(f"s_lshl_b32 s{sT}, s{sx8}, 14\ns_add_u32 s{sT}, s{sT}, {P1:#x}\ns_add_u32 s{sT2}, s{sT}, 4096\ns_add_u32 s{sT3}, s{sT}, 8192\ns_add_u32 s{sT4}, s{sT}, 12288")
def g1():
    if NOG: return
    for k, so in enumerate((sT, sT2, sT3, sT4)):
        A(f"buffer_load_dwordx4 {vr(vG+4*k,4)}, v{vG1}, {srd(sWS)}, s{so} offen sc1")
waitLC(pK, sW8)
for T in range(2):
    for s_ in range(4): A(f"ds_read_b128 {vr(vKF+16*T+4*s_,4)}, v{aK+s_} offset:{4096*T}")
signal(2)
waitLC(OPT["g1"])
stamp("g1i")
g1()
A(f"s_mov_b32 s{sG}, 0x3db504f3\ns_mov_b32 s{sG+1}, 0x3fb8aa3b\nv_mov_b32 v{vS+4}, s{sG}\nv_mov_b32 v{vS+6}, s{sG+1}")
A("s_waitcnt vmcnt(0)")
stamp("g1a")
chk6(vG, 16, "g1", g1, 1)
stamp("g1ok")
for r in (0, 2): A(f"v_pk_add_f32 {vr(vG+r,2)}, {vr(vG+r,2)}, {vr(vG+4+r,2)}\nv_pk_add_f32 {vr(vG+8+r,2)}, {vr(vG+8+r,2)}, {vr(vG+12+r,2)}")
for r in (0, 2): A(f"v_pk_add_f32 {vr(vG+r,2)}, {vr(vG+r,2)}, {vr(vG+8+r,2)}")
A(f"v_cvt_pk_bf16_f32 v{vG}, v{vG}, v{vG+1}\nv_cvt_pk_bf16_f32 v{vG+1}, v{vG+2}, v{vG+3}")
A(f"ds_write_b64 v{aQW}, {vr(vG,2)}")
LB(3)
stamp("lb3")
for s_ in range(4): A(f"ds_read_b128 {vr(vQ+4*s_,4)}, v{aQ} offset:{64*s_}")
for s_ in range(4):
    A(f"s_waitcnt lgkmcnt({3-s_})")
    for T in range(2):
        c = "0" if s_ == 0 else vr(vU+4*T, 4)
        A(f"v_mfma_f32_16x16x32_bf16 {vr(vU+4*T,4)}, {vr(vKF+16*T+4*s_,4)}, {vr(vQ+4*s_,4)}, {c}")
vM, vL = vS, vS+1
for p in range(4): A(f"v_cvt_pk_bf16_f32 v{vU+8+p}, v{vU+2*p}, v{vU+2*p+1}")
for p in range(4): unpack(vU+2*p, vU+2*p+1, vU+8+p)
for p in range(4): A(f"v_pk_mul_f32 {vr(vU+2*p,2)}, {vr(vU+2*p,2)}, {vr(vS+4,2)} op_sel_hi:[1,0]")
for p in range(4): A(f"v_cvt_pk_bf16_f32 v{vU+8+p}, v{vU+2*p}, v{vU+2*p+1}")
for p in range(4): unpack(vU+2*p, vU+2*p+1, vU+8+p)
A(f"v_max3_f32 v{vM}, v{vU}, v{vU+1}, v{vU+2}\nv_max3_f32 v{vS+2}, v{vU+3}, v{vU+4}, v{vU+5}\nv_max3_f32 v{vM}, v{vM}, v{vU+6}, v{vU+7}\nv_max_f32 v{vM}, v{vM}, v{vS+2}")
allred(vM, "v_max_f32", ["p16", "p32"], vS+2)
A(f"v_mul_f32 v{vM}, v{vM}, v{vS+6}")
for p in range(4): A(f"v_pk_fma_f32 {vr(vU+2*p,2)}, {vr(vU+2*p,2)}, {vr(vS+6,2)}, {vr(vM,2)} op_sel_hi:[1,0,0] neg_lo:[0,0,1] neg_hi:[0,0,1]")
for r in range(8): A(f"v_exp_f32 v{vU+r}, v{vU+r}")
for p in range(4): A(f"v_cvt_pk_bf16_f32 v{vU+8+p}, v{vU+2*p}, v{vU+2*p+1}")
A(f"ds_write_b128 v{aPXW}, {vr(vU+8,4)}")
A(f"v_pk_add_f32 {vr(vU,2)}, {vr(vU,2)}, {vr(vU+2,2)}\nv_pk_add_f32 {vr(vU+4,2)}, {vr(vU+4,2)}, {vr(vU+6,2)}\nv_pk_add_f32 {vr(vU,2)}, {vr(vU,2)}, {vr(vU+4,2)}\nv_add_f32 v{vL}, v{vU}, v{vU+1}")
allred(vL, "v_add_f32", ["p16", "p32"], vS+2)
A(f"ds_write_b64 v{aMLW}, {vr(vM,2)}")
signal(4)
stamp("sm")
waitLC(pW1)
for w in range(4):
    for d in range(2):
        f = vF + 8*w + 4*d
        A(f"ds_read_b64_tr_b16 {vr(f,2)}, v{aV+d} offset:{8192*w}\nds_read_b64_tr_b16 {vr(f+2,2)}, v{aV+d} offset:{8192*w + 4096}")
A(f"s_lshl_b32 s{sT}, s{sS}, 12\ns_add_u32 s{sT}, s{sT}, {P2:#x}")
waitPW(4)
stamp("lb4")
for w in range(4): A(f"ds_read_b128 {vr(vQ+4*w,4)}, v{aPXR} offset:{1024*w}")
for w in range(4): A(f"ds_read_b64 {vr(vU+16+2*w,2)}, v{aMLR} offset:{64*w}")
for w in range(4):
    A(f"s_waitcnt lgkmcnt({7-w})")
    for d in range(2):
        A(f"v_mfma_f32_16x16x32_bf16 {vr(vAcc+8*w+4*d,4)}, {vr(vF+8*w+4*d,4)}, {vr(vQ+4*w,4)}, 0")
A("s_waitcnt lgkmcnt(0)")
m = lambda w: vU + 16 + 2*w
A(f"v_max3_f32 v{vM}, v{m(0)}, v{m(1)}, v{m(2)}\nv_max_f32 v{vM}, v{vM}, v{m(3)}")
for w in range(4): A(f"v_sub_f32 v{m(w)}, v{m(w)}, v{vM}")
for w in range(4): A(f"v_exp_f32 v{m(w)}, v{m(w)}")
A(f"v_mul_f32 v{vL}, v{m(0)}, v{m(0)+1}")
for w in range(1, 4): A(f"v_fmac_f32 v{vL}, v{m(w)}, v{m(w)+1}")
A(f"v_rcp_f32 v{vS+2}, v{vL}\nv_log_f32 v{vS+3}, v{vL}")
for h in (0, 2, 4, 6): A(f"v_pk_mul_f32 {vr(vAcc+h,2)}, {vr(vAcc+h,2)}, {vr(m(0),2)} op_sel_hi:[1,0]")
for w in range(1, 4):
    for h in (0, 2, 4, 6): A(f"v_pk_fma_f32 {vr(vAcc+h,2)}, {vr(vAcc+8*w+h,2)}, {vr(m(w),2)}, {vr(vAcc+h,2)} op_sel_hi:[1,0,1]")
A(f"s_mov_b32 vcc_lo, 0xff00ff00\ns_mov_b32 vcc_hi, 0xff00ff00")
for r in range(4): A(f"v_cndmask_b32 v{vAcc+r}, v{vAcc+r}, v{vAcc+4+r}, vcc")
for h in (0, 2): A(f"v_pk_mul_f32 {vr(vAcc+h,2)}, {vr(vAcc+h,2)}, {vr(vS+2,2)} op_sel_hi:[1,0]")
A(f"v_cvt_pk_bf16_f32 v{vU}, v{vAcc}, v{vAcc+1}\nv_cvt_pk_bf16_f32 v{vU+1}, v{vAcc+2}, v{vAcc+3}\nv_add_f32 v{vU+2}, v{vM}, v{vS+3}\nv_mov_b32 v{vU+3}, s{sT32}")
if OPT.get("s2") == 1: A(f"buffer_store_dwordx4 {vr(vU,4)}, v{vG1}, {srd(sWS)}, s{sT} offen sc1")
elif OPT.get("s2") == 2: pass
elif OPT.get("s2") == 3: A(f"buffer_store_dwordx4 {vr(vU,4)}, v{vG1}, {srd(sWS)}, s{sT} offen")
else: A(f"buffer_store_dwordx4 {vr(vU,4)}, v{vS2o}, {srd(sWS)}, s{sT} offen sc1")
stamp("S2")
A(f"s_lshr_b32 s{sT}, s{sx8}, 1\ns_lshl_b32 s{sT}, s{sT}, 18\ns_bfe_u32 s{sT2}, s{sS}, {2 | (4 << 16):#x}\ns_lshl_b32 s{sT2}, s{sT2}, 8\ns_add_u32 s{sT}, s{sT}, s{sT2}\ns_add_u32 s{sT}, s{sT}, {P2:#x}")
A(f"s_add_u32 s{sT2}, s{sT}, 4096\ns_add_u32 s{sT3}, s{sT}, 8192\ns_add_u32 s{sT4}, s{sT}, 12288")
def g2():
    if NOG: return
    for k, so in enumerate((sT, sT2, sT3, sT4)):
        A(f"buffer_load_dwordx4 {vr(vG+4*k,4)}, v{vG2}, {srd(sWS)}, s{so} offen sc1")
def frag_reads(fb, base, k):
    for ct in range(4):
        f = fb + 16*k + 4*ct
        A(f"ds_read_b64_tr_b16 {vr(f,2)}, v{aW+ct} offset:{base + 4096*k}")
        A(f"ds_read_b64_tr_b16 {vr(f+2,2)}, v{aW+ct} offset:{base + 4096*k + 2048}")
def mfmas(fb, xb, k, first, wait=None):
    for ct in range(4):
        f = fb + 16*k + 4*ct
        if wait is not None: A(f"s_waitcnt lgkmcnt({wait + 6 - 2*ct})")
        c = "0" if first else vr(vAcc+4*ct, 4)
        A(f"v_mfma_f32_16x16x32_bf16 {vr(vAcc+4*ct,4)}, {vr(f,4)}, {vr(xb+4*k,4)}, {c}")
waitLC(OPT["g2"])
A("s_waitcnt vmcnt(0)")
stamp("g2i")
g2()
waitLC(pWO + 16, sW4)
frag_reads(vF, S0, 0); frag_reads(vF, S0, 1)
A("s_waitcnt vmcnt(0)")
stamp("g2a")
A("L_g2chk:")
for k in range(4): A(f"v_xor_b32 v{vG+4*k+3}, s{sT32}, v{vG+4*k+3}")
A(f"v_or3_b32 v{vS}, v{vG+3}, v{vG+7}, v{vG+11}\nv_or_b32 v{vS}, v{vS}, v{vG+15}\nv_cmp_ne_u32 vcc, 0, v{vS}\n" + ("s_branch" if NOG else "s_cbranch_vccz") + " L_g2ok")
A(f"s_add_u32 s{sRetry}, s{sRetry}, 0x100\ns_sub_u32 s{sSpin}, s{sSpin}, 1\ns_cbranch_scc1 L_bail")
g2()
A("s_waitcnt vmcnt(0)\ns_branch L_g2chk\nL_g2ok:")
stamp("g2ok")
ls = lambda k: vG + 4*k + 2
A(f"v_max3_f32 v{vM}, v{ls(0)}, v{ls(1)}, v{ls(2)}\nv_max_f32 v{vM}, v{vM}, v{ls(3)}")
for k in range(2):
    unpack(vU+4*k, vU+4*k+1, vG+4*k); unpack(vU+4*k+2, vU+4*k+3, vG+4*k+1)
    allred(vM, "v_max_f32", [["r4"], ["r8"]][k], None)
A(f"v_mov_b32 v{vS+2}, v{vM}")
unpack(vU+8, vU+9, vG+8)
A(f"v_permlane16_swap_b32 v{vM}, v{vS+2}")
unpack(vU+10, vU+11, vG+9)
A(f"v_max_f32 v{vM}, v{vM}, v{vS+2}")
for k in range(4): A(f"v_sub_f32 v{ls(k)}, v{ls(k)}, v{vM}")
for k in range(4): A(f"v_exp_f32 v{ls(k)}, v{ls(k)}")
unpack(vU+12, vU+13, vG+12); unpack(vU+14, vU+15, vG+13)
A(f"v_add_f32 v{vL}, v{ls(0)}, v{ls(1)}\nv_add_f32 v{vS+2}, v{ls(2)}, v{ls(3)}\nv_add_f32 v{vL}, v{vL}, v{vS+2}")
for h in (0, 2): A(f"v_pk_mul_f32 {vr(vU+h,2)}, {vr(vU+h,2)}, {vr(ls(0),2)} op_sel_hi:[1,0]")
for k in range(1, 4):
    for h in (0, 2): A(f"v_pk_fma_f32 {vr(vU+h,2)}, {vr(vU+4*k+h,2)}, {vr(ls(k),2)}, {vr(vU+h,2)} op_sel_hi:[1,0,1]")
allred([vL, vU, vU+1, vU+2, vU+3], "v_add_f32", ["r4", "r8", "p16"], [vU+4, vU+5, vU+6, vU+7, vU+8])
A(f"v_rcp_f32 v{vS+2}, v{vL}")
for h in (0, 2): A(f"v_pk_mul_f32 {vr(vU+h,2)}, {vr(vU+h,2)}, {vr(vS+2,2)} op_sel_hi:[1,0]")
A(f"v_cvt_pk_bf16_f32 v{vU}, v{vU}, v{vU+1}\nv_cvt_pk_bf16_f32 v{vU+1}, v{vU+2}, v{vU+3}")
setexec(0x0000000f0000000f)
A(f"ds_write_b64 v{aOLW}, {vr(vU,2)}")
fullexec()
LB(5)
stamp("lb5")
A(f"ds_read2_b64 {vr(vQ,4)}, v{aOLR} offset0:0 offset1:4\nds_read2_b64 {vr(vQ+4,4)}, v{aOLR} offset0:8 offset1:12")
A(f"s_and_b32 s{sT}, s{sS}, 3\ns_lshl_b32 s{sT}, s{sT}, 17\ns_lshr_b32 s{sT2}, s{sS}, 2\ns_lshl_b32 s{sT2}, s{sT2}, 11\ns_add_u32 s{sT}, s{sT}, s{sT2}\ns_add_u32 s{sT}, s{sT}, {P3:#x}\nv_mov_b32 v{vS}, s{sT6}")
A("s_waitcnt lgkmcnt(1)")
mfmas(vF, vQ, 0, True)
A("s_waitcnt lgkmcnt(0)")
mfmas(vF, vQ, 1, False)
stamp("wo")
waitMW(1)
A(f"ds_read2_b64 {vr(vQ+8,4)}, v{aOLR} offset0:32 offset1:36\nds_read2_b64 {vr(vQ+12,4)}, v{aOLR} offset0:40 offset1:44")
stamp("h")
waitLC(pW2, sW4)
frag_reads(vXB, S1, 0)
mfmas(vXB, vQ+8, 0, False, 0)
waitLC(pW2 + 16, sW4)
frag_reads(vXB, S1, 1)
mfmas(vXB, vQ+8, 1, False, 0)
stamp("fin")
for ct in range(1, 4):
    for r in range(4): A(f"v_cndmask_b32 v{vAcc+r}, v{vAcc+r}, v{vAcc+4*ct+r}, s[{sMk+2*ct-2}:{sMk+2*ct-1}]")
for r in range(4): A(f"v_bfi_b32 v{vAcc+r}, s{sC63}, v{vS}, v{vAcc+r}")
setexec(0x00ff00ff00ff00ff)
A(f"buffer_store_dwordx4 {vr(vAcc,4)}, v{vP3}, {srd(sWS)}, s{sT} offen sc1")
fullexec()
A(f"s_cmp_lg_u32 s{sWave}, 0\ns_cbranch_scc1 L_done")
A(f"s_lshr_b32 s{sT}, s{sS}, 6\ns_lshl_b32 s{sT}, s{sT}, 17\ns_and_b32 s{sT2}, s{sS}, 63\ns_lshl_b32 s{sT2}, s{sT2}, 5\ns_add_u32 s{sT}, s{sT}, s{sT2}\ns_add_u32 s{sT}, s{sT}, {P3:#x}\ns_add_u32 s{sT2}, s{sT}, 65536")
def g3():
    if NOG: return
    for k, so in enumerate((sT, sT2)):
        A(f"buffer_load_dwordx4 {vr(vG+4*k,4)}, v{vG3}, {srd(sWS)}, s{so} offen sc1")
vH = vQ
unpack(vH, vH+1, vSm); unpack(vH+2, vH+3, vSm+1); unpack(vH+4, vH+5, vSm+2); unpack(vH+6, vH+7, vSm+3)
for r in (0, 2): A(f"v_pk_add_f32 {vr(vH+r,2)}, {vr(vH+r,2)}, {vr(vH+4+r,2)}")
A("s_waitcnt vmcnt(0)")
stamp("ack")
g3()
A("s_waitcnt vmcnt(0)")
chk6(vG, 8, "g3", g3, 0x1000000)
stamp("g3ok")
for r in (0, 2): A(f"v_pk_add_f32 {vr(vG+r,2)}, {vr(vG+r,2)}, {vr(vG+4+r,2)}")
allred([vG, vG+1, vG+2, vG+3], "v_add_f32", ["r2", "r4", "r8", "p16", "p32"], [vG+4, vG+5, vG+6, vG+7])
for r in (0, 2): A(f"v_pk_add_f32 {vr(vH+r,2)}, {vr(vH+r,2)}, {vr(vG+r,2)}")
A(f"v_cvt_pk_bf16_f32 v{vH}, v{vH}, v{vH+1}\nv_cvt_pk_bf16_f32 v{vH+1}, v{vH+2}, v{vH+3}")
setexec(3)
A(f"buffer_store_dwordx2 {vr(vH,2)}, v{vOo}, {srd(sOUT)}, s{sOo} offen")
A(f"s_cmp_lg_u32 s2, 0\ns_cbranch_scc1 L_done")
A(f"v_mov_b32 v{vS}, s{sT32}\nv_mov_b32 v{vS+1}, 0")
setexec(1)
A(f"buffer_store_dword v{vS}, v{vS+1}, {srd(sWS)}, 0 offen sc1")
A("L_done:")
if "probe" in OPT:
    stamp("end")
    k = slots[STN[0]][0] if STN[0] != "end" else slots["end"][0]
    A(f"s_cmp_lg_u32 s{sWave}, {OPT['swave']}\ns_cbranch_scc1 L_end")
    A(f"s_waitcnt lgkmcnt(0)\ns_sub_u32 s{sT}, s{STB+2*k}, s{STB}\ns_lshl_b32 s{sT}, s{sT}, 2\ns_add_u32 s{sT}, s{sT}, 2000")
    A(f"L_pad:\ns_memrealtime s[4:5]\ns_waitcnt lgkmcnt(0)\ns_sub_u32 s4, s4, s{STB}\ns_cmp_lt_u32 s4, s{sT}\ns_cbranch_scc1 L_pad")
elif DUMP:
    stamp("end")
    l3 = ("x", "ln1", "S1")
    A(f"s_cmp_lg_u32 s{sWave}, 3\ns_cbranch_scc1 L_d0")
    dump_stamps(True, lambda n: n in l3, None)
    A("s_endpgm\nL_d0:")
    A(f"s_cmp_lg_u32 s{sWave}, {OPT['swave']}\ns_cbranch_scc1 L_end")
    dump_stamps(True, lambda n: n not in l3 and n[:2] not in ("l_", "m_"), 8*31)
A("L_end:\ns_endpgm")
A("L_bail:")
A(f"v_mov_b32 v{vFl}, 0x7fffffff\nds_write_b32 v{aPW}, v{vFl}\ns_waitcnt lgkmcnt(0)\ns_endpgm")
A("L_proj:")
A(f"ds_write_b128 v{aXW}, {vr(vP,4)}")
for k in range(8): A(f"ds_read2_b64 {vr(vXB+4*k,4)}, v{aXB} offset0:{8*k} offset1:{8*k+4}")
A(f"v_mov_b32 v{vS}, s{sT6}")
def pj_batch(ks):
    waitLC(4*(ks[-1]+1), sPB)
    for i, k in enumerate(ks):
        for c in range(2):
            f = vF + 8*i + 4*c
            A(f"ds_read_b64_tr_b16 {vr(f,2)}, v{aPj+c} offset:{4096*k}\nds_read_b64_tr_b16 {vr(f+2,2)}, v{aPj+c} offset:{4096*k + 2048}")
    if ks[-1] == 7: A(f"ds_write_b32 v{aPW}, v{vSig}")
    n = 4*len(ks) + (1 if ks[-1] == 7 else 0)
    for i, k in enumerate(ks):
        for c in range(2):
            n -= 2
            A(f"s_waitcnt lgkmcnt({n})")
            cc = "0" if k == 0 else vr(vAcc+4*c, 4)
            A(f"v_mfma_f32_16x16x32_bf16 {vr(vAcc+4*c,4)}, {vr(vF+8*i+4*c,4)}, {vr(vXB+4*k,4)}, {cc}")
pj_batch([0, 1, 2, 3]); pj_batch([4, 5, 6]); pj_batch([7])
for r in range(4): A(f"v_cndmask_b32 v{vAcc+r}, v{vAcc+r}, v{vAcc+4+r}, s[{sMk}:{sMk+1}]")
for r in range(4): A(f"v_add_u32 v{vAcc+r}, 32, v{vAcc+r}")
for r in range(4): A(f"v_bfi_b32 v{vAcc+r}, s{sC63}, v{vS}, v{vAcc+r}")
setexec(0x000f000f000f000f)
if not OPT.get("nos1"): A(f"buffer_store_dwordx4 {vr(vAcc,4)}, v{vPub}, {srd(sWS)}, s{sT3} offen sc1")
fullexec()
A(f"s_setpc_b64 s[{sRA}:{sRA+1}]")
A("L_ln:")
for i in range(16): unpack(vU+2*i, vU+2*i+1, vP+i)
a0, a1 = vS, vS+2
A(f"v_pk_add_f32 {vr(a0,2)}, {vr(vU,2)}, {vr(vU+2,2)}\nv_pk_add_f32 {vr(a1,2)}, {vr(vU+4,2)}, {vr(vU+6,2)}")
for i in range(4, 16, 2): A(f"v_pk_add_f32 {vr(a0,2)}, {vr(a0,2)}, {vr(vU+2*i,2)}\nv_pk_add_f32 {vr(a1,2)}, {vr(a1,2)}, {vr(vU+2*i+2,2)}")
A(f"v_pk_add_f32 {vr(a0,2)}, {vr(a0,2)}, {vr(a1,2)}\nv_add_f32 v{a0}, v{a0}, v{a0+1}")
allred(a0, "v_add_f32", ["q1", "q2", "hm", "m", "p16"], a1)
mean = vS+6
A(f"v_mul_f32 v{mean}, 0x3a800000, v{a0}")
for i in range(16):
    acc = a0 if i % 2 == 0 else a1
    dd = vF + 2*(i % 4)
    A(f"v_pk_add_f32 {vr(dd,2)}, {vr(vU+2*i,2)}, {vr(mean,2)} op_sel_hi:[1,0] neg_lo:[0,1] neg_hi:[0,1]")
    if i < 2: A(f"v_pk_mul_f32 {vr(acc,2)}, {vr(dd,2)}, {vr(dd,2)}")
    else: A(f"v_pk_fma_f32 {vr(acc,2)}, {vr(dd,2)}, {vr(dd,2)}, {vr(acc,2)}")
A(f"v_pk_add_f32 {vr(a0,2)}, {vr(a0,2)}, {vr(a1,2)}\nv_add_f32 v{a0}, v{a0}, v{a0+1}")
allred(a0, "v_add_f32", ["q1", "q2", "hm", "m", "p16"], a1)
A(f"v_mul_f32 v{a0}, 0x3a800000, v{a0}\nv_cvt_pk_bf16_f32 v{a0}, v{a0}, v{mean}")
A(f"v_and_b32 v{mean}, s{sHI}, v{a0}\nv_lshlrev_b32 v{a0}, 16, v{a0}\nv_add_f32 v{a0}, 0x3727c5ac, v{a0}")
A(f"v_cvt_pk_bf16_f32 v{a0}, v{a0}, v{a0}\nv_lshlrev_b32 v{a0}, 16, v{a0}\nv_sqrt_f32 v{a0}, v{a0}")
A(f"v_cvt_pk_bf16_f32 v{a0}, v{a0}, v{a0}\nv_lshlrev_b32 v{a0}, 16, v{a0}\nv_rcp_f32 v{a0}, v{a0}")
norm(0)
A(f"s_setpc_b64 s[{sRA}:{sRA+1}]")

body, nadd = hz.pad("\n".join(L))
if STN: body += "\n; STAMPS start," + ",".join(STN) + ",end"
hdr = open(os.path.join(os.path.dirname(__file__), "header.txt")).read()
out = f"""{hdr}; @launch grid=(256,1,1) block=(448,1,1) lds={LDS_END}
.amdgcn_target "amdgcn-amd-amdhsa--gfx950"
.text
.globl {NAME}_kernel
.p2align 8
.type {NAME}_kernel,@function
{NAME}_kernel:
{body}
.section .rodata,"a"
.p2align 6
.amdhsa_kernel {NAME}_kernel
  .amdhsa_next_free_vgpr {NV}
  .amdhsa_next_free_sgpr 102
  .amdhsa_accum_offset {NV}
  .amdhsa_group_segment_fixed_size 0
  .amdhsa_kernarg_size 104
  .amdhsa_user_sgpr_count 2
  .amdhsa_user_sgpr_kernarg_segment_ptr 1
  .amdhsa_system_sgpr_workgroup_id_x 1
  .amdhsa_float_denorm_mode_32 3
.end_amdhsa_kernel
"""
open(sys.argv[1], "w").write(out)

print("NV", NV, "LDS", LDS_END, "nops added", nadd, file=sys.stderr)
```

```python
import sys, os
sys.path.insert(0, os.path.dirname(__file__))
import hz
NAME = "parallel_sum__sliding_block_cached__mixer_channel_mlp__decode"
OPT = dict(stamps=0, nt=1, spin=1 << 16, swave=0, Wq=36, Wk=20, Wv=20, W1=20, Wo=20, W2=20, g1=76, g2=168, g4=156)
STN = None
for a in sys.argv[2:]:
    k, v = a.split("=")
    if k == "st": STN = v.split(","); OPT["stamps"] = 1
    elif k == "W":
        for kk in ("Wk", "Wv", "W1", "Wo", "W2"): OPT[kk] = int(v)
    else: OPT[k] = int(v)
NT = " nt" if OPT["nt"] else ""
L = []
def A(s):
    for x in s.split("\n"): L.append("    " + x.strip() if not x.strip().endswith(":") else x.strip())
class Alloc:
    def __init__(s, start): s.n = start
    def __call__(s, cnt=1, al=1):
        s.n = (s.n + al - 1) // al * al
        r = s.n; s.n += cnt; return r
VA = Alloc(1)
def vr(r, n): return f"v[{r}:{r+n-1}]"
sX, sWQ, sK, sV, sW1, sWO, sW2 = range(8, 36, 4)
sB1, sB2, sOUT, sWS = sWQ, sK, sV, sW1
def srd(r): return f"s[{r}:{r+3}]"
(sx8, si32, sS, sCG2, sWave, sT, sT2, sT3, sT4, sT5, sT32, sT6, sHI, sSpin, sC63, sRetry, sW8, sW4, sNeed, sPB, sCnt, sM, sG, sAct) = range(36, 60)
sPub = sW8
sRA = 60; sMk = 62
STB = 68
nst = [0]; names = []
slots = {}
def stamp(name):
    if OPT["stamps"] and (STN is None or name in STN or name in ("start", "end")):
        i = nst[0]; nst[0] += 1
        slots[name] = (i, 0 if name == "start" else (len(STN) + 1 if name == "end" else STN.index(name) + 1))
        assert STB + 2*i + 1 <= 101
        A(f"s_memrealtime s[{STB+2*i}:{STB+2*i+1}]")
P1, P4, P2, P3, WSSZ = 0x10000, 0x40000, 0x100000, 0x200000, 0x400000
S0, S1, S2, S3, M = 0, 32768, 65536, 98304, 131072
XR, PX, XN, YN, QL = M, M + 4096, M + 8192, M + 9216, M + 10240
ML = QL + 2304; OL = ML + 256; HL = OL + 256; FLG = HL + 256
LDS_END = FLG + 64
LCO = 32
pX, pWQ, pK, pV, pW1, pWO, pW2, pEND = 0, 4, 36, 68, 100, 132, 164, 196

vLane, vG4, vN16, vJ, vTmp2, vTmp3 = [VA() for _ in range(6)]
aFL = VA(); aPW = VA()
aW = VA(4); aK = VA(4); aV = VA(2); aQ = VA(); aXB = VA(); aXW = VA(); aPj = VA(2)
vPub = VA(); vG1 = VA(); aQW = VA(); aPXW = VA(); aPXR = VA(); aMLW = VA(); aMLR = VA(); vS2o = VA()
vG2 = VA(); vP3 = VA(); vG3 = VA(); vOo = VA(); aOLW = VA(); aOLR = VA(); vSig = VA()
vP = VA(16, 4); vU = VA(32, 4); vS = VA(8, 4); vXB = VA(32, 4); vF = VA(32, 4); vAcc = VA(32, 4)
vQ = VA(16, 4); vG = VA(16, 4); vSm = VA(6, 2); vFl = VA(4, 2)
vKF = vXB
NV = (VA.n + 7) // 8 * 8
assert NV <= 256, NV

def allred(reg, op, steps, tmp):
    regs_ = reg if isinstance(reg, list) else [reg]
    tmps = tmp if isinstance(tmp, list) else [tmp]
    dpp = dict(q1="quad_perm:[1,0,3,2]", q2="quad_perm:[2,3,0,1]", hm="row_half_mirror", m="row_mirror",
               r2="row_ror:2", r4="row_ror:4", r8="row_ror:8")
    for st in steps:
        if st in dpp:
            for r in regs_: A(f"{op}_dpp v{r}, v{r}, v{r} {dpp[st]} row_mask:0xf bank_mask:0xf")
        else:
            ins = "v_permlane16_swap_b32" if st == "p16" else "v_permlane32_swap_b32"
            for r, t in zip(regs_, tmps): A(f"v_mov_b32 v{t}, v{r}")
            for r, t in zip(regs_, tmps): A(f"{ins} v{r}, v{t}")
            for r, t in zip(regs_, tmps): A(f"{op} v{r}, v{r}, v{t}")
def unpack(dlo, dhi, src):
    A(f"v_lshlrev_b32 v{dlo}, 16, v{src}\nv_and_b32 v{dhi}, s{sHI}, v{src}")
def setexec(m):
    lo, hi = m & 0xffffffff, (m >> 32) & 0xffffffff
    A(f"s_mov_b32 exec_lo, {lo:#x}\ns_mov_b32 exec_hi, {hi:#x}")
def fullexec(): A("s_mov_b64 exec, -1")
lab = [0]
SLP = f"s_sleep {OPT['slp']}\n" if OPT.get("slp") else ""
NOG = OPT.get("abl") == 2
def newlab(p):
    lab[0] += 1; return f"L_{p}{lab[0]}"
def waitLC(base, sreg=None):
    l = newlab("lc")
    if sreg is None: A(f"s_mov_b32 s{sNeed}, {base}")
    else: A(f"s_add_u32 s{sNeed}, s{sreg}, {base}")
    A(f"{l}:\n{SLP}ds_read_b32 v{vFl}, v{aFL} offset:{LCO}\ns_waitcnt lgkmcnt(0)\nv_cmp_le_i32 vcc, s{sNeed}, v{vFl}\ns_cbranch_vccz {l}")
def signal(stage):
    A(f"v_mov_b32 v{vFl}, {stage}\nds_write_b32 v{aPW}, v{vFl}")
def waitPW(stage):
    l = newlab("pw")
    A(f"{l}:\n{SLP}ds_read_b128 {vr(vFl,4)}, v{aFL}\ns_waitcnt lgkmcnt(0)\nv_min3_i32 v{vFl}, v{vFl}, v{vFl+1}, v{vFl+2}\nv_min_i32 v{vFl}, v{vFl}, v{vFl+3}\nv_cmp_le_i32 vcc, {stage}, v{vFl}\ns_cbranch_vccz {l}")
def waitMW(stage):
    l = newlab("mw")
    A(f"{l}:\n{SLP}ds_read_b64 {vr(vFl,2)}, v{aFL} offset:16\ns_waitcnt lgkmcnt(0)\nv_min_i32 v{vFl}, v{vFl}, v{vFl+1}\nv_cmp_le_i32 vcc, {stage}, v{vFl}\ns_cbranch_vccz {l}")
def LB(stage): signal(stage); waitPW(stage)
def dump_stamps(ws_loaded, pred, retry_slot):
    setexec(1)
    if not ws_loaded: A("s_load_dwordx2 s[4:5], s[0:1], 96")
    else: A(f"s_mov_b32 s4, s{sWS}\ns_mov_b32 s5, s{sWS+1}")
    A(f"s_waitcnt lgkmcnt(0)\ns_lshl_b32 s{sT}, s2, 8\ns_add_u32 s4, s4, s{sT}\ns_addc_u32 s5, s5, 0\ns_add_u32 s4, s4, 0x8000000\ns_addc_u32 s5, s5, 0\nv_mov_b32 v{vS+2}, 0")
    for nm, (i, sl) in slots.items():
        if pred(nm):
            A(f"v_mov_b32 v{vS}, s{STB+2*i}\nv_mov_b32 v{vS+1}, s{STB+2*i+1}\nglobal_store_dwordx2 v{vS+2}, {vr(vS,2)}, s[4:5] offset:{8*sl}\ns_nop 1")
    if retry_slot is not None:
        A(f"v_mov_b32 v{vS}, s{sRetry}\nglobal_store_dword v{vS+2}, v{vS}, s[4:5] offset:{retry_slot}")
DUMP = OPT["stamps"] and "probe" not in OPT
def probe_pad():
    k = slots[STN[0]][0]
    l = newlab("pad")
    A(f"s_waitcnt lgkmcnt(0)\ns_sub_u32 s{sT}, s{STB+2*k}, s{STB}\ns_lshl_b32 s{sT}, s{sT}, 2\ns_add_u32 s{sT}, s{sT}, 2000")
    A(f"{l}:\ns_memrealtime s[4:5]\ns_waitcnt lgkmcnt(0)\ns_sub_u32 s4, s4, s{STB}\ns_cmp_lt_u32 s4, s{sT}\ns_cbranch_scc1 {l}")

stamp("start")
A("s_cmp_ge_u32 s2, 256\ns_cbranch_scc1 L_end")
A(f"s_load_dwordx2 s[{sX}:{sX+1}], s[0:1], 0")
A(f"v_lshrrev_b32 v{vJ}, 6, v0\nv_and_b32 v{vLane}, 63, v0")
A(f"v_readfirstlane_b32 s{sWave}, v{vJ}")
A(f"s_and_b32 s{sx8}, s2, 7\ns_lshr_b32 s{si32}, s2, 3")
A(f"v_lshrrev_b32 v{vG4}, 4, v{vLane}\nv_mov_b32 v{aFL}, {FLG}")
A(f"s_mov_b32 s{sX+2}, 4096\ns_mov_b32 s{sX+3}, 0x20000")
A(f"s_cmp_lg_u32 s{sWave}, 6\ns_cbranch_scc1 L_notloader")
A("s_setprio 3")
for r, off in ((sWQ, 24), (sK, 8), (sV, 16), (sW1, 48), (sWO, 32), (sW2, 64)):
    A(f"s_load_dwordx2 s[{r}:{r+1}], s[0:1], {off}")
lX, lT8, lT7, lT2, lK, lV, lC = vP, vP+1, vP+2, vP+3, vP+4, vP+8, vP+10
A(f"v_lshlrev_b32 v{lX}, 4, v{vLane}")
A(f"v_lshrrev_b32 v{vTmp2}, 3, v{vLane}\nv_and_b32 v{vTmp3}, 7, v{vLane}\nv_lshlrev_b32 v{vS}, 1, v{vG4}\nv_xor_b32 v{vTmp3}, v{vTmp3}, v{vS}\nv_lshlrev_b32 v{vTmp3}, 4, v{vTmp3}")
A(f"v_lshl_add_u32 v{lT8}, v{vTmp2}, 13, v{vTmp3}")
A(f"s_mov_b32 s{sWQ+2}, {1<<23:#x}\ns_mov_b32 s{sWQ+3}, 0x20000")
def qidx(cg, ks, tmp):
    m = OPT.get("qmap", 0)
    if m == 0:
        A(f"s_lshr_b32 s{cg}, s{sx8}, 2\ns_lshl_b32 s{cg}, s{cg}, 5\ns_add_u32 s{cg}, s{cg}, s{si32}\ns_and_b32 s{ks}, s{sx8}, 3")
    elif m == 1:
        A(f"s_lshl_b32 s{cg}, s{sx8}, 3\ns_lshr_b32 s{tmp}, s{si32}, 2\ns_add_u32 s{cg}, s{cg}, s{tmp}\ns_and_b32 s{ks}, s{si32}, 3")
    else:
        A(f"s_lshr_b32 s{cg}, s{sx8}, 1\ns_lshl_b32 s{cg}, s{cg}, 4\ns_and_b32 s{tmp}, s{si32}, 15\ns_add_u32 s{cg}, s{cg}, s{tmp}\ns_and_b32 s{ks}, s{sx8}, 1\ns_lshl_b32 s{ks}, s{ks}, 1\ns_lshr_b32 s{tmp}, s{si32}, 4\ns_add_u32 s{ks}, s{ks}, s{tmp}")
def midx(cg, ks, tmp):
    if OPT.get("mmap", 0) == 0:
        A(f"s_lshr_b32 s{tmp}, s{sx8}, 2\ns_mul_i32 s{cg}, s{tmp}, 28\ns_lshl_b32 s{tmp}, s{tmp}, 2\ns_add_u32 s{tmp}, s{tmp}, 28\ns_cmp_lt_u32 s{si32}, 28\ns_cselect_b32 s{cg}, s{cg}, s{tmp}\ns_add_u32 s{cg}, s{cg}, s{si32}\ns_and_b32 s{ks}, s{sx8}, 3")
    else:
        A(f"s_mul_i32 s{cg}, s{sx8}, 7\ns_lshr_b32 s{tmp}, s{si32}, 2\ns_add_u32 s{cg}, s{cg}, s{tmp}\ns_add_u32 s{tmp}, s{sx8}, 56\ns_cmp_lt_u32 s{si32}, 28\ns_cselect_b32 s{cg}, s{cg}, s{tmp}\ns_and_b32 s{ks}, s{si32}, 3")
qidx(sG, sT3, sT)
A(f"s_lshl_b32 s{sG}, s{sG}, 7\ns_lshl_b32 s{sT}, s{sT3}, 21\ns_add_u32 s{sG}, s{sG}, s{sT}")
Wq = OPT["Wq"]
A(f"s_mov_b32 m0, {XR}\ns_mov_b32 s{sPub}, 0\nv_mov_b32 v{lC}, 0\ns_mov_b32 s{sRetry}, 0")
A(f"ds_write_b32 v{aFL}, v{lC} offset:{LCO}")
A("s_waitcnt lgkmcnt(0)")
stamp("l_karg")
for q in range(4): A(f"buffer_load_dwordx4 v{lX}, {srd(sX)}, 0 offen offset:{1024*q} lds")
curW = [Wq]
def pub():
    A(f"s_add_u32 s{sCnt}, s{sCnt}, 4\ns_max_i32 s{sPub}, s{sPub}, s{sCnt}\nv_mov_b32 v{lC}, s{sPub}\nds_write_b32 v{aFL}, v{lC} offset:{LCO}")
def trans(Wn):
    Wo = curW[0]
    assert Wn % 4 == 0
    if Wn < Wo:
        for k in range(Wo - 4, Wn - 1, -4):
            A(f"s_waitcnt vmcnt({k})"); pub()
    elif Wn > Wo: A(f"s_sub_u32 s{sCnt}, s{sCnt}, {Wn - Wo}")
    curW[0] = Wn
def tile_group(s_, voff, step):
    for q in range(4):
        A(f"s_waitcnt vmcnt({curW[0]-1})")
        A(f"buffer_load_dwordx4 v{voff}, {srd(s_)}, s{sG} offen{NT} lds")
        A(f"s_add_u32 m0, m0, 1024\ns_add_u32 s{sG}, s{sG}, {step}")
    pub()
def loop(n_end, body):
    l = newlab("ld")
    A(f"{l}:"); body()
    A(f"s_cmp_lg_u32 s{sCnt}, {(n_end - curW[0]) & 0xffffffff}\ns_cbranch_scc1 {l}")
npre = min(Wq, 36) // 4 - 1
A(f"s_mov_b32 m0, {S0}\ns_mov_b32 s{sCnt}, {npre}")
A("L_pre:")
for q in range(4):
    A(f"buffer_load_dwordx4 v{lT8}, {srd(sWQ)}, s{sG} offen{NT} lds")
    A(f"s_add_u32 m0, m0, 1024\ns_add_u32 s{sG}, s{sG}, 65536")
A(f"s_sub_u32 s{sCnt}, s{sCnt}, 1\ns_cmp_lg_u32 s{sCnt}, 0\ns_cbranch_scc1 L_pre")
A(f"s_mov_b32 s{sCnt}, {(4 + 4*npre - Wq) & 0xffffffff}")
A("s_barrier")
A(f"v_and_b32 v{vN16}, 15, v{vLane}")
A(f"v_mul_u32_u24 v{lT7}, 7168, v{vTmp2}\nv_add_u32 v{lT7}, v{lT7}, v{vTmp3}\nv_lshl_add_u32 v{lT2}, v{vTmp2}, 11, v{vTmp3}")
A(f"v_lshlrev_b32 v{vTmp2}, 8, v{vG4}\nv_xor_b32 v{vTmp3}, v{vN16}, v{vG4}\nv_lshl_add_u32 v{lK}, v{vTmp3}, 4, v{vTmp2}")
for q in (1, 2, 3): A(f"v_xor_b32 v{lK+q}, {64*q}, v{lK}")
A(f"v_xor_b32 v{vTmp3}, v{vN16}, v{vS}\nv_lshl_add_u32 v{lV}, v{vTmp3}, 4, v{vTmp2}\nv_xor_b32 v{lV+1}, 128, v{lV}")
for r, sz in ((sK, 1 << 25), (sV, 1 << 25), (sWO, 1 << 23)): A(f"s_mov_b32 s{r+2}, {sz:#x}")
for r in (sK, sV, sW1, sWO, sW2): A(f"s_mov_b32 s{r+3}, 0x20000")
A(f"s_cmp_lt_u32 s{si32}, 28\ns_cselect_b32 s{sW1+2}, {1024*7168}, 0\ns_cselect_b32 s{sW2+2}, {3584*2048}, 0")
sKV = sT4
A(f"s_and_b32 s{sKV}, s{sx8}, 1\ns_lshl_b32 s{sKV}, s{sKV}, 2\ns_lshr_b32 s{sT}, s{sx8}, 1\ns_add_u32 s{sKV}, s{sKV}, s{sT}\ns_lshl_b32 s{sKV}, s{sKV}, 22")
if OPT.get("kvtest") == 1: A(f"s_xor_b32 s{sKV}, s{sKV}, {3 << 22}")
if OPT.get("kvtest") == 2: A(f"s_lshr_b32 s{sKV}, s{si32}, 2\ns_lshl_b32 s{sKV}, s{sKV}, 22\ns_and_b32 s{sT}, s{si32}, 3\ns_lshl_b32 s{sT}, s{sT}, 3\ns_add_u32 s{sT}, s{sT}, s{sx8}\ns_lshl_b32 s{sT}, s{sT}, 15")
else: A(f"s_lshl_b32 s{sT}, s{si32}, 15")
A(f"s_add_u32 s{sKV}, s{sKV}, s{sT}\ns_add_u32 s{sKV}, s{sKV}, 0x300000")
midx(sT5, sT3, sT)
A(f"s_lshl_b32 s{sT5}, s{sT5}, 7\ns_mul_i32 s{sT}, s{sT3}, {256*7168}\ns_add_u32 s{sT5}, s{sT5}, s{sT}")
A(f"s_lshl_b32 s{sS}, s{sx8}, 5\ns_add_u32 s{sS}, s{sS}, s{si32}")
A(f"s_mul_i32 s{sCG2}, s{sx8}, 28\ns_add_u32 s{sCG2}, s{sCG2}, s{si32}\ns_lshr_b32 s{sCG2}, s{sCG2}, 2")
if npre < 8: loop(pK, lambda: tile_group(sWQ, lT8, 65536))
def kv_group(s_, voff, nreg):
    for q in range(4):
        A(f"s_waitcnt vmcnt({curW[0]-1})")
        A(f"buffer_load_dwordx4 v{voff + q % nreg}, {srd(s_)}, s{sG} offen offset:{1024*q}{NT} lds")
    A(f"s_add_u32 m0, m0, 4096\ns_add_u32 s{sG}, s{sG}, 4096")
    pub()
stamp("l_pre")
trans(OPT["Wk"])
stamp("l_tk")
A(f"s_mov_b32 s{sG}, s{sKV}")
loop(pV, lambda: kv_group(sK, lK, 4))
stamp("l_K")
trans(OPT["Wv"])
A(f"s_mov_b32 s{sG}, s{sKV}")
loop(pW1, lambda: kv_group(sV, lV, 2))
stamp("l_V")
trans(OPT["W1"])
A(f"s_mov_b32 s{sG}, s{sT5}")
loop(pWO, lambda: tile_group(sW1, lT7, 8*7168))
stamp("l_W1")
def fin_group(s_):
    A(f"s_mov_b32 m0, s{sM}\ns_mov_b32 s{sG}, s{sT}")
    for q in range(4):
        A(f"s_waitcnt vmcnt({curW[0]-1})")
        A(f"buffer_load_dwordx4 v{lT2}, {srd(s_)}, s{sG} offen{NT} lds")
        if q < 3: A(f"s_add_u32 m0, m0, 1024\ns_add_u32 s{sG}, s{sG}, 16384")
    A(f"s_add_u32 s{sM}, s{sM}, 8192\ns_add_u32 s{sT}, s{sT}, 128")
    pub()
def fin(s_, slot, p0, basecode):
    A(basecode)
    A(f"s_mov_b32 s{sM}, {slot}")
    loop(p0 + 16, lambda: fin_group(s_))
    A(f"s_mov_b32 s{sM}, {slot + 4096}\ns_add_u32 s{sT}, s{sT}, {65536 - 512}")
    loop(p0 + 32, lambda: fin_group(s_))
trans(OPT["Wo"])
waitPW(1)
A(f"s_and_b32 s{sT2}, s{si32}, 3\ns_lshl_b32 s{sT2}, s{sT2}, 9")
fin(sWO, S0, pWO, f"s_lshr_b32 s{sT}, s{sS}, 2\ns_lshl_b32 s{sT}, s{sT}, 17\ns_add_u32 s{sT}, s{sT}, s{sT2}")
stamp("l_WO")
trans(OPT["W2"])
waitPW(2)
fin(sW2, S1, pW2, f"s_lshl_b32 s{sT}, s{sCG2}, 17\ns_add_u32 s{sT}, s{sT}, s{sT2}")
stamp("l_W2")
trans(0)
stamp("l_end")
if DUMP: dump_stamps(False, lambda n: n.startswith("l_"), None)
if "probe" in OPT and STN[0].startswith("l_"): probe_pad()
A("s_endpgm")
nst[0] = 1 if OPT["stamps"] else 0
A("L_notloader:")
for r, off in ((sWS, 96), (sB1, 56), (sB2, 72), (sOUT, 80)):
    A(f"s_load_dwordx2 s[{r}:{r+1}], s[0:1], {off}")
j = vJ
A(f"v_lshl_add_u32 v{aPW}, v{j}, 2, v{aFL}")
A(f"s_cmp_lt_u32 s{sWave}, 2\ns_cselect_b32 s{sT}, 1, 0\nv_mov_b32 v{vFl}, s{sT}\nds_write_b32 v{aPW}, v{vFl}")
A(f"v_and_b32 v{vN16}, 15, v{vLane}")
A(f"s_cmp_lt_u32 s{si32}, 28\ns_cselect_b32 s{sAct}, 1, 0\ns_cselect_b32 s{sB1+2}, 7168, 0")
A(f"s_mov_b32 s{sB2+2}, 2048\ns_mov_b32 s{sOUT+2}, 4096\ns_mov_b32 s{sWS+2}, {WSSZ:#x}")
for r in (sB1, sB2, sOUT, sWS): A(f"s_mov_b32 s{r+3}, 0x20000")
A(f"s_mov_b32 s{sHI}, 0xffff0000\ns_mov_b32 s{sC63}, 63\ns_mov_b32 s{sRetry}, 0\ns_mov_b32 s{sSpin}, {OPT['spin']}")
A(f"s_lshl_b32 s{sS}, s{sx8}, 5\ns_add_u32 s{sS}, s{sS}, s{si32}")
A("s_waitcnt lgkmcnt(0)\ns_barrier")
if OPT.get("abl") == 1:
    A(f"v_mov_b32 v{vFl}, 100\nds_write_b32 v{aPW}, v{vFl}\ns_cmp_eq_u32 s{sWave}, 0\ns_cbranch_scc1 L_done\ns_endpgm")
A(f"s_load_dword s{sT32}, s[{sWS}:{sWS+1}], 0")
r_, c4 = vTmp2, vTmp3
t0, t1, t2 = vS, vS+1, vS+2
A(f"v_lshrrev_b32 v{r_}, 2, v{vN16}\nv_and_b32 v{c4}, 3, v{vN16}\nv_lshlrev_b32 v{c4}, 3, v{c4}")
A(f"v_lshl_add_u32 v{r_}, v{vG4}, 2, v{r_}")
A(f"v_bfe_u32 v{t1}, v{r_}, 1, 2")
A(f"v_lshl_add_u32 v{aW}, v{r_}, 7, v{c4}\nv_lshl_add_u32 v{aW}, v{t1}, 5, v{aW}")
A(f"s_cmp_lt_u32 s{sWave}, 2\ns_cbranch_scc1 L_attn")
A(f"s_and_b32 s{sT}, s{sWave}, 1\ns_lshl_b32 s{sT}, s{sT}, 6\nv_xor_b32 v{aPj}, s{sT}, v{aW}")
A(f"s_cmp_lt_u32 s{sWave}, 4\ns_cselect_b32 s{sT2}, {S0}, {S3}\ns_cselect_b32 s{sPB}, {pWQ}, {pW1}\ns_cselect_b32 s{sT3}, 0, {YN-XN}\ns_cselect_b32 s{sT4}, 1, 0\ns_cselect_b32 s{sT5}, 14, 8")
A(f"s_add_u32 s{sT3}, s{sT3}, {XN}")
A(f"v_add_u32 v{aPj}, s{sT2}, v{aPj}\nv_xor_b32 v{aPj+1}, 32, v{aPj}\nv_mov_b32 v{vSig}, s{sT4}")
A(f"v_and_b32 v{t0}, 1, v{vN16}\nv_lshlrev_b32 v{t1}, 3, v{vG4}\nv_lshl_add_u32 v{aXB}, v{t0}, 9, v{t1}\nv_add_u32 v{aXB}, s{sT3}, v{aXB}")
A(f"v_lshlrev_b32 v{vPub}, s{sT5}, v{t0}\nv_lshl_add_u32 v{vPub}, v{t1}, 1, v{vPub}\nv_bfe_u32 v{t0}, v{vN16}, 1, 1\nv_lshl_add_u32 v{vPub}, v{t0}, 6, v{vPub}\ns_lshl_b32 s{sT}, s{sT}, 1\nv_add_u32 v{vPub}, s{sT}, v{vPub}")
A(f"v_lshrrev_b32 v{t1}, 5, v{vLane}\nv_and_b32 v{t2}, 31, v{vLane}\nv_lshlrev_b32 v{t2}, 4, v{t2}")
A(f"v_lshl_add_u32 v{aXW}, v{t1}, 9, v{t2}\nv_add_u32 v{aXW}, s{sT3}, v{aXW}\nv_lshl_add_u32 v{t2}, v{t1}, 11, v{t2}")
sCGp, sKSp = sCnt, sG
qidx(sCGp, sKSp, sT)
A(f"s_cmp_lt_u32 s{sWave}, 4\ns_cbranch_scc1 L_isq")
midx(sCGp, sKSp, sT)
A("L_isq:")
for t in range(4):
    A(f"s_add_u32 s{sT}, s{sKSp}, {t}\ns_and_b32 s{sT}, s{sT}, 3\ns_lshl_b32 s{sT}, s{sT}, 9\ns_add_u32 s{sT}, s{sT}, {XR}\nv_add_u32 v{vXB+t}, s{sT}, v{t2}")
A(f"s_mov_b32 s{sMk}, 0x0c0c0c0c\ns_mov_b32 s{sMk+1}, 0x0c0c0c0c")
waitLC(pX + 4)
for t in range(4): A(f"ds_read_b128 {vr(vP+4*t,4)}, v{vXB+t}")
stamp("x")
A("s_waitcnt lgkmcnt(0)")
A(f"s_add_u32 s{sT32}, s{sT32}, 1\ns_and_b32 s{sT6}, s{sT32}, 63")
A(f"s_call_b64 s[{sRA}:{sRA+1}], L_ln")
A(f"s_cmp_lt_u32 s{sWave}, 4\ns_cbranch_scc0 L_mlp")
A(f"s_lshr_b32 s{sT3}, s{sCGp}, 4\ns_lshl_b32 s{sT3}, s{sT3}, 15\ns_and_b32 s{sT}, s{sCGp}, 15\ns_lshl_b32 s{sT}, s{sT}, 8\ns_add_u32 s{sT3}, s{sT3}, s{sT}")
A(f"s_lshl_b32 s{sT}, s{sKSp}, 12\ns_add_u32 s{sT3}, s{sT3}, s{sT}\ns_add_u32 s{sT3}, s{sT3}, {P1:#x}")
stamp("ln1")
A(f"s_call_b64 s[{sRA}:{sRA+1}], L_proj")
stamp("S1")
A("s_branch L_attn2")
A("L_mlp:")
def norm(q):
    a0, mean = vS, vS+6
    for i in range(4*q, 4*q+4): A(f"v_pk_add_f32 {vr(vU+2*i,2)}, {vr(vU+2*i,2)}, {vr(mean,2)} op_sel_hi:[1,0] neg_lo:[0,1] neg_hi:[0,1]")
    for i in range(4*q, 4*q+4): A(f"v_cvt_pk_bf16_f32 v{vP+i}, v{vU+2*i}, v{vU+2*i+1}")
    for i in range(4*q, 4*q+4): unpack(vU+2*i, vU+2*i+1, vP+i)
    for i in range(4*q, 4*q+4): A(f"v_pk_mul_f32 {vr(vU+2*i,2)}, {vr(vU+2*i,2)}, {vr(a0,2)} op_sel_hi:[1,0]")
    for i in range(4*q, 4*q+4): A(f"v_cvt_pk_bf16_f32 v{vP+i}, v{vU+2*i}, v{vU+2*i+1}")
mlp_first = nst[0]
for q in (1, 2, 3): norm(q)
A(f"s_call_b64 s[{sRA}:{sRA+1}], L_ln")
A(f"s_mul_i32 s{sCG2}, s{sx8}, 28\ns_add_u32 s{sCG2}, s{sCG2}, s{si32}\ns_lshr_b32 s{sCG2}, s{sCG2}, 2\ns_add_u32 s{sT}, s{sx8}, 56\ns_cmp_lg_u32 s{sAct}, 0\ns_cselect_b32 s{sCG2}, s{sCG2}, s{sT}")
A(f"s_lshl_b32 s{sT3}, s{sCGp}, 11\ns_lshl_b32 s{sT}, s{sKSp}, 9\ns_add_u32 s{sT3}, s{sT3}, s{sT}\ns_add_u32 s{sT3}, s{sT3}, {P4:#x}")
vG4o, vB1o, aHW = vG2, vG3, aOLW
A(f"s_and_b32 s{sT}, s{sWave}, 1\ns_lshl_b32 s{sT2}, s{sT}, 8\nv_lshlrev_b32 v{vB1o}, 3, v{vN16}\nv_lshlrev_b32 v{vG4o}, 9, v{vG4}\nv_lshl_add_u32 v{vG4o}, v{vN16}, 4, v{vG4o}\nv_add_u32 v{vG4o}, s{sT2}, v{vG4o}")
A(f"s_lshl_b32 s{sT}, s{sT}, 7\ns_add_u32 s{sT}, s{sT}, {HL}\nv_add_u32 v{aHW}, s{sT}, v{vB1o}\ns_lshl_b32 s{sT}, s{sCG2}, 7")
A(f"buffer_load_dwordx2 {vr(vSm,2)}, v{vB1o}, {srd(sB1)}, s{sT} offen")
stamp("m_ln2")
A(f"s_call_b64 s[{sRA}:{sRA+1}], L_proj")
stamp("m_S4")
A(f"s_lshl_b32 s{sT}, s{sCG2}, 11\ns_add_u32 s{sT}, s{sT}, {P4:#x}")
waitLC(OPT["g4"])
A("s_waitcnt vmcnt(0)")
stamp("m_g4i")
def g4():
  if not NOG: A(f"buffer_load_dwordx4 {vr(vG,4)}, v{vG4o}, {srd(sWS)}, s{sT} offen sc1")
g4()
unpack(vU+8, vU+9, vSm); unpack(vU+10, vU+11, vSm+1)
A("s_waitcnt vmcnt(0)")
def chk6(base, n, name, reissue, inc):
    A(f"L_{name}chk:")
    for r in range(n): A(f"v_xor_b32 v{base+r}, s{sT6}, v{base+r}")
    A(f"v_or3_b32 v{vS}, v{base}, v{base+1}, v{base+2}")
    r = 3
    while r + 1 < n:
        A(f"v_or3_b32 v{vS}, v{vS}, v{base+r}, v{base+r+1}"); r += 2
    if r < n: A(f"v_or_b32 v{vS}, v{vS}, v{base+r}")
    A(f"v_and_b32 v{vS}, 63, v{vS}\nv_cmp_ne_u32 vcc, 0, v{vS}\n" + ("s_branch" if NOG else "s_cbranch_vccz") + f" L_{name}ok")
    A(f"s_add_u32 s{sRetry}, s{sRetry}, {inc}\ns_sub_u32 s{sSpin}, s{sSpin}, 1\ns_cbranch_scc1 L_bail")
    reissue()
    A(f"s_waitcnt vmcnt(0)\ns_branch L_{name}chk")
    A(f"L_{name}ok:")
chk6(vG, 4, "g4", g4, 0x10000)
stamp("m_g4ok")
vH = vG
allred([vH, vH+1, vH+2, vH+3], "v_add_f32", ["p16", "p32"], [vH+4, vH+5, vH+6, vH+7])
A(f"v_cvt_pk_bf16_f32 v{vH+4}, v{vH}, v{vH+1}\nv_cvt_pk_bf16_f32 v{vH+5}, v{vH+2}, v{vH+3}")
unpack(vH, vH+1, vH+4); unpack(vH+2, vH+3, vH+5)
for r in (0, 2): A(f"v_pk_add_f32 {vr(vH+r,2)}, {vr(vH+r,2)}, {vr(vU+8+r,2)}")
A(f"v_cvt_pk_bf16_f32 v{vH+4}, v{vH}, v{vH+1}\nv_cvt_pk_bf16_f32 v{vH+5}, v{vH+2}, v{vH+3}")
unpack(vH, vH+1, vH+4); unpack(vH+2, vH+3, vH+5)
for r in range(4): A(f"v_mul_f32 v{vH+4+r}, v{vH+r}, v{vH+r}")
for r in range(4): A(f"v_mul_f32 v{vH+4+r}, 0xbdd2d3e8, v{vH+4+r}")
for r in range(4): A(f"v_add_f32 v{vH+4+r}, 0xc0135761, v{vH+4+r}")
for r in range(4): A(f"v_mul_f32 v{vH+4+r}, v{vH+r}, v{vH+4+r}")
for r in range(4): A(f"v_exp_f32 v{vH+4+r}, v{vH+4+r}")
for r in range(4): A(f"v_add_f32 v{vH+4+r}, 1.0, v{vH+4+r}")
for r in range(4): A(f"v_rcp_f32 v{vH+4+r}, v{vH+4+r}")
for r in range(4): A(f"v_mul_f32 v{vH+r}, v{vH+r}, v{vH+4+r}")
A(f"v_cvt_pk_bf16_f32 v{vH}, v{vH}, v{vH+1}\nv_cvt_pk_bf16_f32 v{vH+1}, v{vH+2}, v{vH+3}")
setexec(0xffff)
A(f"ds_write_b64 v{aHW}, {vr(vH,2)}")
signal(1)
stamp("m_h")
if DUMP:
    A(f"s_cmp_lg_u32 s{sWave}, 4\ns_cbranch_scc1 L_end"); dump_stamps(True, lambda n: n.startswith("m_"), 8*31+4)
if "probe" in OPT and STN[0].startswith("m_"): probe_pad()
A("s_endpgm")
nst[0] = mlp_first
A("L_attn:")
A("s_waitcnt lgkmcnt(0)")
A(f"s_add_u32 s{sT32}, s{sT32}, 1\ns_and_b32 s{sT6}, s{sT32}, 63")
A("L_attn2:")
A(f"s_lshl_b32 s{sW4}, s{sWave}, 2\ns_add_u32 s{sW4}, s{sW4}, 4\ns_lshl_b32 s{sW8}, s{sW4}, 1")
A(f"v_lshl_add_u32 v{aW}, v{j}, 13, v{aW}")
for ct in (1, 2, 3): A(f"v_xor_b32 v{aW+ct}, {32*ct}, v{aW}")
A(f"v_and_b32 v{t1}, 7, v{r_}\nv_lshlrev_b32 v{t2}, 1, v{j}\nv_xor_b32 v{t1}, v{t1}, v{t2}\nv_lshl_add_u32 v{aV}, v{r_}, 8, v{c4}\nv_lshl_add_u32 v{aV}, v{t1}, 5, v{aV}\nv_add_u32 v{aV}, {S2}, v{aV}\nv_xor_b32 v{aV+1}, 32, v{aV}")
A(f"v_xor_b32 v{t1}, v{vG4}, v{vN16}\nv_lshlrev_b32 v{t1}, 4, v{t1}\nv_lshl_add_u32 v{t1}, v{vN16}, 8, v{t1}\nv_lshl_add_u32 v{t1}, v{j}, 13, v{t1}\nv_add_u32 v{aK}, {S1}, v{t1}")
for s_ in (1, 2, 3): A(f"v_xor_b32 v{aK+s_}, {64*s_}, v{aK}")
A(f"v_and_b32 v{t1}, 7, v{vN16}\nv_mul_u32_u24 v{aQ}, 272, v{t1}\nv_lshl_add_u32 v{aQ}, v{vG4}, 4, v{aQ}\nv_add_u32 v{aQ}, {QL}, v{aQ}")
A(f"v_lshlrev_b32 v{aMLR}, 3, v{t1}\nv_add_u32 v{aMLR}, {ML}, v{aMLR}\nv_lshl_add_u32 v{aMLW}, v{j}, 6, v{aMLR}")
A(f"v_lshlrev_b32 v{vS2o}, 9, v{t1}\nv_lshl_add_u32 v{vS2o}, v{j}, 7, v{vS2o}\nv_lshrrev_b32 v{t1}, 3, v{vN16}\nv_lshl_add_u32 v{vS2o}, v{t1}, 6, v{vS2o}\nv_lshl_add_u32 v{vS2o}, v{vG4}, 4, v{vS2o}")
A(f"v_lshlrev_b32 v{vG1}, 4, v0\nv_add_u32 v{aPXW}, {PX}, v{vG1}\nv_lshlrev_b32 v{aPXR}, 4, v{vLane}\nv_add_u32 v{aPXR}, {PX}, v{aPXR}")
A(f"v_lshrrev_b32 v{t1}, 5, v0\nv_and_b32 v{t2}, 31, v0\nv_mul_u32_u24 v{aQW}, 272, v{t1}\nv_lshl_add_u32 v{aQW}, v{t2}, 3, v{aQW}\nv_add_u32 v{aQW}, {QL}, v{aQW}")
A(f"v_and_b32 v{t0}, 3, v{vLane}\nv_lshlrev_b32 v{t0}, 4, v{t0}\nv_lshl_add_u32 v{t0}, v{j}, 6, v{t0}\nv_lshrrev_b32 v{t1}, 5, v{vLane}\nv_bfe_u32 v{t2}, v{vLane}, 2, 3")
A(f"v_lshl_add_u32 v{vG2}, v{t1}, 17, v{t0}\nv_lshl_add_u32 v{vG2}, v{t2}, 14, v{vG2}")
A(f"v_lshrrev_b32 v{aOLW}, 1, v{t0}\nv_lshl_add_u32 v{aOLW}, v{t1}, 7, v{aOLW}\nv_add_u32 v{aOLW}, {OL}, v{aOLW}")
A(f"v_and_b32 v{t1}, 1, v{vLane}\nv_lshlrev_b32 v{aOLR}, 3, v{vG4}\nv_lshl_add_u32 v{aOLR}, v{t1}, 7, v{aOLR}\nv_add_u32 v{aOLR}, {OL}, v{aOLR}")
A(f"v_lshlrev_b32 v{vOo}, 3, v{t1}\nv_lshlrev_b32 v{vP3}, 10, v{t1}\nv_lshl_add_u32 v{vP3}, v{j}, 8, v{vP3}\nv_lshl_add_u32 v{vP3}, v{vG4}, 4, v{vP3}")
A(f"v_bfe_u32 v{t2}, v{vLane}, 1, 2\nv_lshl_add_u32 v{vP3}, v{t2}, 6, v{vP3}")
A(f"v_lshrrev_b32 v{t2}, 1, v{vLane}\nv_lshlrev_b32 v{vG3}, 4, v{t1}\nv_lshl_add_u32 v{vG3}, v{t2}, 11, v{vG3}")
for i, mk in enumerate((0x0c0c0c0c, 0x30303030, 0xc0c0c0c0)):
    A(f"s_mov_b32 s{sMk+2*i}, {mk:#x}\ns_mov_b32 s{sMk+2*i+1}, {mk:#x}")
sOo = sM
A(f"s_lshr_b32 s{sT}, s{sS}, 6\ns_lshl_b32 s{sT}, s{sT}, 9\ns_and_b32 s{sT2}, s{sS}, 31\ns_lshl_b32 s{sT2}, s{sT2}, 4\ns_add_u32 s{sT}, s{sT}, s{sT2}")
A(f"s_bfe_u32 s{sT2}, s{sS}, {5 | (1 << 16):#x}\ns_lshl_b32 s{sT2}, s{sT2}, 11\ns_add_u32 s{sOo}, s{sT}, s{sT2}")
A(f"s_cmp_lg_u32 s{sWave}, 0\ns_cbranch_scc1 L_nosm")
A(f"buffer_load_dwordx2 {vr(vSm,2)}, v{vOo}, {srd(sX)}, s{sOo} offen")
A(f"buffer_load_dwordx2 {vr(vSm+2,2)}, v{vOo}, {srd(sB2)}, s{sT} offen")
A("L_nosm:")
A(f"s_lshl_b32 s{sT}, s{sx8}, 14\ns_add_u32 s{sT}, s{sT}, {P1:#x}\ns_add_u32 s{sT2}, s{sT}, 4096\ns_add_u32 s{sT3}, s{sT}, 8192\ns_add_u32 s{sT4}, s{sT}, 12288")
def g1():
    if NOG: return
    for k, so in enumerate((sT, sT2, sT3, sT4)):
        A(f"buffer_load_dwordx4 {vr(vG+4*k,4)}, v{vG1}, {srd(sWS)}, s{so} offen sc1")
waitLC(pK, sW8)
for T in range(2):
    for s_ in range(4): A(f"ds_read_b128 {vr(vKF+16*T+4*s_,4)}, v{aK+s_} offset:{4096*T}")
signal(2)
waitLC(OPT["g1"])
stamp("g1i")
g1()
A(f"s_mov_b32 s{sG}, 0x3db504f3\ns_mov_b32 s{sG+1}, 0x3fb8aa3b\nv_mov_b32 v{vS+4}, s{sG}\nv_mov_b32 v{vS+6}, s{sG+1}")
A("s_waitcnt vmcnt(0)")
stamp("g1a")
chk6(vG, 16, "g1", g1, 1)
stamp("g1ok")
for r in (0, 2): A(f"v_pk_add_f32 {vr(vG+r,2)}, {vr(vG+r,2)}, {vr(vG+4+r,2)}\nv_pk_add_f32 {vr(vG+8+r,2)}, {vr(vG+8+r,2)}, {vr(vG+12+r,2)}")
for r in (0, 2): A(f"v_pk_add_f32 {vr(vG+r,2)}, {vr(vG+r,2)}, {vr(vG+8+r,2)}")
A(f"v_cvt_pk_bf16_f32 v{vG}, v{vG}, v{vG+1}\nv_cvt_pk_bf16_f32 v{vG+1}, v{vG+2}, v{vG+3}")
A(f"ds_write_b64 v{aQW}, {vr(vG,2)}")
LB(3)
stamp("lb3")
for s_ in range(4): A(f"ds_read_b128 {vr(vQ+4*s_,4)}, v{aQ} offset:{64*s_}")
for s_ in range(4):
    A(f"s_waitcnt lgkmcnt({3-s_})")
    for T in range(2):
        c = "0" if s_ == 0 else vr(vU+4*T, 4)
        A(f"v_mfma_f32_16x16x32_bf16 {vr(vU+4*T,4)}, {vr(vKF+16*T+4*s_,4)}, {vr(vQ+4*s_,4)}, {c}")
vM, vL = vS, vS+1
for p in range(4): A(f"v_cvt_pk_bf16_f32 v{vU+8+p}, v{vU+2*p}, v{vU+2*p+1}")
for p in range(4): unpack(vU+2*p, vU+2*p+1, vU+8+p)
for p in range(4): A(f"v_pk_mul_f32 {vr(vU+2*p,2)}, {vr(vU+2*p,2)}, {vr(vS+4,2)} op_sel_hi:[1,0]")
for p in range(4): A(f"v_cvt_pk_bf16_f32 v{vU+8+p}, v{vU+2*p}, v{vU+2*p+1}")
for p in range(4): unpack(vU+2*p, vU+2*p+1, vU+8+p)
A(f"v_max3_f32 v{vM}, v{vU}, v{vU+1}, v{vU+2}\nv_max3_f32 v{vS+2}, v{vU+3}, v{vU+4}, v{vU+5}\nv_max3_f32 v{vM}, v{vM}, v{vU+6}, v{vU+7}\nv_max_f32 v{vM}, v{vM}, v{vS+2}")
allred(vM, "v_max_f32", ["p16", "p32"], vS+2)
A(f"v_mul_f32 v{vM}, v{vM}, v{vS+6}")
for p in range(4): A(f"v_pk_fma_f32 {vr(vU+2*p,2)}, {vr(vU+2*p,2)}, {vr(vS+6,2)}, {vr(vM,2)} op_sel_hi:[1,0,0] neg_lo:[0,0,1] neg_hi:[0,0,1]")
for r in range(8): A(f"v_exp_f32 v{vU+r}, v{vU+r}")
for p in range(4): A(f"v_cvt_pk_bf16_f32 v{vU+8+p}, v{vU+2*p}, v{vU+2*p+1}")
A(f"ds_write_b128 v{aPXW}, {vr(vU+8,4)}")
A(f"v_pk_add_f32 {vr(vU,2)}, {vr(vU,2)}, {vr(vU+2,2)}\nv_pk_add_f32 {vr(vU+4,2)}, {vr(vU+4,2)}, {vr(vU+6,2)}\nv_pk_add_f32 {vr(vU,2)}, {vr(vU,2)}, {vr(vU+4,2)}\nv_add_f32 v{vL}, v{vU}, v{vU+1}")
allred(vL, "v_add_f32", ["p16", "p32"], vS+2)
A(f"ds_write_b64 v{aMLW}, {vr(vM,2)}")
signal(4)
stamp("sm")
waitLC(pW1)
for w in range(4):
    for d in range(2):
        f = vF + 8*w + 4*d
        A(f"ds_read_b64_tr_b16 {vr(f,2)}, v{aV+d} offset:{8192*w}\nds_read_b64_tr_b16 {vr(f+2,2)}, v{aV+d} offset:{8192*w + 4096}")
A(f"s_lshl_b32 s{sT}, s{sS}, 12\ns_add_u32 s{sT}, s{sT}, {P2:#x}")
waitPW(4)
stamp("lb4")
for w in range(4): A(f"ds_read_b128 {vr(vQ+4*w,4)}, v{aPXR} offset:{1024*w}")
for w in range(4): A(f"ds_read_b64 {vr(vU+16+2*w,2)}, v{aMLR} offset:{64*w}")
for w in range(4):
    A(f"s_waitcnt lgkmcnt({7-w})")
    for d in range(2):
        A(f"v_mfma_f32_16x16x32_bf16 {vr(vAcc+8*w+4*d,4)}, {vr(vF+8*w+4*d,4)}, {vr(vQ+4*w,4)}, 0")
A("s_waitcnt lgkmcnt(0)")
m = lambda w: vU + 16 + 2*w
A(f"v_max3_f32 v{vM}, v{m(0)}, v{m(1)}, v{m(2)}\nv_max_f32 v{vM}, v{vM}, v{m(3)}")
for w in range(4): A(f"v_sub_f32 v{m(w)}, v{m(w)}, v{vM}")
for w in range(4): A(f"v_exp_f32 v{m(w)}, v{m(w)}")
A(f"v_mul_f32 v{vL}, v{m(0)}, v{m(0)+1}")
for w in range(1, 4): A(f"v_fmac_f32 v{vL}, v{m(w)}, v{m(w)+1}")
A(f"v_rcp_f32 v{vS+2}, v{vL}\nv_log_f32 v{vS+3}, v{vL}")
for h in (0, 2, 4, 6): A(f"v_pk_mul_f32 {vr(vAcc+h,2)}, {vr(vAcc+h,2)}, {vr(m(0),2)} op_sel_hi:[1,0]")
for w in range(1, 4):
    for h in (0, 2, 4, 6): A(f"v_pk_fma_f32 {vr(vAcc+h,2)}, {vr(vAcc+8*w+h,2)}, {vr(m(w),2)}, {vr(vAcc+h,2)} op_sel_hi:[1,0,1]")
A(f"s_mov_b32 vcc_lo, 0xff00ff00\ns_mov_b32 vcc_hi, 0xff00ff00")
for r in range(4): A(f"v_cndmask_b32 v{vAcc+r}, v{vAcc+r}, v{vAcc+4+r}, vcc")
for h in (0, 2): A(f"v_pk_mul_f32 {vr(vAcc+h,2)}, {vr(vAcc+h,2)}, {vr(vS+2,2)} op_sel_hi:[1,0]")
A(f"v_cvt_pk_bf16_f32 v{vU}, v{vAcc}, v{vAcc+1}\nv_cvt_pk_bf16_f32 v{vU+1}, v{vAcc+2}, v{vAcc+3}\nv_add_f32 v{vU+2}, v{vM}, v{vS+3}\nv_mov_b32 v{vU+3}, s{sT32}")
if OPT.get("s2") == 1: A(f"buffer_store_dwordx4 {vr(vU,4)}, v{vG1}, {srd(sWS)}, s{sT} offen sc1")
elif OPT.get("s2") == 2: pass
elif OPT.get("s2") == 3: A(f"buffer_store_dwordx4 {vr(vU,4)}, v{vG1}, {srd(sWS)}, s{sT} offen")
else: A(f"buffer_store_dwordx4 {vr(vU,4)}, v{vS2o}, {srd(sWS)}, s{sT} offen sc1")
stamp("S2")
A(f"s_lshr_b32 s{sT}, s{sx8}, 1\ns_lshl_b32 s{sT}, s{sT}, 18\ns_bfe_u32 s{sT2}, s{sS}, {2 | (4 << 16):#x}\ns_lshl_b32 s{sT2}, s{sT2}, 8\ns_add_u32 s{sT}, s{sT}, s{sT2}\ns_add_u32 s{sT}, s{sT}, {P2:#x}")
A(f"s_add_u32 s{sT2}, s{sT}, 4096\ns_add_u32 s{sT3}, s{sT}, 8192\ns_add_u32 s{sT4}, s{sT}, 12288")
def g2():
    if NOG: return
    for k, so in enumerate((sT, sT2, sT3, sT4)):
        A(f"buffer_load_dwordx4 {vr(vG+4*k,4)}, v{vG2}, {srd(sWS)}, s{so} offen sc1")
def frag_reads(fb, base, k):
    for ct in range(4):
        f = fb + 16*k + 4*ct
        A(f"ds_read_b64_tr_b16 {vr(f,2)}, v{aW+ct} offset:{base + 4096*k}")
        A(f"ds_read_b64_tr_b16 {vr(f+2,2)}, v{aW+ct} offset:{base + 4096*k + 2048}")
def mfmas(fb, xb, k, first, wait=None):
    for ct in range(4):
        f = fb + 16*k + 4*ct
        if wait is not None: A(f"s_waitcnt lgkmcnt({wait + 6 - 2*ct})")
        c = "0" if first else vr(vAcc+4*ct, 4)
        A(f"v_mfma_f32_16x16x32_bf16 {vr(vAcc+4*ct,4)}, {vr(f,4)}, {vr(xb+4*k,4)}, {c}")
waitLC(OPT["g2"])
A("s_waitcnt vmcnt(0)")
stamp("g2i")
g2()
waitLC(pWO + 16, sW4)
frag_reads(vF, S0, 0); frag_reads(vF, S0, 1)
A("s_waitcnt vmcnt(0)")
stamp("g2a")
A("L_g2chk:")
for k in range(4): A(f"v_xor_b32 v{vG+4*k+3}, s{sT32}, v{vG+4*k+3}")
A(f"v_or3_b32 v{vS}, v{vG+3}, v{vG+7}, v{vG+11}\nv_or_b32 v{vS}, v{vS}, v{vG+15}\nv_cmp_ne_u32 vcc, 0, v{vS}\n" + ("s_branch" if NOG else "s_cbranch_vccz") + " L_g2ok")
A(f"s_add_u32 s{sRetry}, s{sRetry}, 0x100\ns_sub_u32 s{sSpin}, s{sSpin}, 1\ns_cbranch_scc1 L_bail")
g2()
A("s_waitcnt vmcnt(0)\ns_branch L_g2chk\nL_g2ok:")
stamp("g2ok")
ls = lambda k: vG + 4*k + 2
A(f"v_max3_f32 v{vM}, v{ls(0)}, v{ls(1)}, v{ls(2)}\nv_max_f32 v{vM}, v{vM}, v{ls(3)}")
for k in range(2):
    unpack(vU+4*k, vU+4*k+1, vG+4*k); unpack(vU+4*k+2, vU+4*k+3, vG+4*k+1)
    allred(vM, "v_max_f32", [["r4"], ["r8"]][k], None)
A(f"v_mov_b32 v{vS+2}, v{vM}")
unpack(vU+8, vU+9, vG+8)
A(f"v_permlane16_swap_b32 v{vM}, v{vS+2}")
unpack(vU+10, vU+11, vG+9)
A(f"v_max_f32 v{vM}, v{vM}, v{vS+2}")
for k in range(4): A(f"v_sub_f32 v{ls(k)}, v{ls(k)}, v{vM}")
for k in range(4): A(f"v_exp_f32 v{ls(k)}, v{ls(k)}")
unpack(vU+12, vU+13, vG+12); unpack(vU+14, vU+15, vG+13)
A(f"v_add_f32 v{vL}, v{ls(0)}, v{ls(1)}\nv_add_f32 v{vS+2}, v{ls(2)}, v{ls(3)}\nv_add_f32 v{vL}, v{vL}, v{vS+2}")
for h in (0, 2): A(f"v_pk_mul_f32 {vr(vU+h,2)}, {vr(vU+h,2)}, {vr(ls(0),2)} op_sel_hi:[1,0]")
for k in range(1, 4):
    for h in (0, 2): A(f"v_pk_fma_f32 {vr(vU+h,2)}, {vr(vU+4*k+h,2)}, {vr(ls(k),2)}, {vr(vU+h,2)} op_sel_hi:[1,0,1]")
allred([vL, vU, vU+1, vU+2, vU+3], "v_add_f32", ["r4", "r8", "p16"], [vU+4, vU+5, vU+6, vU+7, vU+8])
A(f"v_rcp_f32 v{vS+2}, v{vL}")
for h in (0, 2): A(f"v_pk_mul_f32 {vr(vU+h,2)}, {vr(vU+h,2)}, {vr(vS+2,2)} op_sel_hi:[1,0]")
A(f"v_cvt_pk_bf16_f32 v{vU}, v{vU}, v{vU+1}\nv_cvt_pk_bf16_f32 v{vU+1}, v{vU+2}, v{vU+3}")
setexec(0x0000000f0000000f)
A(f"ds_write_b64 v{aOLW}, {vr(vU,2)}")
fullexec()
LB(5)
stamp("lb5")
A(f"ds_read2_b64 {vr(vQ,4)}, v{aOLR} offset0:0 offset1:4\nds_read2_b64 {vr(vQ+4,4)}, v{aOLR} offset0:8 offset1:12")
A(f"s_and_b32 s{sT}, s{sS}, 3\ns_lshl_b32 s{sT}, s{sT}, 17\ns_lshr_b32 s{sT2}, s{sS}, 2\ns_lshl_b32 s{sT2}, s{sT2}, 11\ns_add_u32 s{sT}, s{sT}, s{sT2}\ns_add_u32 s{sT}, s{sT}, {P3:#x}\nv_mov_b32 v{vS}, s{sT6}")
A("s_waitcnt lgkmcnt(1)")
mfmas(vF, vQ, 0, True)
A("s_waitcnt lgkmcnt(0)")
mfmas(vF, vQ, 1, False)
stamp("wo")
waitMW(1)
A(f"ds_read2_b64 {vr(vQ+8,4)}, v{aOLR} offset0:32 offset1:36\nds_read2_b64 {vr(vQ+12,4)}, v{aOLR} offset0:40 offset1:44")
stamp("h")
waitLC(pW2, sW4)
frag_reads(vXB, S1, 0)
mfmas(vXB, vQ+8, 0, False, 0)
waitLC(pW2 + 16, sW4)
frag_reads(vXB, S1, 1)
mfmas(vXB, vQ+8, 1, False, 0)
stamp("fin")
for ct in range(1, 4):
    for r in range(4): A(f"v_cndmask_b32 v{vAcc+r}, v{vAcc+r}, v{vAcc+4*ct+r}, s[{sMk+2*ct-2}:{sMk+2*ct-1}]")
for r in range(4): A(f"v_bfi_b32 v{vAcc+r}, s{sC63}, v{vS}, v{vAcc+r}")
setexec(0x00ff00ff00ff00ff)
A(f"buffer_store_dwordx4 {vr(vAcc,4)}, v{vP3}, {srd(sWS)}, s{sT} offen sc1")
fullexec()
A(f"s_cmp_lg_u32 s{sWave}, 0\ns_cbranch_scc1 L_done")
A(f"s_lshr_b32 s{sT}, s{sS}, 6\ns_lshl_b32 s{sT}, s{sT}, 17\ns_and_b32 s{sT2}, s{sS}, 63\ns_lshl_b32 s{sT2}, s{sT2}, 5\ns_add_u32 s{sT}, s{sT}, s{sT2}\ns_add_u32 s{sT}, s{sT}, {P3:#x}\ns_add_u32 s{sT2}, s{sT}, 65536")
def g3():
    if NOG: return
    for k, so in enumerate((sT, sT2)):
        A(f"buffer_load_dwordx4 {vr(vG+4*k,4)}, v{vG3}, {srd(sWS)}, s{so} offen sc1")
vH = vQ
unpack(vH, vH+1, vSm); unpack(vH+2, vH+3, vSm+1); unpack(vH+4, vH+5, vSm+2); unpack(vH+6, vH+7, vSm+3)
for r in (0, 2): A(f"v_pk_add_f32 {vr(vH+r,2)}, {vr(vH+r,2)}, {vr(vH+4+r,2)}")
A("s_waitcnt vmcnt(0)")
stamp("ack")
g3()
A("s_waitcnt vmcnt(0)")
chk6(vG, 8, "g3", g3, 0x1000000)
stamp("g3ok")
for r in (0, 2): A(f"v_pk_add_f32 {vr(vG+r,2)}, {vr(vG+r,2)}, {vr(vG+4+r,2)}")
allred([vG, vG+1, vG+2, vG+3], "v_add_f32", ["r2", "r4", "r8", "p16", "p32"], [vG+4, vG+5, vG+6, vG+7])
for r in (0, 2): A(f"v_pk_add_f32 {vr(vH+r,2)}, {vr(vH+r,2)}, {vr(vG+r,2)}")
A(f"v_cvt_pk_bf16_f32 v{vH}, v{vH}, v{vH+1}\nv_cvt_pk_bf16_f32 v{vH+1}, v{vH+2}, v{vH+3}")
setexec(3)
A(f"buffer_store_dwordx2 {vr(vH,2)}, v{vOo}, {srd(sOUT)}, s{sOo} offen")
A(f"s_cmp_lg_u32 s2, 0\ns_cbranch_scc1 L_done")
A(f"v_mov_b32 v{vS}, s{sT32}\nv_mov_b32 v{vS+1}, 0")
setexec(1)
A(f"buffer_store_dword v{vS}, v{vS+1}, {srd(sWS)}, 0 offen sc1")
A("L_done:")
if "probe" in OPT:
    stamp("end")
    if STN[0][:2] not in ("l_", "m_"):
        A(f"s_cmp_lg_u32 s{sWave}, {OPT['swave']}\ns_cbranch_scc1 L_end")
        probe_pad()
elif DUMP:
    stamp("end")
    l3 = ("x", "ln1", "S1")
    A(f"s_cmp_lg_u32 s{sWave}, 3\ns_cbranch_scc1 L_d0")
    dump_stamps(True, lambda n: n in l3, None)
    A("s_endpgm\nL_d0:")
    A(f"s_cmp_lg_u32 s{sWave}, {OPT['swave']}\ns_cbranch_scc1 L_end")
    dump_stamps(True, lambda n: n not in l3 and n[:2] not in ("l_", "m_"), 8*31)
A("L_end:\ns_endpgm")
A("L_bail:")
A(f"v_mov_b32 v{vFl}, 0x7fffffff\nds_write_b32 v{aPW}, v{vFl}\ns_waitcnt lgkmcnt(0)\ns_endpgm")
A("L_proj:")
A(f"ds_write_b128 v{aXW}, {vr(vP,4)}")
for k in range(8): A(f"ds_read2_b64 {vr(vXB+4*k,4)}, v{aXB} offset0:{8*k} offset1:{8*k+4}")
A(f"v_mov_b32 v{vS}, s{sT6}")
def pj_batch(ks):
    waitLC(4*(ks[-1]+1), sPB)
    for i, k in enumerate(ks):
        for c in range(2):
            f = vF + 8*i + 4*c
            A(f"ds_read_b64_tr_b16 {vr(f,2)}, v{aPj+c} offset:{4096*k}\nds_read_b64_tr_b16 {vr(f+2,2)}, v{aPj+c} offset:{4096*k + 2048}")
    if ks[-1] == 7: A(f"ds_write_b32 v{aPW}, v{vSig}")
    n = 4*len(ks) + (1 if ks[-1] == 7 else 0)
    for i, k in enumerate(ks):
        for c in range(2):
            n -= 2
            A(f"s_waitcnt lgkmcnt({n})")
            cc = "0" if k == 0 else vr(vAcc+4*c, 4)
            A(f"v_mfma_f32_16x16x32_bf16 {vr(vAcc+4*c,4)}, {vr(vF+8*i+4*c,4)}, {vr(vXB+4*k,4)}, {cc}")
pj_batch([0, 1, 2, 3]); pj_batch([4, 5, 6]); pj_batch([7])
for r in range(4): A(f"v_cndmask_b32 v{vAcc+r}, v{vAcc+r}, v{vAcc+4+r}, s[{sMk}:{sMk+1}]")
for r in range(4): A(f"v_add_u32 v{vAcc+r}, 32, v{vAcc+r}")
for r in range(4): A(f"v_bfi_b32 v{vAcc+r}, s{sC63}, v{vS}, v{vAcc+r}")
setexec(0x000f000f000f000f)
if not OPT.get("nos1"): A(f"buffer_store_dwordx4 {vr(vAcc,4)}, v{vPub}, {srd(sWS)}, s{sT3} offen sc1")
fullexec()
A(f"s_setpc_b64 s[{sRA}:{sRA+1}]")
A("L_ln:")
for i in range(16): unpack(vU+2*i, vU+2*i+1, vP+i)
a0, a1 = vS, vS+2
A(f"v_pk_add_f32 {vr(a0,2)}, {vr(vU,2)}, {vr(vU+2,2)}\nv_pk_add_f32 {vr(a1,2)}, {vr(vU+4,2)}, {vr(vU+6,2)}")
for i in range(4, 16, 2): A(f"v_pk_add_f32 {vr(a0,2)}, {vr(a0,2)}, {vr(vU+2*i,2)}\nv_pk_add_f32 {vr(a1,2)}, {vr(a1,2)}, {vr(vU+2*i+2,2)}")
A(f"v_pk_add_f32 {vr(a0,2)}, {vr(a0,2)}, {vr(a1,2)}\nv_add_f32 v{a0}, v{a0}, v{a0+1}")
allred(a0, "v_add_f32", ["q1", "q2", "hm", "m", "p16"], a1)
mean = vS+6
A(f"v_mul_f32 v{mean}, 0x3a800000, v{a0}")
for i in range(16):
    acc = a0 if i % 2 == 0 else a1
    dd = vF + 2*(i % 4)
    A(f"v_pk_add_f32 {vr(dd,2)}, {vr(vU+2*i,2)}, {vr(mean,2)} op_sel_hi:[1,0] neg_lo:[0,1] neg_hi:[0,1]")
    if i < 2: A(f"v_pk_mul_f32 {vr(acc,2)}, {vr(dd,2)}, {vr(dd,2)}")
    else: A(f"v_pk_fma_f32 {vr(acc,2)}, {vr(dd,2)}, {vr(dd,2)}, {vr(acc,2)}")
A(f"v_pk_add_f32 {vr(a0,2)}, {vr(a0,2)}, {vr(a1,2)}\nv_add_f32 v{a0}, v{a0}, v{a0+1}")
allred(a0, "v_add_f32", ["q1", "q2", "hm", "m", "p16"], a1)
A(f"v_mul_f32 v{a0}, 0x3a800000, v{a0}\nv_cvt_pk_bf16_f32 v{a0}, v{a0}, v{mean}")
A(f"v_and_b32 v{mean}, s{sHI}, v{a0}\nv_lshlrev_b32 v{a0}, 16, v{a0}\nv_add_f32 v{a0}, 0x3727c5ac, v{a0}")
A(f"v_cvt_pk_bf16_f32 v{a0}, v{a0}, v{a0}\nv_lshlrev_b32 v{a0}, 16, v{a0}\nv_sqrt_f32 v{a0}, v{a0}")
A(f"v_cvt_pk_bf16_f32 v{a0}, v{a0}, v{a0}\nv_lshlrev_b32 v{a0}, 16, v{a0}\nv_rcp_f32 v{a0}, v{a0}")
norm(0)
A(f"s_setpc_b64 s[{sRA}:{sRA+1}]")

body, nadd = hz.pad("\n".join(L))
if STN: body += "\n; STAMPS start," + ",".join(STN) + ",end"
hdr = open(os.path.join(os.path.dirname(__file__), "header.txt")).read()
out = f"""{hdr}; @launch grid=(256,1,1) block=(448,1,1) lds={LDS_END}
.amdgcn_target "amdgcn-amd-amdhsa--gfx950"
.text
.globl {NAME}_kernel
.p2align 8
.type {NAME}_kernel,@function
{NAME}_kernel:
{body}
.section .rodata,"a"
.p2align 6
.amdhsa_kernel {NAME}_kernel
  .amdhsa_next_free_vgpr {NV}
  .amdhsa_next_free_sgpr 102
  .amdhsa_accum_offset {NV}
  .amdhsa_group_segment_fixed_size 0
  .amdhsa_kernarg_size 104
  .amdhsa_user_sgpr_count 2
  .amdhsa_user_sgpr_kernarg_segment_ptr 1
  .amdhsa_system_sgpr_workgroup_id_x 1
  .amdhsa_float_denorm_mode_32 3
.end_amdhsa_kernel
"""
open(sys.argv[1], "w").write(out)

print("NV", NV, "LDS", LDS_END, "nops added", nadd, file=sys.stderr)
```

```python
import sys, os
sys.path.insert(0, os.path.dirname(__file__))
import hz
NAME = "parallel_sum__sliding_block_cached__mixer_channel_mlp__decode"
OPT = dict(stamps=0, nt=1, spin=1 << 16, swave=0, Wq=36, Wk=20, Wv=20, W1=20, Wo=20, W2=20, g1=76, g2=168, g4=156)
STN = None
for a in sys.argv[2:]:
    k, v = a.split("=")
    if k == "st": STN = v.split(","); OPT["stamps"] = 1
    elif k == "W":
        for kk in ("Wk", "Wv", "W1", "Wo", "W2"): OPT[kk] = int(v)
    else: OPT[k] = int(v)
NT = " nt" if OPT["nt"] else ""
L = []
def A(s):
    for x in s.split("\n"): L.append("    " + x.strip() if not x.strip().endswith(":") else x.strip())
class Alloc:
    def __init__(s, start): s.n = start
    def __call__(s, cnt=1, al=1):
        s.n = (s.n + al - 1) // al * al
        r = s.n; s.n += cnt; return r
VA = Alloc(1)
def vr(r, n): return f"v[{r}:{r+n-1}]"
sX, sWQ, sK, sV, sW1, sWO, sW2 = range(8, 36, 4)
sB1, sB2, sOUT, sWS = sWQ, sK, sV, sW1
def srd(r): return f"s[{r}:{r+3}]"
(sx8, si32, sS, sCG2, sWave, sT, sT2, sT3, sT4, sT5, sT32, sT6, sHI, sSpin, sC63, sRetry, sW8, sW4, sNeed, sPB, sCnt, sM, sG, sAct) = range(36, 60)
sPub = sW8
sRA = 60; sMk = 62
STB = 68
nst = [0]; names = []
slots = {}
def stamp(name):
    if OPT["stamps"] and (STN is None or name in STN or name in ("start", "end")):
        i = nst[0]; nst[0] += 1
        slots[name] = (i, 0 if name == "start" else (len(STN) + 1 if name == "end" else STN.index(name) + 1))
        assert STB + 2*i + 1 <= 101
        A(f"s_memrealtime s[{STB+2*i}:{STB+2*i+1}]")
P1, P4, P2, P3, WSSZ = 0x10000, 0x40000, 0x100000, 0x200000, 0x400000
S0, S1, S2, S3, M = 0, 32768, 65536, 98304, 131072
XR, PX, XN, YN, QL = M, M + 4096, M + 8192, M + 9216, M + 10240
ML = QL + 2304; OL = ML + 256; HL = OL + 256; FLG = HL + 256
LDS_END = FLG + 64
LCO = 32
pX, pWQ, pK, pV, pW1, pWO, pW2, pEND = 0, 4, 36, 68, 100, 132, 164, 196

vLane, vG4, vN16, vJ, vTmp2, vTmp3 = [VA() for _ in range(6)]
aFL = VA(); aPW = VA()
aW = VA(4); aK = VA(4); aV = VA(2); aQ = VA(); aXB = VA(); aXW = VA(); aPj = VA(2)
vPub = VA(); vG1 = VA(); aQW = VA(); aPXW = VA(); aPXR = VA(); aMLW = VA(); aMLR = VA(); vS2o = VA()
vG2 = VA(); vP3 = VA(); vG3 = VA(); vOo = VA(); aOLW = VA(); aOLR = VA(); vSig = VA()
vP = VA(16, 4); vU = VA(32, 4); vS = VA(8, 4); vXB = VA(32, 4); vF = VA(32, 4); vAcc = VA(32, 4)
vQ = VA(16, 4); vG = VA(16, 4); vSm = VA(6, 2); vFl = VA(4, 2)
vKF = vXB
NV = (VA.n + 7) // 8 * 8
assert NV <= 256, NV

def allred(reg, op, steps, tmp):
    regs_ = reg if isinstance(reg, list) else [reg]
    tmps = tmp if isinstance(tmp, list) else [tmp]
    dpp = dict(q1="quad_perm:[1,0,3,2]", q2="quad_perm:[2,3,0,1]", hm="row_half_mirror", m="row_mirror",
               r2="row_ror:2", r4="row_ror:4", r8="row_ror:8")
    for st in steps:
        if st in dpp:
            for r in regs_: A(f"{op}_dpp v{r}, v{r}, v{r} {dpp[st]} row_mask:0xf bank_mask:0xf")
        else:
            ins = "v_permlane16_swap_b32" if st == "p16" else "v_permlane32_swap_b32"
            for r, t in zip(regs_, tmps): A(f"v_mov_b32 v{t}, v{r}")
            for r, t in zip(regs_, tmps): A(f"{ins} v{r}, v{t}")
            for r, t in zip(regs_, tmps): A(f"{op} v{r}, v{r}, v{t}")
def unpack(dlo, dhi, src):
    A(f"v_lshlrev_b32 v{dlo}, 16, v{src}\nv_and_b32 v{dhi}, s{sHI}, v{src}")
def setexec(m):
    lo, hi = m & 0xffffffff, (m >> 32) & 0xffffffff
    A(f"s_mov_b32 exec_lo, {lo:#x}\ns_mov_b32 exec_hi, {hi:#x}")
def fullexec(): A("s_mov_b64 exec, -1")
lab = [0]
SLP = f"s_sleep {OPT['slp']}\n" if OPT.get("slp") else ""
NOG = OPT.get("abl") == 2
def newlab(p):
    lab[0] += 1; return f"L_{p}{lab[0]}"
def waitLC(base, sreg=None):
    l = newlab("lc")
    if sreg is None: A(f"s_mov_b32 s{sNeed}, {base}")
    else: A(f"s_add_u32 s{sNeed}, s{sreg}, {base}")
    A(f"{l}:\n{SLP}ds_read_b32 v{vFl}, v{aFL} offset:{LCO}\ns_waitcnt lgkmcnt(0)\nv_cmp_le_i32 vcc, s{sNeed}, v{vFl}\ns_cbranch_vccz {l}")
def signal(stage):
    A(f"v_mov_b32 v{vFl}, {stage}\nds_write_b32 v{aPW}, v{vFl}")
def waitPW(stage):
    l = newlab("pw")
    A(f"{l}:\n{SLP}ds_read_b128 {vr(vFl,4)}, v{aFL}\ns_waitcnt lgkmcnt(0)\nv_min3_i32 v{vFl}, v{vFl}, v{vFl+1}, v{vFl+2}\nv_min_i32 v{vFl}, v{vFl}, v{vFl+3}\nv_cmp_le_i32 vcc, {stage}, v{vFl}\ns_cbranch_vccz {l}")
def waitMW(stage):
    l = newlab("mw")
    A(f"{l}:\n{SLP}ds_read_b64 {vr(vFl,2)}, v{aFL} offset:16\ns_waitcnt lgkmcnt(0)\nv_min_i32 v{vFl}, v{vFl}, v{vFl+1}\nv_cmp_le_i32 vcc, {stage}, v{vFl}\ns_cbranch_vccz {l}")
def LB(stage): signal(stage); waitPW(stage)
def dump_stamps(ws_loaded, pred, retry_slot):
    setexec(1)
    if not ws_loaded: A("s_load_dwordx2 s[4:5], s[0:1], 96")
    else: A(f"s_mov_b32 s4, s{sWS}\ns_mov_b32 s5, s{sWS+1}")
    A(f"s_waitcnt lgkmcnt(0)\ns_lshl_b32 s{sT}, s2, 8\ns_add_u32 s4, s4, s{sT}\ns_addc_u32 s5, s5, 0\ns_add_u32 s4, s4, 0x8000000\ns_addc_u32 s5, s5, 0\nv_mov_b32 v{vS+2}, 0")
    for nm, (i, sl) in slots.items():
        if pred(nm):
            A(f"v_mov_b32 v{vS}, s{STB+2*i}\nv_mov_b32 v{vS+1}, s{STB+2*i+1}\nglobal_store_dwordx2 v{vS+2}, {vr(vS,2)}, s[4:5] offset:{8*sl}\ns_nop 1")
    if retry_slot is not None:
        A(f"v_mov_b32 v{vS}, s{sRetry}\nglobal_store_dword v{vS+2}, v{vS}, s[4:5] offset:{retry_slot}")
DUMP = OPT["stamps"] and "probe" not in OPT
def probe_pad():
    k = slots[STN[0]][0]
    l = newlab("pad")
    A(f"s_waitcnt lgkmcnt(0)\ns_sub_u32 s{sT}, s{STB+2*k}, s{STB}\ns_lshl_b32 s{sT}, s{sT}, 2\ns_add_u32 s{sT}, s{sT}, 2000")
    A(f"{l}:\ns_memrealtime s[4:5]\ns_waitcnt lgkmcnt(0)\ns_sub_u32 s4, s4, s{STB}\ns_cmp_lt_u32 s4, s{sT}\ns_cbranch_scc1 {l}")

stamp("start")
A("s_cmp_ge_u32 s2, 256\ns_cbranch_scc1 L_end")
A(f"s_load_dwordx2 s[{sX}:{sX+1}], s[0:1], 0")
A(f"v_lshrrev_b32 v{vJ}, 6, v0\nv_and_b32 v{vLane}, 63, v0")
A(f"v_readfirstlane_b32 s{sWave}, v{vJ}")
A(f"s_and_b32 s{sx8}, s2, 7\ns_lshr_b32 s{si32}, s2, 3")
A(f"v_lshrrev_b32 v{vG4}, 4, v{vLane}\nv_mov_b32 v{aFL}, {FLG}")
A(f"s_mov_b32 s{sX+2}, 4096\ns_mov_b32 s{sX+3}, 0x20000")
if OPT.get("cpf"):
    A(f"s_cmp_lg_u32 s{sWave}, {OPT['cpf']-1}\ns_cbranch_scc1 L_nocpf")
    A(f"s_getpc_b64 s[4:5]\nv_lshlrev_b32 v{vU}, 7, v{vLane}\nglobal_load_dword v{vU+1}, v{vU}, s[4:5]\nv_add_u32 v{vU}, 8192, v{vU}")
    setexec(0xffff)
    A(f"global_load_dword v{vU+2}, v{vU}, s[4:5]")
    fullexec()
    A("L_nocpf:")
A(f"s_cmp_lg_u32 s{sWave}, 6\ns_cbranch_scc1 L_notloader")
A("s_setprio 3")
for r, off in ((sWQ, 24), (sK, 8), (sV, 16), (sW1, 48), (sWO, 32), (sW2, 64)):
    A(f"s_load_dwordx2 s[{r}:{r+1}], s[0:1], {off}")
lX, lT8, lT7, lT2, lK, lV, lC = vP, vP+1, vP+2, vP+3, vP+4, vP+8, vP+10
A(f"v_lshlrev_b32 v{lX}, 4, v{vLane}")
A(f"v_lshrrev_b32 v{vTmp2}, 3, v{vLane}\nv_and_b32 v{vTmp3}, 7, v{vLane}\nv_lshlrev_b32 v{vS}, 1, v{vG4}\nv_xor_b32 v{vTmp3}, v{vTmp3}, v{vS}\nv_lshlrev_b32 v{vTmp3}, 4, v{vTmp3}")
A(f"v_lshl_add_u32 v{lT8}, v{vTmp2}, 13, v{vTmp3}")
A(f"s_mov_b32 s{sWQ+2}, {1<<23:#x}\ns_mov_b32 s{sWQ+3}, 0x20000")
def qidx(cg, ks, tmp):
    m = OPT.get("qmap", 0)
    if m == 0:
        A(f"s_lshr_b32 s{cg}, s{sx8}, 2\ns_lshl_b32 s{cg}, s{cg}, 5\ns_add_u32 s{cg}, s{cg}, s{si32}\ns_and_b32 s{ks}, s{sx8}, 3")
    elif m == 1:
        A(f"s_lshl_b32 s{cg}, s{sx8}, 3\ns_lshr_b32 s{tmp}, s{si32}, 2\ns_add_u32 s{cg}, s{cg}, s{tmp}\ns_and_b32 s{ks}, s{si32}, 3")
    else:
        A(f"s_lshr_b32 s{cg}, s{sx8}, 1\ns_lshl_b32 s{cg}, s{cg}, 4\ns_and_b32 s{tmp}, s{si32}, 15\ns_add_u32 s{cg}, s{cg}, s{tmp}\ns_and_b32 s{ks}, s{sx8}, 1\ns_lshl_b32 s{ks}, s{ks}, 1\ns_lshr_b32 s{tmp}, s{si32}, 4\ns_add_u32 s{ks}, s{ks}, s{tmp}")
def midx(cg, ks, tmp):
    if OPT.get("mmap", 0) == 0:
        A(f"s_lshr_b32 s{tmp}, s{sx8}, 2\ns_mul_i32 s{cg}, s{tmp}, 28\ns_lshl_b32 s{tmp}, s{tmp}, 2\ns_add_u32 s{tmp}, s{tmp}, 28\ns_cmp_lt_u32 s{si32}, 28\ns_cselect_b32 s{cg}, s{cg}, s{tmp}\ns_add_u32 s{cg}, s{cg}, s{si32}\ns_and_b32 s{ks}, s{sx8}, 3")
    else:
        A(f"s_mul_i32 s{cg}, s{sx8}, 7\ns_lshr_b32 s{tmp}, s{si32}, 2\ns_add_u32 s{cg}, s{cg}, s{tmp}\ns_add_u32 s{tmp}, s{sx8}, 56\ns_cmp_lt_u32 s{si32}, 28\ns_cselect_b32 s{cg}, s{cg}, s{tmp}\ns_and_b32 s{ks}, s{si32}, 3")
qidx(sG, sT3, sT)
A(f"s_lshl_b32 s{sG}, s{sG}, 7\ns_lshl_b32 s{sT}, s{sT3}, 21\ns_add_u32 s{sG}, s{sG}, s{sT}")
Wq = OPT["Wq"]
A(f"s_mov_b32 m0, {XR}\ns_mov_b32 s{sPub}, 0\nv_mov_b32 v{lC}, 0\ns_mov_b32 s{sRetry}, 0")
A(f"ds_write_b32 v{aFL}, v{lC} offset:{LCO}")
A("s_waitcnt lgkmcnt(0)")
stamp("l_karg")
for q in range(4): A(f"buffer_load_dwordx4 v{lX}, {srd(sX)}, 0 offen offset:{1024*q} lds")
curW = [Wq]
def pub():
    A(f"s_add_u32 s{sCnt}, s{sCnt}, 4\ns_max_i32 s{sPub}, s{sPub}, s{sCnt}\nv_mov_b32 v{lC}, s{sPub}\nds_write_b32 v{aFL}, v{lC} offset:{LCO}")
def trans(Wn):
    Wo = curW[0]
    assert Wn % 4 == 0
    if Wn < Wo:
        for k in range(Wo - 4, Wn - 1, -4):
            A(f"s_waitcnt vmcnt({k})"); pub()
    elif Wn > Wo: A(f"s_sub_u32 s{sCnt}, s{sCnt}, {Wn - Wo}")
    curW[0] = Wn
def tile_group(s_, voff, step):
    for q in range(4):
        A(f"s_waitcnt vmcnt({curW[0]-1})")
        A(f"buffer_load_dwordx4 v{voff}, {srd(s_)}, s{sG} offen{NT} lds")
        A(f"s_add_u32 m0, m0, 1024\ns_add_u32 s{sG}, s{sG}, {step}")
    pub()
def loop(n_end, body):
    l = newlab("ld")
    A(f"{l}:"); body()
    A(f"s_cmp_lg_u32 s{sCnt}, {(n_end - curW[0]) & 0xffffffff}\ns_cbranch_scc1 {l}")
npre = min(Wq, 36) // 4 - 1
A(f"s_mov_b32 m0, {S0}\ns_mov_b32 s{sCnt}, {npre}")
A("L_pre:")
for q in range(4):
    A(f"buffer_load_dwordx4 v{lT8}, {srd(sWQ)}, s{sG} offen{NT} lds")
    A(f"s_add_u32 m0, m0, 1024\ns_add_u32 s{sG}, s{sG}, 65536")
A(f"s_sub_u32 s{sCnt}, s{sCnt}, 1\ns_cmp_lg_u32 s{sCnt}, 0\ns_cbranch_scc1 L_pre")
A(f"s_mov_b32 s{sCnt}, {(4 + 4*npre - Wq) & 0xffffffff}")
A("s_barrier")
A(f"v_and_b32 v{vN16}, 15, v{vLane}")
A(f"v_mul_u32_u24 v{lT7}, 7168, v{vTmp2}\nv_add_u32 v{lT7}, v{lT7}, v{vTmp3}\nv_lshl_add_u32 v{lT2}, v{vTmp2}, 11, v{vTmp3}")
A(f"v_lshlrev_b32 v{vTmp2}, 8, v{vG4}\nv_xor_b32 v{vTmp3}, v{vN16}, v{vG4}\nv_lshl_add_u32 v{lK}, v{vTmp3}, 4, v{vTmp2}")
for q in (1, 2, 3): A(f"v_xor_b32 v{lK+q}, {64*q}, v{lK}")
A(f"v_xor_b32 v{vTmp3}, v{vN16}, v{vS}\nv_lshl_add_u32 v{lV}, v{vTmp3}, 4, v{vTmp2}\nv_xor_b32 v{lV+1}, 128, v{lV}")
for r, sz in ((sK, 1 << 25), (sV, 1 << 25), (sWO, 1 << 23)): A(f"s_mov_b32 s{r+2}, {sz:#x}")
for r in (sK, sV, sW1, sWO, sW2): A(f"s_mov_b32 s{r+3}, 0x20000")
A(f"s_cmp_lt_u32 s{si32}, 28\ns_cselect_b32 s{sW1+2}, {1024*7168}, 0\ns_cselect_b32 s{sW2+2}, {3584*2048}, 0")
sKV = sT4
A(f"s_and_b32 s{sKV}, s{sx8}, 1\ns_lshl_b32 s{sKV}, s{sKV}, 2\ns_lshr_b32 s{sT}, s{sx8}, 1\ns_add_u32 s{sKV}, s{sKV}, s{sT}\ns_lshl_b32 s{sKV}, s{sKV}, 22")
if OPT.get("kvtest") == 1: A(f"s_xor_b32 s{sKV}, s{sKV}, {3 << 22}")
if OPT.get("kvtest") == 2: A(f"s_lshr_b32 s{sKV}, s{si32}, 2\ns_lshl_b32 s{sKV}, s{sKV}, 22\ns_and_b32 s{sT}, s{si32}, 3\ns_lshl_b32 s{sT}, s{sT}, 3\ns_add_u32 s{sT}, s{sT}, s{sx8}\ns_lshl_b32 s{sT}, s{sT}, 15")
else: A(f"s_lshl_b32 s{sT}, s{si32}, 15")
A(f"s_add_u32 s{sKV}, s{sKV}, s{sT}\ns_add_u32 s{sKV}, s{sKV}, 0x300000")
midx(sT5, sT3, sT)
A(f"s_lshl_b32 s{sT5}, s{sT5}, 7\ns_mul_i32 s{sT}, s{sT3}, {256*7168}\ns_add_u32 s{sT5}, s{sT5}, s{sT}")
A(f"s_lshl_b32 s{sS}, s{sx8}, 5\ns_add_u32 s{sS}, s{sS}, s{si32}")
A(f"s_mul_i32 s{sCG2}, s{sx8}, 28\ns_add_u32 s{sCG2}, s{sCG2}, s{si32}\ns_lshr_b32 s{sCG2}, s{sCG2}, 2")
if npre < 8: loop(pK, lambda: tile_group(sWQ, lT8, 65536))
def kv_group(s_, voff, nreg):
    for q in range(4):
        A(f"s_waitcnt vmcnt({curW[0]-1})")
        A(f"buffer_load_dwordx4 v{voff + q % nreg}, {srd(s_)}, s{sG} offen offset:{1024*q}{NT} lds")
    A(f"s_add_u32 m0, m0, 4096\ns_add_u32 s{sG}, s{sG}, 4096")
    pub()
stamp("l_pre")
trans(OPT["Wk"])
stamp("l_tk")
A(f"s_mov_b32 s{sG}, s{sKV}")
loop(pV, lambda: kv_group(sK, lK, 4))
stamp("l_K")
trans(OPT["Wv"])
A(f"s_mov_b32 s{sG}, s{sKV}")
loop(pW1, lambda: kv_group(sV, lV, 2))
stamp("l_V")
trans(OPT["W1"])
A(f"s_mov_b32 s{sG}, s{sT5}")
loop(pWO, lambda: tile_group(sW1, lT7, 8*7168))
stamp("l_W1")
def fin_group(s_):
    A(f"s_mov_b32 m0, s{sM}\ns_mov_b32 s{sG}, s{sT}")
    for q in range(4):
        A(f"s_waitcnt vmcnt({curW[0]-1})")
        A(f"buffer_load_dwordx4 v{lT2}, {srd(s_)}, s{sG} offen{NT} lds")
        if q < 3: A(f"s_add_u32 m0, m0, 1024\ns_add_u32 s{sG}, s{sG}, 16384")
    A(f"s_add_u32 s{sM}, s{sM}, 8192\ns_add_u32 s{sT}, s{sT}, 128")
    pub()
def fin(s_, slot, p0, basecode):
    A(basecode)
    A(f"s_mov_b32 s{sM}, {slot}")
    loop(p0 + 16, lambda: fin_group(s_))
    A(f"s_mov_b32 s{sM}, {slot + 4096}\ns_add_u32 s{sT}, s{sT}, {65536 - 512}")
    loop(p0 + 32, lambda: fin_group(s_))
trans(OPT["Wo"])
waitPW(1)
A(f"s_and_b32 s{sT2}, s{si32}, 3\ns_lshl_b32 s{sT2}, s{sT2}, 9")
fin(sWO, S0, pWO, f"s_lshr_b32 s{sT}, s{sS}, 2\ns_lshl_b32 s{sT}, s{sT}, 17\ns_add_u32 s{sT}, s{sT}, s{sT2}")
stamp("l_WO")
trans(OPT["W2"])
waitPW(2)
fin(sW2, S1, pW2, f"s_lshl_b32 s{sT}, s{sCG2}, 17\ns_add_u32 s{sT}, s{sT}, s{sT2}")
stamp("l_W2")
trans(0)
stamp("l_end")
if DUMP: dump_stamps(False, lambda n: n.startswith("l_"), None)
if "probe" in OPT and STN[0].startswith("l_"): probe_pad()
A("s_endpgm")
nst[0] = 1 if OPT["stamps"] else 0
A("L_notloader:")
for r, off in ((sWS, 96), (sB1, 56), (sB2, 72), (sOUT, 80)):
    A(f"s_load_dwordx2 s[{r}:{r+1}], s[0:1], {off}")
j = vJ
A(f"v_lshl_add_u32 v{aPW}, v{j}, 2, v{aFL}")
A(f"s_cmp_lt_u32 s{sWave}, 2\ns_cselect_b32 s{sT}, 1, 0\nv_mov_b32 v{vFl}, s{sT}\nds_write_b32 v{aPW}, v{vFl}")
A(f"v_and_b32 v{vN16}, 15, v{vLane}")
A(f"s_cmp_lt_u32 s{si32}, 28\ns_cselect_b32 s{sAct}, 1, 0\ns_cselect_b32 s{sB1+2}, 7168, 0")
A(f"s_mov_b32 s{sB2+2}, 2048\ns_mov_b32 s{sOUT+2}, 4096\ns_mov_b32 s{sWS+2}, {WSSZ:#x}")
for r in (sB1, sB2, sOUT, sWS): A(f"s_mov_b32 s{r+3}, 0x20000")
A(f"s_mov_b32 s{sHI}, 0xffff0000\ns_mov_b32 s{sC63}, 63\ns_mov_b32 s{sRetry}, 0\ns_mov_b32 s{sSpin}, {OPT['spin']}")
A(f"s_lshl_b32 s{sS}, s{sx8}, 5\ns_add_u32 s{sS}, s{sS}, s{si32}")
A("s_waitcnt lgkmcnt(0)\ns_barrier")
if OPT.get("abl") == 1:
    A(f"v_mov_b32 v{vFl}, 100\nds_write_b32 v{aPW}, v{vFl}\ns_cmp_eq_u32 s{sWave}, 0\ns_cbranch_scc1 L_done\ns_endpgm")
A(f"s_load_dword s{sT32}, s[{sWS}:{sWS+1}], 0")
r_, c4 = vTmp2, vTmp3
t0, t1, t2 = vS, vS+1, vS+2
A(f"v_lshrrev_b32 v{r_}, 2, v{vN16}\nv_and_b32 v{c4}, 3, v{vN16}\nv_lshlrev_b32 v{c4}, 3, v{c4}")
A(f"v_lshl_add_u32 v{r_}, v{vG4}, 2, v{r_}")
A(f"v_bfe_u32 v{t1}, v{r_}, 1, 2")
A(f"v_lshl_add_u32 v{aW}, v{r_}, 7, v{c4}\nv_lshl_add_u32 v{aW}, v{t1}, 5, v{aW}")
A(f"s_cmp_lt_u32 s{sWave}, 2\ns_cbranch_scc1 L_attn")
A(f"s_and_b32 s{sT}, s{sWave}, 1\ns_lshl_b32 s{sT}, s{sT}, 6\nv_xor_b32 v{aPj}, s{sT}, v{aW}")
A(f"s_cmp_lt_u32 s{sWave}, 4\ns_cselect_b32 s{sT2}, {S0}, {S3}\ns_cselect_b32 s{sPB}, {pWQ}, {pW1}\ns_cselect_b32 s{sT3}, 0, {YN-XN}\ns_cselect_b32 s{sT4}, 1, 0\ns_cselect_b32 s{sT5}, 14, 8")
A(f"s_add_u32 s{sT3}, s{sT3}, {XN}")
A(f"v_add_u32 v{aPj}, s{sT2}, v{aPj}\nv_xor_b32 v{aPj+1}, 32, v{aPj}\nv_mov_b32 v{vSig}, s{sT4}")
A(f"v_and_b32 v{t0}, 1, v{vN16}\nv_lshlrev_b32 v{t1}, 3, v{vG4}\nv_lshl_add_u32 v{aXB}, v{t0}, 9, v{t1}\nv_add_u32 v{aXB}, s{sT3}, v{aXB}")
A(f"v_lshlrev_b32 v{vPub}, s{sT5}, v{t0}\nv_lshl_add_u32 v{vPub}, v{t1}, 1, v{vPub}\nv_bfe_u32 v{t0}, v{vN16}, 1, 1\nv_lshl_add_u32 v{vPub}, v{t0}, 6, v{vPub}\ns_lshl_b32 s{sT}, s{sT}, 1\nv_add_u32 v{vPub}, s{sT}, v{vPub}")
A(f"v_lshrrev_b32 v{t1}, 5, v{vLane}\nv_and_b32 v{t2}, 31, v{vLane}\nv_lshlrev_b32 v{t2}, 4, v{t2}")
A(f"v_lshl_add_u32 v{aXW}, v{t1}, 9, v{t2}\nv_add_u32 v{aXW}, s{sT3}, v{aXW}\nv_lshl_add_u32 v{t2}, v{t1}, 11, v{t2}")
sCGp, sKSp = sCnt, sG
qidx(sCGp, sKSp, sT)
A(f"s_cmp_lt_u32 s{sWave}, 4\ns_cbranch_scc1 L_isq")
midx(sCGp, sKSp, sT)
A("L_isq:")
for t in range(4):
    A(f"s_add_u32 s{sT}, s{sKSp}, {t}\ns_and_b32 s{sT}, s{sT}, 3\ns_lshl_b32 s{sT}, s{sT}, 9\ns_add_u32 s{sT}, s{sT}, {XR}\nv_add_u32 v{vXB+t}, s{sT}, v{t2}")
A(f"s_mov_b32 s{sMk}, 0x0c0c0c0c\ns_mov_b32 s{sMk+1}, 0x0c0c0c0c")
waitLC(pX + 4)
for t in range(4): A(f"ds_read_b128 {vr(vP+4*t,4)}, v{vXB+t}")
stamp("x")
A("s_waitcnt lgkmcnt(0)")
A(f"s_add_u32 s{sT32}, s{sT32}, 1\ns_and_b32 s{sT6}, s{sT32}, 63")
A(f"s_call_b64 s[{sRA}:{sRA+1}], L_ln")
A(f"s_cmp_lt_u32 s{sWave}, 4\ns_cbranch_scc0 L_mlp")
A(f"s_lshr_b32 s{sT3}, s{sCGp}, 4\ns_lshl_b32 s{sT3}, s{sT3}, 15\ns_and_b32 s{sT}, s{sCGp}, 15\ns_lshl_b32 s{sT}, s{sT}, 8\ns_add_u32 s{sT3}, s{sT3}, s{sT}")
A(f"s_lshl_b32 s{sT}, s{sKSp}, 12\ns_add_u32 s{sT3}, s{sT3}, s{sT}\ns_add_u32 s{sT3}, s{sT3}, {P1:#x}")
stamp("ln1")
A(f"s_call_b64 s[{sRA}:{sRA+1}], L_proj")
stamp("S1")
A("s_branch L_attn2")
A("L_mlp:")
def norm(q):
    a0, mean = vS, vS+6
    for i in range(4*q, 4*q+4): A(f"v_pk_add_f32 {vr(vU+2*i,2)}, {vr(vU+2*i,2)}, {vr(mean,2)} op_sel_hi:[1,0] neg_lo:[0,1] neg_hi:[0,1]")
    for i in range(4*q, 4*q+4): A(f"v_cvt_pk_bf16_f32 v{vP+i}, v{vU+2*i}, v{vU+2*i+1}")
    for i in range(4*q, 4*q+4): unpack(vU+2*i, vU+2*i+1, vP+i)
    for i in range(4*q, 4*q+4): A(f"v_pk_mul_f32 {vr(vU+2*i,2)}, {vr(vU+2*i,2)}, {vr(a0,2)} op_sel_hi:[1,0]")
    for i in range(4*q, 4*q+4): A(f"v_cvt_pk_bf16_f32 v{vP+i}, v{vU+2*i}, v{vU+2*i+1}")
mlp_first = nst[0]
for q in (1, 2, 3): norm(q)
A(f"s_call_b64 s[{sRA}:{sRA+1}], L_ln")
A(f"s_mul_i32 s{sCG2}, s{sx8}, 28\ns_add_u32 s{sCG2}, s{sCG2}, s{si32}\ns_lshr_b32 s{sCG2}, s{sCG2}, 2\ns_add_u32 s{sT}, s{sx8}, 56\ns_cmp_lg_u32 s{sAct}, 0\ns_cselect_b32 s{sCG2}, s{sCG2}, s{sT}")
A(f"s_lshl_b32 s{sT3}, s{sCGp}, 11\ns_lshl_b32 s{sT}, s{sKSp}, 9\ns_add_u32 s{sT3}, s{sT3}, s{sT}\ns_add_u32 s{sT3}, s{sT3}, {P4:#x}")
vG4o, vB1o, aHW = vG2, vG3, aOLW
A(f"s_and_b32 s{sT}, s{sWave}, 1\ns_lshl_b32 s{sT2}, s{sT}, 8\nv_lshlrev_b32 v{vB1o}, 3, v{vN16}\nv_lshlrev_b32 v{vG4o}, 9, v{vG4}\nv_lshl_add_u32 v{vG4o}, v{vN16}, 4, v{vG4o}\nv_add_u32 v{vG4o}, s{sT2}, v{vG4o}")
A(f"s_lshl_b32 s{sT}, s{sT}, 7\ns_add_u32 s{sT}, s{sT}, {HL}\nv_add_u32 v{aHW}, s{sT}, v{vB1o}\ns_lshl_b32 s{sT}, s{sCG2}, 7")
A(f"buffer_load_dwordx2 {vr(vSm,2)}, v{vB1o}, {srd(sB1)}, s{sT} offen")
stamp("m_ln2")
A(f"s_call_b64 s[{sRA}:{sRA+1}], L_proj")
stamp("m_S4")
A(f"s_lshl_b32 s{sT}, s{sCG2}, 11\ns_add_u32 s{sT}, s{sT}, {P4:#x}")
waitLC(OPT["g4"])
A("s_waitcnt vmcnt(0)")
stamp("m_g4i")
def g4():
  if not NOG: A(f"buffer_load_dwordx4 {vr(vG,4)}, v{vG4o}, {srd(sWS)}, s{sT} offen sc1")
g4()
unpack(vU+8, vU+9, vSm); unpack(vU+10, vU+11, vSm+1)
A("s_waitcnt vmcnt(0)")
def chk6(base, n, name, reissue, inc):
    A(f"L_{name}chk:")
    for r in range(n): A(f"v_xor_b32 v{base+r}, s{sT6}, v{base+r}")
    A(f"v_or3_b32 v{vS}, v{base}, v{base+1}, v{base+2}")
    r = 3
    while r + 1 < n:
        A(f"v_or3_b32 v{vS}, v{vS}, v{base+r}, v{base+r+1}"); r += 2
    if r < n: A(f"v_or_b32 v{vS}, v{vS}, v{base+r}")
    A(f"v_and_b32 v{vS}, 63, v{vS}\nv_cmp_ne_u32 vcc, 0, v{vS}\n" + ("s_branch" if NOG else "s_cbranch_vccz") + f" L_{name}ok")
    A(f"s_add_u32 s{sRetry}, s{sRetry}, {inc}\ns_sub_u32 s{sSpin}, s{sSpin}, 1\ns_cbranch_scc1 L_bail")
    reissue()
    A(f"s_waitcnt vmcnt(0)\ns_branch L_{name}chk")
    A(f"L_{name}ok:")
chk6(vG, 4, "g4", g4, 0x10000)
stamp("m_g4ok")
vH = vG
allred([vH, vH+1, vH+2, vH+3], "v_add_f32", ["p16", "p32"], [vH+4, vH+5, vH+6, vH+7])
A(f"v_cvt_pk_bf16_f32 v{vH+4}, v{vH}, v{vH+1}\nv_cvt_pk_bf16_f32 v{vH+5}, v{vH+2}, v{vH+3}")
unpack(vH, vH+1, vH+4); unpack(vH+2, vH+3, vH+5)
for r in (0, 2): A(f"v_pk_add_f32 {vr(vH+r,2)}, {vr(vH+r,2)}, {vr(vU+8+r,2)}")
A(f"v_cvt_pk_bf16_f32 v{vH+4}, v{vH}, v{vH+1}\nv_cvt_pk_bf16_f32 v{vH+5}, v{vH+2}, v{vH+3}")
unpack(vH, vH+1, vH+4); unpack(vH+2, vH+3, vH+5)
for r in range(4): A(f"v_mul_f32 v{vH+4+r}, v{vH+r}, v{vH+r}")
for r in range(4): A(f"v_mul_f32 v{vH+4+r}, 0xbdd2d3e8, v{vH+4+r}")
for r in range(4): A(f"v_add_f32 v{vH+4+r}, 0xc0135761, v{vH+4+r}")
for r in range(4): A(f"v_mul_f32 v{vH+4+r}, v{vH+r}, v{vH+4+r}")
for r in range(4): A(f"v_exp_f32 v{vH+4+r}, v{vH+4+r}")
for r in range(4): A(f"v_add_f32 v{vH+4+r}, 1.0, v{vH+4+r}")
for r in range(4): A(f"v_rcp_f32 v{vH+4+r}, v{vH+4+r}")
for r in range(4): A(f"v_mul_f32 v{vH+r}, v{vH+r}, v{vH+4+r}")
A(f"v_cvt_pk_bf16_f32 v{vH}, v{vH}, v{vH+1}\nv_cvt_pk_bf16_f32 v{vH+1}, v{vH+2}, v{vH+3}")
setexec(0xffff)
A(f"ds_write_b64 v{aHW}, {vr(vH,2)}")
signal(1)
stamp("m_h")
if DUMP:
    A(f"s_cmp_lg_u32 s{sWave}, 4\ns_cbranch_scc1 L_end"); dump_stamps(True, lambda n: n.startswith("m_"), 8*31+4)
if "probe" in OPT and STN[0].startswith("m_"): probe_pad()
A("s_endpgm")
nst[0] = mlp_first
A("L_attn:")
A("s_waitcnt lgkmcnt(0)")
A(f"s_add_u32 s{sT32}, s{sT32}, 1\ns_and_b32 s{sT6}, s{sT32}, 63")
A("L_attn2:")
A(f"s_lshl_b32 s{sW4}, s{sWave}, 2\ns_add_u32 s{sW4}, s{sW4}, 4\ns_lshl_b32 s{sW8}, s{sW4}, 1")
A(f"v_lshl_add_u32 v{aW}, v{j}, 13, v{aW}")
for ct in (1, 2, 3): A(f"v_xor_b32 v{aW+ct}, {32*ct}, v{aW}")
A(f"v_and_b32 v{t1}, 7, v{r_}\nv_lshlrev_b32 v{t2}, 1, v{j}\nv_xor_b32 v{t1}, v{t1}, v{t2}\nv_lshl_add_u32 v{aV}, v{r_}, 8, v{c4}\nv_lshl_add_u32 v{aV}, v{t1}, 5, v{aV}\nv_add_u32 v{aV}, {S2}, v{aV}\nv_xor_b32 v{aV+1}, 32, v{aV}")
A(f"v_xor_b32 v{t1}, v{vG4}, v{vN16}\nv_lshlrev_b32 v{t1}, 4, v{t1}\nv_lshl_add_u32 v{t1}, v{vN16}, 8, v{t1}\nv_lshl_add_u32 v{t1}, v{j}, 13, v{t1}\nv_add_u32 v{aK}, {S1}, v{t1}")
for s_ in (1, 2, 3): A(f"v_xor_b32 v{aK+s_}, {64*s_}, v{aK}")
A(f"v_and_b32 v{t1}, 7, v{vN16}\nv_mul_u32_u24 v{aQ}, 272, v{t1}\nv_lshl_add_u32 v{aQ}, v{vG4}, 4, v{aQ}\nv_add_u32 v{aQ}, {QL}, v{aQ}")
A(f"v_lshlrev_b32 v{aMLR}, 3, v{t1}\nv_add_u32 v{aMLR}, {ML}, v{aMLR}\nv_lshl_add_u32 v{aMLW}, v{j}, 6, v{aMLR}")
A(f"v_lshlrev_b32 v{vS2o}, 9, v{t1}\nv_lshl_add_u32 v{vS2o}, v{j}, 7, v{vS2o}\nv_lshrrev_b32 v{t1}, 3, v{vN16}\nv_lshl_add_u32 v{vS2o}, v{t1}, 6, v{vS2o}\nv_lshl_add_u32 v{vS2o}, v{vG4}, 4, v{vS2o}")
A(f"v_lshlrev_b32 v{vG1}, 4, v0\nv_add_u32 v{aPXW}, {PX}, v{vG1}\nv_lshlrev_b32 v{aPXR}, 4, v{vLane}\nv_add_u32 v{aPXR}, {PX}, v{aPXR}")
A(f"v_lshrrev_b32 v{t1}, 5, v0\nv_and_b32 v{t2}, 31, v0\nv_mul_u32_u24 v{aQW}, 272, v{t1}\nv_lshl_add_u32 v{aQW}, v{t2}, 3, v{aQW}\nv_add_u32 v{aQW}, {QL}, v{aQW}")
A(f"v_and_b32 v{t0}, 3, v{vLane}\nv_lshlrev_b32 v{t0}, 4, v{t0}\nv_lshl_add_u32 v{t0}, v{j}, 6, v{t0}\nv_lshrrev_b32 v{t1}, 5, v{vLane}\nv_bfe_u32 v{t2}, v{vLane}, 2, 3")
A(f"v_lshl_add_u32 v{vG2}, v{t1}, 17, v{t0}\nv_lshl_add_u32 v{vG2}, v{t2}, 14, v{vG2}")
A(f"v_lshrrev_b32 v{aOLW}, 1, v{t0}\nv_lshl_add_u32 v{aOLW}, v{t1}, 7, v{aOLW}\nv_add_u32 v{aOLW}, {OL}, v{aOLW}")
A(f"v_and_b32 v{t1}, 1, v{vLane}\nv_lshlrev_b32 v{aOLR}, 3, v{vG4}\nv_lshl_add_u32 v{aOLR}, v{t1}, 7, v{aOLR}\nv_add_u32 v{aOLR}, {OL}, v{aOLR}")
A(f"v_lshlrev_b32 v{vOo}, 3, v{t1}\nv_lshlrev_b32 v{vP3}, 10, v{t1}\nv_lshl_add_u32 v{vP3}, v{j}, 8, v{vP3}\nv_lshl_add_u32 v{vP3}, v{vG4}, 4, v{vP3}")
A(f"v_bfe_u32 v{t2}, v{vLane}, 1, 2\nv_lshl_add_u32 v{vP3}, v{t2}, 6, v{vP3}")
A(f"v_lshrrev_b32 v{t2}, 1, v{vLane}\nv_lshlrev_b32 v{vG3}, 4, v{t1}\nv_lshl_add_u32 v{vG3}, v{t2}, 11, v{vG3}")
for i, mk in enumerate((0x0c0c0c0c, 0x30303030, 0xc0c0c0c0)):
    A(f"s_mov_b32 s{sMk+2*i}, {mk:#x}\ns_mov_b32 s{sMk+2*i+1}, {mk:#x}")
sOo = sM
A(f"s_lshr_b32 s{sT}, s{sS}, 6\ns_lshl_b32 s{sT}, s{sT}, 9\ns_and_b32 s{sT2}, s{sS}, 31\ns_lshl_b32 s{sT2}, s{sT2}, 4\ns_add_u32 s{sT}, s{sT}, s{sT2}")
A(f"s_bfe_u32 s{sT2}, s{sS}, {5 | (1 << 16):#x}\ns_lshl_b32 s{sT2}, s{sT2}, 11\ns_add_u32 s{sOo}, s{sT}, s{sT2}")
A(f"s_cmp_lg_u32 s{sWave}, 0\ns_cbranch_scc1 L_nosm")
A(f"buffer_load_dwordx2 {vr(vSm,2)}, v{vOo}, {srd(sX)}, s{sOo} offen")
A(f"buffer_load_dwordx2 {vr(vSm+2,2)}, v{vOo}, {srd(sB2)}, s{sT} offen")
A("L_nosm:")
A(f"s_lshl_b32 s{sT}, s{sx8}, 14\ns_add_u32 s{sT}, s{sT}, {P1:#x}\ns_add_u32 s{sT2}, s{sT}, 4096\ns_add_u32 s{sT3}, s{sT}, 8192\ns_add_u32 s{sT4}, s{sT}, 12288")
def g1():
    if NOG: return
    for k, so in enumerate((sT, sT2, sT3, sT4)):
        A(f"buffer_load_dwordx4 {vr(vG+4*k,4)}, v{vG1}, {srd(sWS)}, s{so} offen sc1")
waitLC(pK, sW8)
for T in range(2):
    for s_ in range(4): A(f"ds_read_b128 {vr(vKF+16*T+4*s_,4)}, v{aK+s_} offset:{4096*T}")
signal(2)
waitLC(OPT["g1"])
stamp("g1i")
g1()
A(f"s_mov_b32 s{sG}, 0x3db504f3\ns_mov_b32 s{sG+1}, 0x3fb8aa3b\nv_mov_b32 v{vS+4}, s{sG}\nv_mov_b32 v{vS+6}, s{sG+1}")
A("s_waitcnt vmcnt(0)")
stamp("g1a")
chk6(vG, 16, "g1", g1, 1)
stamp("g1ok")
for r in (0, 2): A(f"v_pk_add_f32 {vr(vG+r,2)}, {vr(vG+r,2)}, {vr(vG+4+r,2)}\nv_pk_add_f32 {vr(vG+8+r,2)}, {vr(vG+8+r,2)}, {vr(vG+12+r,2)}")
for r in (0, 2): A(f"v_pk_add_f32 {vr(vG+r,2)}, {vr(vG+r,2)}, {vr(vG+8+r,2)}")
A(f"v_cvt_pk_bf16_f32 v{vG}, v{vG}, v{vG+1}\nv_cvt_pk_bf16_f32 v{vG+1}, v{vG+2}, v{vG+3}")
A(f"ds_write_b64 v{aQW}, {vr(vG,2)}")
LB(3)
stamp("lb3")
for s_ in range(4): A(f"ds_read_b128 {vr(vQ+4*s_,4)}, v{aQ} offset:{64*s_}")
for s_ in range(4):
    A(f"s_waitcnt lgkmcnt({3-s_})")
    for T in range(2):
        c = "0" if s_ == 0 else vr(vU+4*T, 4)
        A(f"v_mfma_f32_16x16x32_bf16 {vr(vU+4*T,4)}, {vr(vKF+16*T+4*s_,4)}, {vr(vQ+4*s_,4)}, {c}")
vM, vL = vS, vS+1
for p in range(4): A(f"v_cvt_pk_bf16_f32 v{vU+8+p}, v{vU+2*p}, v{vU+2*p+1}")
for p in range(4): unpack(vU+2*p, vU+2*p+1, vU+8+p)
for p in range(4): A(f"v_pk_mul_f32 {vr(vU+2*p,2)}, {vr(vU+2*p,2)}, {vr(vS+4,2)} op_sel_hi:[1,0]")
for p in range(4): A(f"v_cvt_pk_bf16_f32 v{vU+8+p}, v{vU+2*p}, v{vU+2*p+1}")
for p in range(4): unpack(vU+2*p, vU+2*p+1, vU+8+p)
A(f"v_max3_f32 v{vM}, v{vU}, v{vU+1}, v{vU+2}\nv_max3_f32 v{vS+2}, v{vU+3}, v{vU+4}, v{vU+5}\nv_max3_f32 v{vM}, v{vM}, v{vU+6}, v{vU+7}\nv_max_f32 v{vM}, v{vM}, v{vS+2}")
allred(vM, "v_max_f32", ["p16", "p32"], vS+2)
A(f"v_mul_f32 v{vM}, v{vM}, v{vS+6}")
for p in range(4): A(f"v_pk_fma_f32 {vr(vU+2*p,2)}, {vr(vU+2*p,2)}, {vr(vS+6,2)}, {vr(vM,2)} op_sel_hi:[1,0,0] neg_lo:[0,0,1] neg_hi:[0,0,1]")
for r in range(8): A(f"v_exp_f32 v{vU+r}, v{vU+r}")
for p in range(4): A(f"v_cvt_pk_bf16_f32 v{vU+8+p}, v{vU+2*p}, v{vU+2*p+1}")
A(f"ds_write_b128 v{aPXW}, {vr(vU+8,4)}")
A(f"v_pk_add_f32 {vr(vU,2)}, {vr(vU,2)}, {vr(vU+2,2)}\nv_pk_add_f32 {vr(vU+4,2)}, {vr(vU+4,2)}, {vr(vU+6,2)}\nv_pk_add_f32 {vr(vU,2)}, {vr(vU,2)}, {vr(vU+4,2)}\nv_add_f32 v{vL}, v{vU}, v{vU+1}")
allred(vL, "v_add_f32", ["p16", "p32"], vS+2)
A(f"ds_write_b64 v{aMLW}, {vr(vM,2)}")
signal(4)
stamp("sm")
waitLC(pW1)
for w in range(4):
    for d in range(2):
        f = vF + 8*w + 4*d
        A(f"ds_read_b64_tr_b16 {vr(f,2)}, v{aV+d} offset:{8192*w}\nds_read_b64_tr_b16 {vr(f+2,2)}, v{aV+d} offset:{8192*w + 4096}")
A(f"s_lshl_b32 s{sT}, s{sS}, 12\ns_add_u32 s{sT}, s{sT}, {P2:#x}")
waitPW(4)
stamp("lb4")
for w in range(4): A(f"ds_read_b128 {vr(vQ+4*w,4)}, v{aPXR} offset:{1024*w}")
for w in range(4): A(f"ds_read_b64 {vr(vU+16+2*w,2)}, v{aMLR} offset:{64*w}")
for w in range(4):
    A(f"s_waitcnt lgkmcnt({7-w})")
    for d in range(2):
        A(f"v_mfma_f32_16x16x32_bf16 {vr(vAcc+8*w+4*d,4)}, {vr(vF+8*w+4*d,4)}, {vr(vQ+4*w,4)}, 0")
A("s_waitcnt lgkmcnt(0)")
m = lambda w: vU + 16 + 2*w
A(f"v_max3_f32 v{vM}, v{m(0)}, v{m(1)}, v{m(2)}\nv_max_f32 v{vM}, v{vM}, v{m(3)}")
for w in range(4): A(f"v_sub_f32 v{m(w)}, v{m(w)}, v{vM}")
for w in range(4): A(f"v_exp_f32 v{m(w)}, v{m(w)}")
A(f"v_mul_f32 v{vL}, v{m(0)}, v{m(0)+1}")
for w in range(1, 4): A(f"v_fmac_f32 v{vL}, v{m(w)}, v{m(w)+1}")
A(f"v_rcp_f32 v{vS+2}, v{vL}\nv_log_f32 v{vS+3}, v{vL}")
for h in (0, 2, 4, 6): A(f"v_pk_mul_f32 {vr(vAcc+h,2)}, {vr(vAcc+h,2)}, {vr(m(0),2)} op_sel_hi:[1,0]")
for w in range(1, 4):
    for h in (0, 2, 4, 6): A(f"v_pk_fma_f32 {vr(vAcc+h,2)}, {vr(vAcc+8*w+h,2)}, {vr(m(w),2)}, {vr(vAcc+h,2)} op_sel_hi:[1,0,1]")
A(f"s_mov_b32 vcc_lo, 0xff00ff00\ns_mov_b32 vcc_hi, 0xff00ff00")
for r in range(4): A(f"v_cndmask_b32 v{vAcc+r}, v{vAcc+r}, v{vAcc+4+r}, vcc")
for h in (0, 2): A(f"v_pk_mul_f32 {vr(vAcc+h,2)}, {vr(vAcc+h,2)}, {vr(vS+2,2)} op_sel_hi:[1,0]")
A(f"v_cvt_pk_bf16_f32 v{vU}, v{vAcc}, v{vAcc+1}\nv_cvt_pk_bf16_f32 v{vU+1}, v{vAcc+2}, v{vAcc+3}\nv_add_f32 v{vU+2}, v{vM}, v{vS+3}\nv_mov_b32 v{vU+3}, s{sT32}")
if OPT.get("s2") == 1: A(f"buffer_store_dwordx4 {vr(vU,4)}, v{vG1}, {srd(sWS)}, s{sT} offen sc1")
elif OPT.get("s2") == 2: pass
elif OPT.get("s2") == 3: A(f"buffer_store_dwordx4 {vr(vU,4)}, v{vG1}, {srd(sWS)}, s{sT} offen")
else: A(f"buffer_store_dwordx4 {vr(vU,4)}, v{vS2o}, {srd(sWS)}, s{sT} offen sc1")
stamp("S2")
A(f"s_lshr_b32 s{sT}, s{sx8}, 1\ns_lshl_b32 s{sT}, s{sT}, 18\ns_bfe_u32 s{sT2}, s{sS}, {2 | (4 << 16):#x}\ns_lshl_b32 s{sT2}, s{sT2}, 8\ns_add_u32 s{sT}, s{sT}, s{sT2}\ns_add_u32 s{sT}, s{sT}, {P2:#x}")
A(f"s_add_u32 s{sT2}, s{sT}, 4096\ns_add_u32 s{sT3}, s{sT}, 8192\ns_add_u32 s{sT4}, s{sT}, 12288")
def g2():
    if NOG: return
    for k, so in enumerate((sT, sT2, sT3, sT4)):
        A(f"buffer_load_dwordx4 {vr(vG+4*k,4)}, v{vG2}, {srd(sWS)}, s{so} offen sc1")
def frag_reads(fb, base, k):
    for ct in range(4):
        f = fb + 16*k + 4*ct
        A(f"ds_read_b64_tr_b16 {vr(f,2)}, v{aW+ct} offset:{base + 4096*k}")
        A(f"ds_read_b64_tr_b16 {vr(f+2,2)}, v{aW+ct} offset:{base + 4096*k + 2048}")
def mfmas(fb, xb, k, first, wait=None):
    for ct in range(4):
        f = fb + 16*k + 4*ct
        if wait is not None: A(f"s_waitcnt lgkmcnt({wait + 6 - 2*ct})")
        c = "0" if first else vr(vAcc+4*ct, 4)
        A(f"v_mfma_f32_16x16x32_bf16 {vr(vAcc+4*ct,4)}, {vr(f,4)}, {vr(xb+4*k,4)}, {c}")
waitLC(OPT["g2"])
A("s_waitcnt vmcnt(0)")
stamp("g2i")
g2()
waitLC(pWO + 16, sW4)
frag_reads(vF, S0, 0); frag_reads(vF, S0, 1)
A("s_waitcnt vmcnt(0)")
stamp("g2a")
A("L_g2chk:")
for k in range(4): A(f"v_xor_b32 v{vG+4*k+3}, s{sT32}, v{vG+4*k+3}")
A(f"v_or3_b32 v{vS}, v{vG+3}, v{vG+7}, v{vG+11}\nv_or_b32 v{vS}, v{vS}, v{vG+15}\nv_cmp_ne_u32 vcc, 0, v{vS}\n" + ("s_branch" if NOG else "s_cbranch_vccz") + " L_g2ok")
A(f"s_add_u32 s{sRetry}, s{sRetry}, 0x100\ns_sub_u32 s{sSpin}, s{sSpin}, 1\ns_cbranch_scc1 L_bail")
g2()
A("s_waitcnt vmcnt(0)\ns_branch L_g2chk\nL_g2ok:")
stamp("g2ok")
ls = lambda k: vG + 4*k + 2
A(f"v_max3_f32 v{vM}, v{ls(0)}, v{ls(1)}, v{ls(2)}\nv_max_f32 v{vM}, v{vM}, v{ls(3)}")
for k in range(2):
    unpack(vU+4*k, vU+4*k+1, vG+4*k); unpack(vU+4*k+2, vU+4*k+3, vG+4*k+1)
    allred(vM, "v_max_f32", [["r4"], ["r8"]][k], None)
A(f"v_mov_b32 v{vS+2}, v{vM}")
unpack(vU+8, vU+9, vG+8)
A(f"v_permlane16_swap_b32 v{vM}, v{vS+2}")
unpack(vU+10, vU+11, vG+9)
A(f"v_max_f32 v{vM}, v{vM}, v{vS+2}")
for k in range(4): A(f"v_sub_f32 v{ls(k)}, v{ls(k)}, v{vM}")
for k in range(4): A(f"v_exp_f32 v{ls(k)}, v{ls(k)}")
unpack(vU+12, vU+13, vG+12); unpack(vU+14, vU+15, vG+13)
A(f"v_add_f32 v{vL}, v{ls(0)}, v{ls(1)}\nv_add_f32 v{vS+2}, v{ls(2)}, v{ls(3)}\nv_add_f32 v{vL}, v{vL}, v{vS+2}")
for h in (0, 2): A(f"v_pk_mul_f32 {vr(vU+h,2)}, {vr(vU+h,2)}, {vr(ls(0),2)} op_sel_hi:[1,0]")
for k in range(1, 4):
    for h in (0, 2): A(f"v_pk_fma_f32 {vr(vU+h,2)}, {vr(vU+4*k+h,2)}, {vr(ls(k),2)}, {vr(vU+h,2)} op_sel_hi:[1,0,1]")
allred([vL, vU, vU+1, vU+2, vU+3], "v_add_f32", ["r4", "r8", "p16"], [vU+4, vU+5, vU+6, vU+7, vU+8])
A(f"v_rcp_f32 v{vS+2}, v{vL}")
for h in (0, 2): A(f"v_pk_mul_f32 {vr(vU+h,2)}, {vr(vU+h,2)}, {vr(vS+2,2)} op_sel_hi:[1,0]")
A(f"v_cvt_pk_bf16_f32 v{vU}, v{vU}, v{vU+1}\nv_cvt_pk_bf16_f32 v{vU+1}, v{vU+2}, v{vU+3}")
setexec(0x0000000f0000000f)
A(f"ds_write_b64 v{aOLW}, {vr(vU,2)}")
fullexec()
LB(5)
stamp("lb5")
A(f"ds_read2_b64 {vr(vQ,4)}, v{aOLR} offset0:0 offset1:4\nds_read2_b64 {vr(vQ+4,4)}, v{aOLR} offset0:8 offset1:12")
A(f"s_and_b32 s{sT}, s{sS}, 3\ns_lshl_b32 s{sT}, s{sT}, 17\ns_lshr_b32 s{sT2}, s{sS}, 2\ns_lshl_b32 s{sT2}, s{sT2}, 11\ns_add_u32 s{sT}, s{sT}, s{sT2}\ns_add_u32 s{sT}, s{sT}, {P3:#x}\nv_mov_b32 v{vS}, s{sT6}")
A("s_waitcnt lgkmcnt(1)")
mfmas(vF, vQ, 0, True)
A("s_waitcnt lgkmcnt(0)")
mfmas(vF, vQ, 1, False)
stamp("wo")
waitMW(1)
A(f"ds_read2_b64 {vr(vQ+8,4)}, v{aOLR} offset0:32 offset1:36\nds_read2_b64 {vr(vQ+12,4)}, v{aOLR} offset0:40 offset1:44")
stamp("h")
waitLC(pW2, sW4)
frag_reads(vXB, S1, 0)
mfmas(vXB, vQ+8, 0, False, 0)
waitLC(pW2 + 16, sW4)
frag_reads(vXB, S1, 1)
mfmas(vXB, vQ+8, 1, False, 0)
stamp("fin")
for ct in range(1, 4):
    for r in range(4): A(f"v_cndmask_b32 v{vAcc+r}, v{vAcc+r}, v{vAcc+4*ct+r}, s[{sMk+2*ct-2}:{sMk+2*ct-1}]")
for r in range(4): A(f"v_bfi_b32 v{vAcc+r}, s{sC63}, v{vS}, v{vAcc+r}")
setexec(0x00ff00ff00ff00ff)
A(f"buffer_store_dwordx4 {vr(vAcc,4)}, v{vP3}, {srd(sWS)}, s{sT} offen sc1")
fullexec()
A(f"s_cmp_lg_u32 s{sWave}, 0\ns_cbranch_scc1 L_done")
A(f"s_lshr_b32 s{sT}, s{sS}, 6\ns_lshl_b32 s{sT}, s{sT}, 17\ns_and_b32 s{sT2}, s{sS}, 63\ns_lshl_b32 s{sT2}, s{sT2}, 5\ns_add_u32 s{sT}, s{sT}, s{sT2}\ns_add_u32 s{sT}, s{sT}, {P3:#x}\ns_add_u32 s{sT2}, s{sT}, 65536")
def g3():
    if NOG: return
    for k, so in enumerate((sT, sT2)):
        A(f"buffer_load_dwordx4 {vr(vG+4*k,4)}, v{vG3}, {srd(sWS)}, s{so} offen sc1")
vH = vQ
unpack(vH, vH+1, vSm); unpack(vH+2, vH+3, vSm+1); unpack(vH+4, vH+5, vSm+2); unpack(vH+6, vH+7, vSm+3)
for r in (0, 2): A(f"v_pk_add_f32 {vr(vH+r,2)}, {vr(vH+r,2)}, {vr(vH+4+r,2)}")
A("s_waitcnt vmcnt(0)")
stamp("ack")
g3()
A("s_waitcnt vmcnt(0)")
chk6(vG, 8, "g3", g3, 0x1000000)
stamp("g3ok")
for r in (0, 2): A(f"v_pk_add_f32 {vr(vG+r,2)}, {vr(vG+r,2)}, {vr(vG+4+r,2)}")
allred([vG, vG+1, vG+2, vG+3], "v_add_f32", ["r2", "r4", "r8", "p16", "p32"], [vG+4, vG+5, vG+6, vG+7])
for r in (0, 2): A(f"v_pk_add_f32 {vr(vH+r,2)}, {vr(vH+r,2)}, {vr(vG+r,2)}")
A(f"v_cvt_pk_bf16_f32 v{vH}, v{vH}, v{vH+1}\nv_cvt_pk_bf16_f32 v{vH+1}, v{vH+2}, v{vH+3}")
setexec(3)
A(f"buffer_store_dwordx2 {vr(vH,2)}, v{vOo}, {srd(sOUT)}, s{sOo} offen")
A(f"s_cmp_lg_u32 s2, 0\ns_cbranch_scc1 L_done")
A(f"v_mov_b32 v{vS}, s{sT32}\nv_mov_b32 v{vS+1}, 0")
setexec(1)
A(f"buffer_store_dword v{vS}, v{vS+1}, {srd(sWS)}, 0 offen sc1")
A("L_done:")
if "probe" in OPT:
    stamp("end")
    if STN[0][:2] not in ("l_", "m_"):
        A(f"s_cmp_lg_u32 s{sWave}, {OPT['swave']}\ns_cbranch_scc1 L_end")
        probe_pad()
elif DUMP:
    stamp("end")
    l3 = ("x", "ln1", "S1")
    A(f"s_cmp_lg_u32 s{sWave}, 3\ns_cbranch_scc1 L_d0")
    dump_stamps(True, lambda n: n in l3, None)
    A("s_endpgm\nL_d0:")
    A(f"s_cmp_lg_u32 s{sWave}, {OPT['swave']}\ns_cbranch_scc1 L_end")
    dump_stamps(True, lambda n: n not in l3 and n[:2] not in ("l_", "m_"), 8*31)
A("L_end:\ns_endpgm")
A("L_bail:")
A(f"v_mov_b32 v{vFl}, 0x7fffffff\nds_write_b32 v{aPW}, v{vFl}\ns_waitcnt lgkmcnt(0)\ns_endpgm")
A("L_proj:")
A(f"ds_write_b128 v{aXW}, {vr(vP,4)}")
for k in range(8): A(f"ds_read2_b64 {vr(vXB+4*k,4)}, v{aXB} offset0:{8*k} offset1:{8*k+4}")
A(f"v_mov_b32 v{vS}, s{sT6}")
def pj_batch(ks):
    waitLC(4*(ks[-1]+1), sPB)
    for i, k in enumerate(ks):
        for c in range(2):
            f = vF + 8*i + 4*c
            A(f"ds_read_b64_tr_b16 {vr(f,2)}, v{aPj+c} offset:{4096*k}\nds_read_b64_tr_b16 {vr(f+2,2)}, v{aPj+c} offset:{4096*k + 2048}")
    if ks[-1] == 7: A(f"ds_write_b32 v{aPW}, v{vSig}")
    n = 4*len(ks) + (1 if ks[-1] == 7 else 0)
    for i, k in enumerate(ks):
        for c in range(2):
            n -= 2
            A(f"s_waitcnt lgkmcnt({n})")
            cc = "0" if k == 0 else vr(vAcc+4*c, 4)
            A(f"v_mfma_f32_16x16x32_bf16 {vr(vAcc+4*c,4)}, {vr(vF+8*i+4*c,4)}, {vr(vXB+4*k,4)}, {cc}")
pj_batch([0, 1, 2, 3]); pj_batch([4, 5, 6]); pj_batch([7])
for r in range(4): A(f"v_cndmask_b32 v{vAcc+r}, v{vAcc+r}, v{vAcc+4+r}, s[{sMk}:{sMk+1}]")
for r in range(4): A(f"v_add_u32 v{vAcc+r}, 32, v{vAcc+r}")
for r in range(4): A(f"v_bfi_b32 v{vAcc+r}, s{sC63}, v{vS}, v{vAcc+r}")
setexec(0x000f000f000f000f)
if not OPT.get("nos1"): A(f"buffer_store_dwordx4 {vr(vAcc,4)}, v{vPub}, {srd(sWS)}, s{sT3} offen sc1")
fullexec()
A(f"s_setpc_b64 s[{sRA}:{sRA+1}]")
A("L_ln:")
for i in range(16): unpack(vU+2*i, vU+2*i+1, vP+i)
a0, a1 = vS, vS+2
A(f"v_pk_add_f32 {vr(a0,2)}, {vr(vU,2)}, {vr(vU+2,2)}\nv_pk_add_f32 {vr(a1,2)}, {vr(vU+4,2)}, {vr(vU+6,2)}")
for i in range(4, 16, 2): A(f"v_pk_add_f32 {vr(a0,2)}, {vr(a0,2)}, {vr(vU+2*i,2)}\nv_pk_add_f32 {vr(a1,2)}, {vr(a1,2)}, {vr(vU+2*i+2,2)}")
A(f"v_pk_add_f32 {vr(a0,2)}, {vr(a0,2)}, {vr(a1,2)}\nv_add_f32 v{a0}, v{a0}, v{a0+1}")
allred(a0, "v_add_f32", ["q1", "q2", "hm", "m", "p16"], a1)
mean = vS+6
A(f"v_mul_f32 v{mean}, 0x3a800000, v{a0}")
for i in range(16):
    acc = a0 if i % 2 == 0 else a1
    dd = vF + 2*(i % 4)
    A(f"v_pk_add_f32 {vr(dd,2)}, {vr(vU+2*i,2)}, {vr(mean,2)} op_sel_hi:[1,0] neg_lo:[0,1] neg_hi:[0,1]")
    if i < 2: A(f"v_pk_mul_f32 {vr(acc,2)}, {vr(dd,2)}, {vr(dd,2)}")
    else: A(f"v_pk_fma_f32 {vr(acc,2)}, {vr(dd,2)}, {vr(dd,2)}, {vr(acc,2)}")
A(f"v_pk_add_f32 {vr(a0,2)}, {vr(a0,2)}, {vr(a1,2)}\nv_add_f32 v{a0}, v{a0}, v{a0+1}")
allred(a0, "v_add_f32", ["q1", "q2", "hm", "m", "p16"], a1)
A(f"v_mul_f32 v{a0}, 0x3a800000, v{a0}\nv_cvt_pk_bf16_f32 v{a0}, v{a0}, v{mean}")
A(f"v_and_b32 v{mean}, s{sHI}, v{a0}\nv_lshlrev_b32 v{a0}, 16, v{a0}\nv_add_f32 v{a0}, 0x3727c5ac, v{a0}")
A(f"v_cvt_pk_bf16_f32 v{a0}, v{a0}, v{a0}\nv_lshlrev_b32 v{a0}, 16, v{a0}\nv_sqrt_f32 v{a0}, v{a0}")
A(f"v_cvt_pk_bf16_f32 v{a0}, v{a0}, v{a0}\nv_lshlrev_b32 v{a0}, 16, v{a0}\nv_rcp_f32 v{a0}, v{a0}")
norm(0)
A(f"s_setpc_b64 s[{sRA}:{sRA+1}]")

body, nadd = hz.pad("\n".join(L))
if STN: body += "\n; STAMPS start," + ",".join(STN) + ",end"
hdr = open(os.path.join(os.path.dirname(__file__), "header.txt")).read()
out = f"""{hdr}; @launch grid=(256,1,1) block=(448,1,1) lds={LDS_END}
.amdgcn_target "amdgcn-amd-amdhsa--gfx950"
.text
.globl {NAME}_kernel
.p2align 8
.type {NAME}_kernel,@function
{NAME}_kernel:
{body}
.section .rodata,"a"
.p2align 6
.amdhsa_kernel {NAME}_kernel
  .amdhsa_next_free_vgpr {NV}
  .amdhsa_next_free_sgpr 102
  .amdhsa_accum_offset {NV}
  .amdhsa_group_segment_fixed_size 0
  .amdhsa_kernarg_size 104
  .amdhsa_user_sgpr_count 2
  .amdhsa_user_sgpr_kernarg_segment_ptr 1
  .amdhsa_system_sgpr_workgroup_id_x 1
  .amdhsa_float_denorm_mode_32 3
.end_amdhsa_kernel
"""
open(sys.argv[1], "w").write(out)

print("NV", NV, "LDS", LDS_END, "nops added", nadd, file=sys.stderr)
```

```python
import sys, os
sys.path.insert(0, os.path.dirname(__file__))
import hz
NAME = "parallel_sum__sliding_block_cached__mixer_channel_mlp__decode"
OPT = dict(stamps=0, nt=1, spin=1 << 16, swave=0, Wk=20, Wv=20, Wvb=32, W1=20, Wo=20, W2=20, W2x=36,
           g1=64, g2=152, g4=152, cpf=1, dry=1, qmap=3, lay=0)
STN = None
for a in sys.argv[2:]:
    k, v = a.split("=")
    if k == "st": STN = v.split(","); OPT["stamps"] = 1
    elif k == "W":
        for kk in ("Wk", "Wv", "W1", "Wo", "W2"): OPT[kk] = int(v)
    else: OPT[k] = int(v)
NT = " nt" if OPT["nt"] else ""
SEC = {}; L = []
def sec(name):
    global L
    L = SEC.setdefault(name, [])
def A(s):
    for x in s.split("\n"): L.append("    " + x.strip() if not x.strip().endswith(":") else x.strip())
class Alloc:
    def __init__(s, start): s.n = start
    def __call__(s, cnt=1, al=1):
        s.n = (s.n + al - 1) // al * al
        r = s.n; s.n += cnt; return r
VA = Alloc(1)
def vr(r, n): return f"v[{r}:{r+n-1}]"
def srd(r): return f"s[{r}:{r+3}]"
sLive = 6
sX, sWQ, sK, sV, sW1, sWO, sW2 = range(8, 36, 4)
sB1, sWS, sE = sWQ, sW1, sWO
(sx8, si32, sS, sCG2, sWave, sT, sT2, sT3, sT4, sT5, sT32, sT6, sHI, sSpin, sC63, sRetry, sW8, sGi, sNeed, sPB, sCnt, sM, sG, sR4) = range(36, 60)
sPub = sW8
sRA = 60; sMk = 62
STB = 68
P1, P4, P2L, P2, P3, WSSZ = 0x10000, 0x40000, 0x60000, 0x100000, 0x200000, 0x400000
S0, S1, S2, S3, M = 0, 32768, 65536, 98304, 131072
XR, PX, XN, YN, QL = M, M + 4096, M + 8192, M + 9216, M + 10240
ML = QL + 2304; OL = ML + 256; HL = OL + 256; FLG = HL + 256
LDS_END = FLG + 256
LCO = 32
pX, pWQ, pK, pV, pW1, pWO, pW2, pEND = 0, 4, 36, 68, 100, 132, 164, 196
vLane, vG4, vN16, vJ, vTmp2, vTmp3 = [VA() for _ in range(6)]
aFL = VA(); aPW = VA()
aW = VA(4); aK = VA(4); aV = VA(2); aQ = VA(); aXB = VA(); aXW = VA(); aPj = VA(2)
vPub = VA(); vG1 = VA(); aQW = VA(); aPXW = VA(); aPXR = VA(); aMLW = VA(); aMLR = VA(); vS2o = VA(); vS2l = VA()
vG2 = VA(); vG2l = VA(); vP3 = VA(); aOLW = VA(); aOLR = VA(); vSig = VA()
vP = VA(16, 4); vU = VA(32, 4); vS = VA(8, 4); vXB = VA(32, 4); vF = VA(32, 4); vAcc = VA(32, 4)
vQ = VA(16, 4); vG = VA(16, 4); vSm = VA(8, 2); vFl = VA(4, 2)
vKF = vXB
NV = (VA.n + 7) // 8 * 8
assert NV <= 256, NV
t0, t1, t2 = vS, vS+1, vS+2
nst = [0]; slots = {}
def stamp(name):
    if OPT["stamps"] and (name in STN or name in ("start", "end")):
        i = nst[0]; nst[0] += 1
        slots[name] = (i, 0 if name == "start" else (len(STN) + 1 if name == "end" else STN.index(name) + 1))
        assert STB + 2*i + 1 <= 101
        A(f"s_memrealtime s[{STB+2*i}:{STB+2*i+1}]")
lab = [0]
def newlab(p):
    lab[0] += 1; return f"L_{p}{lab[0]}"
DPP = dict(q1="quad_perm:[1,0,3,2]", q2="quad_perm:[2,3,0,1]", hm="row_half_mirror", m="row_mirror",
           r2="row_ror:2", r4="row_ror:4", r8="row_ror:8")
def allred(reg, op, steps, tmp):
    regs_ = reg if isinstance(reg, list) else [reg]
    tmps = tmp if isinstance(tmp, list) else [tmp]
    for st in steps:
        if st in DPP:
            for r in regs_: A(f"{op}_dpp v{r}, v{r}, v{r} {DPP[st]} row_mask:0xf bank_mask:0xf")
        else:
            ins = "v_permlane16_swap_b32" if st == "p16" else "v_permlane32_swap_b32"
            for r, t in zip(regs_, tmps): A(f"v_mov_b32 v{t}, v{r}")
            for r, t in zip(regs_, tmps): A(f"{ins} v{r}, v{t}")
            for r, t in zip(regs_, tmps): A(f"{op} v{r}, v{r}, v{t}")
def unpack(dlo, dhi, src): A(f"v_lshlrev_b32 v{dlo}, 16, v{src}\nv_and_b32 v{dhi}, s{sHI}, v{src}")
def pk(op, d, a, b, c=None, mods=""):
    A(f"v_pk_{op}_f32 {vr(d,2)}, {vr(a,2)}, {vr(b,2)}" + (f", {vr(c,2)}" if c is not None else "") + (" " + mods if mods else ""))
BC = "op_sel_hi:[1,0]"; BC3 = "op_sel_hi:[1,0,1]"; NEG = "op_sel_hi:[1,0] neg_lo:[0,1] neg_hi:[0,1]"
def setexec(m):
    lo, hi = m & 0xffffffff, (m >> 32) & 0xffffffff
    if lo == hi: A(f"s_and_b32 exec_lo, s{sLive}, {lo:#x}\ns_mov_b32 exec_hi, exec_lo")
    else: A(f"s_and_b32 exec_lo, s{sLive}, {lo:#x}\ns_and_b32 exec_hi, s{sLive}, {hi:#x}")
def fullexec(): A(f"s_mov_b64 exec, s[{sLive}:{sLive+1}]")
def vm(s_):
    l = newlab("vm"); A(f"s_cbranch_execz {l}"); A(s_); A(f"{l}:")
def dry_on(): A(f"s_mov_b64 s[{sLive}:{sLive+1}], 0\ns_mov_b64 exec, 0")
def dry_off(): A(f"s_mov_b64 s[{sLive}:{sLive+1}], -1\ns_mov_b64 exec, -1")
def waitLC(base, sreg=None):
    l = newlab("lc")
    if sreg is None: A(f"s_movk_i32 s{sNeed}, {base}")
    else: A(f"s_add_u32 s{sNeed}, s{sreg}, {base}")
    A(f"{l}:\nds_read_b32 v{vFl}, v{aFL} offset:{LCO}\ns_waitcnt lgkmcnt(0)\nv_cmp_gt_i32 vcc, s{sNeed}, v{vFl}\ns_cbranch_vccnz {l}")
def signal(stage): A(f"v_mov_b32 v{vFl}, {stage}\nds_write_b32 v{aPW}, v{vFl}")
def pwtest(stage): A(f"v_min3_i32 v{vFl}, v{vFl}, v{vFl+1}, v{vFl+2}\nv_min_i32 v{vFl}, v{vFl}, v{vFl+3}\nv_cmp_gt_i32 vcc, {stage}, v{vFl}")
def waitPW(stage):
    l = newlab("pw")
    A(f"{l}:\nds_read_b128 {vr(vFl,4)}, v{aFL}\ns_waitcnt lgkmcnt(0)"); pwtest(stage); A(f"s_cbranch_vccnz {l}")
def waitMW(stage):
    l = newlab("mw")
    A(f"{l}:\nds_read_b64 {vr(vFl,2)}, v{aFL} offset:16\ns_waitcnt lgkmcnt(0)\nv_min_i32 v{vFl}, v{vFl}, v{vFl+1}\nv_cmp_gt_i32 vcc, {stage}, v{vFl}\ns_cbranch_vccnz {l}")
def LB(stage): signal(stage); waitPW(stage)
def orred(dst, regs_):
    regs_ = list(regs_)
    A(f"v_or3_b32 v{dst}, v{regs_[0]}, v{regs_[1]}, v{regs_[2]}"); r = 3
    while r + 1 < len(regs_):
        A(f"v_or3_b32 v{dst}, v{dst}, v{regs_[r]}, v{regs_[r+1]}"); r += 2
    if r < len(regs_): A(f"v_or_b32 v{dst}, v{dst}, v{regs_[r]}")
def retry_tail(name, reissue, inc, masked):
    A(f"v_cmp_ne_u32 vcc, 0, v{vS}\ns_cbranch_vccz L_{name}ok")
    A(f"s_add_u32 s{sRetry}, s{sRetry}, {inc}\ns_sub_u32 s{sSpin}, s{sSpin}, 1\ns_cbranch_scc1 L_bail")
    if masked: A("s_mov_b64 exec, vcc")
    reissue()
    A(f"s_waitcnt vmcnt(0)\ns_branch L_{name}chk\nL_{name}ok:")
    if masked: fullexec()
def chk6(base, n, name, reissue, inc):
    A(f"L_{name}chk:")
    for r in range(n): A(f"v_xor_b32 v{base+r}, s{sT6}, v{base+r}")
    orred(vS, range(base, base + n))
    A(f"v_and_b32 v{vS}, 63, v{vS}")
    retry_tail(name, reissue, inc, True)
DUMP = OPT["stamps"] and "probe" not in OPT
def dump_stamps(pred, retry_slot):
    A("s_mov_b64 exec, 1\ns_load_dwordx2 s[4:5], s[0:1], 96")
    A(f"s_waitcnt lgkmcnt(0)\ns_lshl_b32 s{sT}, s2, 8\ns_add_u32 s4, s4, s{sT}\ns_addc_u32 s5, s5, 0\ns_add_u32 s4, s4, 0x8000000\ns_addc_u32 s5, s5, 0\nv_mov_b32 v{vS+2}, 0")
    for nm, (i, sl) in slots.items():
        if pred(nm):
            A(f"v_mov_b32 v{vS}, s{STB+2*i}\nv_mov_b32 v{vS+1}, s{STB+2*i+1}\nglobal_store_dwordx2 v{vS+2}, {vr(vS,2)}, s[4:5] offset:{8*sl}\ns_nop 1")
    if retry_slot is not None:
        A(f"v_mov_b32 v{vS}, s{sRetry}\nglobal_store_dword v{vS+2}, v{vS}, s[4:5] offset:{retry_slot}")
def probe_pad():
    k = slots[STN[0]][0]; l = newlab("pad")
    A(f"s_waitcnt lgkmcnt(0)\ns_sub_u32 s{sT}, s{STB+2*k}, s{STB}\ns_lshl_b32 s{sT}, s{sT}, 2\ns_add_u32 s{sT}, s{sT}, 2000")
    A(f"{l}:\ns_memrealtime s[4:5]\ns_waitcnt lgkmcnt(0)\ns_sub_u32 s4, s4, s{STB}\ns_cmp_lt_u32 s4, s{sT}\ns_cbranch_scc1 {l}")
def qidx(cg, ks, tmp):
    if OPT["qmap"] == 3:
        A(f"s_cmp_ge_u32 s{si32}, 14\ns_cselect_b32 s{ks}, 1, 0\ns_cselect_b32 s{tmp}, 14, 0\ns_sub_u32 s{cg}, s{si32}, s{tmp}")
        A(f"s_cmp_ge_u32 s{cg}, 10\ns_addc_u32 s{tmp}, s{cg}, 0\ns_cmp_ge_u32 s{cg}, 3\ns_addc_u32 s{cg}, s{tmp}, 0")
        A(f"s_and_b32 s{tmp}, s{si32}, 1\ns_lshl_b32 s{tmp}, s{tmp}, 3\ns_add_u32 s{tmp}, s{tmp}, 3\ns_bfe_u32 s{sCG2}, s{si32}, 0x10001")
        A(f"s_cmp_ge_u32 s{si32}, 28\ns_cselect_b32 s{cg}, s{tmp}, s{cg}\ns_cselect_b32 s{ks}, s{sCG2}, s{ks}")
    else:
        A(f"s_and_b32 s{cg}, s{si32}, 15\ns_lshr_b32 s{ks}, s{si32}, 4")
    A(f"s_lshr_b32 s{tmp}, s{sx8}, 1\ns_lshl_b32 s{tmp}, s{tmp}, 4\ns_add_u32 s{cg}, s{cg}, s{tmp}\ns_and_b32 s{tmp}, s{sx8}, 1\ns_lshl_b32 s{tmp}, s{tmp}, 1\ns_add_u32 s{ks}, s{ks}, s{tmp}")
def midx(cg, ks, tmp):
    A(f"s_mul_i32 s{cg}, s{sx8}, 7\ns_lshr_b32 s{tmp}, s{si32}, 2\ns_add_u32 s{cg}, s{cg}, s{tmp}\ns_add_u32 s{tmp}, s{sx8}, 56\ns_cmp_lt_u32 s{si32}, 28\ns_cselect_b32 s{cg}, s{cg}, s{tmp}\ns_and_b32 s{ks}, s{si32}, 3")

sec("top")
stamp("start")
A(f"s_load_dwordx2 s[{sX}:{sX+1}], s[0:1], 0\ns_load_dwordx2 s[{sWQ}:{sWQ+1}], s[0:1], 24\ns_load_dwordx2 s[{sMk}:{sMk+1}], s[0:1], 96")
A("s_cmp_ge_u32 s2, 256\ns_cbranch_scc1 L_end")
A(f"v_readfirstlane_b32 s{sWave}, v0\nv_and_b32 v{vLane}, 63, v0\nv_subrev_u32 v0, 64, v0")
if OPT["cpf"]:
    A(f"s_getpc_b64 s[4:5]\nL_pc:\nv_lshlrev_b32 v{vU}, 7, v0\nv_cmp_gt_u32 vcc, (L_codeend-L_pc)/128, v0\ns_and_saveexec_b64 s[{sLive}:{sLive+1}], vcc\ns_cbranch_execz L_nocpf")
    A(f"global_load_dword v{vU+1}, v{vU}, s[4:5]\nL_nocpf:")
dry_off()
A(f"s_and_b32 s{sx8}, s2, 7\ns_lshr_b32 s{si32}, s2, 3")
A(f"s_cmp_lg_u32 s{sWave}, 0\ns_cbranch_scc1 L_notloader")
lX, lT8, lT7, lK, lV, lC = vP, vP+1, vP+2, vP+4, vP+8, vP+10
A(f"s_movk_i32 s{sX+2}, 4096\ns_mov_b32 s{sX+3}, 0x20000\nv_lshlrev_b32 v{lX}, 4, v{vLane}")
A(f"v_lshrrev_b32 v{vTmp2}, 3, v{vLane}\nv_and_b32 v{vS}, 6, v{vTmp2}\nv_and_b32 v{vTmp3}, 7, v{vLane}\nv_xor_b32 v{vTmp3}, v{vTmp3}, v{vS}\nv_lshlrev_b32 v{vTmp3}, 4, v{vTmp3}")
A(f"v_lshl_add_u32 v{lT8}, v{vTmp2}, 13, v{vTmp3}")
A(f"s_mov_b32 s{sWQ+2}, {1<<23:#x}\ns_mov_b32 s{sWQ+3}, s{sX+3}")
qidx(sG, sT3, sT)
A(f"s_lshl_b32 s{sG}, s{sG}, 7\ns_lshl_b32 s{sT}, s{sT3}, 16\ns_add_u32 s{sG}, s{sG}, s{sT}")
A(f"s_mov_b32 m0, {XR}\ns_waitcnt lgkmcnt(0)")
stamp("l_karg")
for q in range(4): A(f"buffer_load_dwordx4 v{lX}, {srd(sX)}, 0 offen offset:{1024*q} lds")
curW = [36]
def pub(): A(f"s_add_u32 s{sCnt}, s{sCnt}, 4\ns_max_i32 s{sPub}, s{sPub}, s{sCnt}\nv_mov_b32 v{lC}, s{sPub}\nds_write_b32 v{aFL}, v{lC} offset:{LCO}")
def trans(Wn):
    Wo = curW[0]; assert Wn % 4 == 0
    if Wn < Wo:
        for k in range(Wo - 4, Wn - 1, -4): A(f"s_waitcnt vmcnt({k})"); pub()
    elif Wn > Wo: A(f"s_sub_u32 s{sCnt}, s{sCnt}, {Wn - Wo}")
    curW[0] = Wn
def loop(n_end, body):
    l = newlab("ld"); A(f"{l}:"); body()
    A(f"s_cmp_lg_u32 s{sCnt}, {(n_end - curW[0]) & 0xffffffff}\ns_cbranch_scc1 {l}")
def aloop(n_end, body, Wb, stage):
    Wa = curW[0]
    if Wb <= Wa: loop(n_end, body); return
    la, ld = newlab("aa"), newlab("ad")
    A(f"{la}:\nds_read_b128 {vr(vFl,4)}, v{aFL}")
    body()
    A(f"s_cmp_eq_u32 s{sCnt}, {(n_end - Wa) & 0xffffffff}\ns_cbranch_scc1 {ld}\ns_waitcnt lgkmcnt(1)")
    pwtest(stage); A(f"s_cbranch_vccnz {la}")
    trans(Wb); loop(n_end, body); trans(Wa)
    A(f"{ld}:")
A(f"s_mov_b32 m0, {S0}\ns_mov_b32 s{sCnt}, 8\nL_pre:")
for q in range(4):
    A(f"buffer_load_dwordx4 v{lT8}, {srd(sWQ)}, s{sG} offen{NT} lds\ns_add_u32 m0, m0, 1024\ns_add_u32 s{sG}, s{sG}, {32*8192}")
A(f"s_sub_u32 s{sCnt}, s{sCnt}, 1\ns_cmp_lg_u32 s{sCnt}, 0\ns_cbranch_scc1 L_pre")
for r, off in ((sK, 8), (sV, 16), (sW1, 48), (sWO, 32), (sW2, 64)):
    A(f"s_load_dwordx2 s[{r}:{r+1}], s[0:1], {off}")
A(f"s_mov_b32 s{sPub}, 0\ns_mov_b32 s{sRetry}, 0\nv_mov_b32 v{aFL}, {FLG}\ns_setprio 3\ns_barrier")
trans(32)
stamp("l_x")
A("s_branch L_loader2")
sec("ld2")
A("L_loader2:")
A(f"v_lshrrev_b32 v{vG4}, 4, v{vLane}\nv_and_b32 v{vN16}, 15, v{vLane}")
A(f"v_mul_u32_u24 v{lT7}, 7168, v{vTmp2}\nv_add_u32 v{lT7}, v{lT7}, v{vTmp3}")
A(f"v_lshlrev_b32 v{vTmp2}, 8, v{vG4}\nv_xor_b32 v{vTmp3}, v{vN16}, v{vG4}\nv_lshl_add_u32 v{lK}, v{vTmp3}, 4, v{vTmp2}")
for q in (1, 2, 3): A(f"v_xor_b32 v{lK+q}, {64*q}, v{lK}")
A(f"v_xor_b32 v{vTmp3}, v{vN16}, v{vS}\nv_lshl_add_u32 v{lV}, v{vTmp3}, 4, v{vTmp2}\nv_xor_b32 v{lV+1}, 128, v{lV}")
A(f"s_mov_b32 s{sK+2}, {1<<25:#x}\ns_mov_b32 s{sV+2}, s{sK+2}\ns_mov_b32 s{sWO+2}, s{sWQ+2}")
for r in (sK, sV, sW1, sWO, sW2): A(f"s_mov_b32 s{r+3}, 0x20000")
A(f"s_cmp_lt_u32 s{si32}, 28\ns_cselect_b32 s{sW1+2}, {1024*7168}, 0\ns_mov_b32 s{sW2+2}, s{sW1+2}")
sKV = sT4
A(f"s_and_b32 s{sKV}, s{sx8}, 1\ns_lshl_b32 s{sKV}, s{sKV}, 2\ns_lshr_b32 s{sT}, s{sx8}, 1\ns_add_u32 s{sKV}, s{sKV}, s{sT}\ns_lshl_b32 s{sKV}, s{sKV}, 22\ns_add_u32 s{sKV}, s{sKV}, 0x300000")
A(f"s_waitcnt lgkmcnt(0)\ns_load_dword s{sT32}, s[{sMk}:{sMk+1}], 0")
def kv_group(s_, voff, nreg):
    A(f"s_and_b32 s{sM}, s{sM}, 0x1ffff\ns_add_u32 s{sG}, s{sT2}, s{sM}\ns_add_u32 s{sM}, s{sM}, {5*4096}\ns_add_u32 s{sT2}, s{sT2}, 131072")
    for q in range(4):
        A(f"s_waitcnt vmcnt({curW[0]-1})\nbuffer_load_dwordx4 v{voff + q % nreg}, {srd(s_)}, s{sG} offen offset:{1024*q}{NT} lds")
    A(f"s_add_u32 m0, m0, 4096")
    pub()
trans(OPT["Wk"])
A(f"s_mov_b32 s{sT2}, s{sKV}\ns_lshl_b32 s{sM}, s{si32}, 12")
loop(pV, lambda: kv_group(sK, lK, 4))
stamp("l_K")
trans(OPT["Wv"])
A(f"s_mov_b32 s{sT2}, s{sKV}\ns_lshl_b32 s{sM}, s{si32}, 12")
aloop(pW1, lambda: kv_group(sV, lV, 2), OPT["Wvb"], 3)
stamp("l_V")
midx(sCG2, sT3, sT)
A(f"s_lshl_b32 s{sG}, s{sCG2}, 7\ns_mul_i32 s{sT}, s{sT3}, {8*7168}\ns_add_u32 s{sG}, s{sG}, s{sT}\ns_lshl_b32 s{sT3}, s{sT3}, 9")
trans(OPT["W1"])
def w1_group():
    for q in range(4):
        A(f"s_waitcnt vmcnt({curW[0]-1})\nbuffer_load_dwordx4 v{lT7}, {srd(sW1)}, s{sG} offen{NT} lds\ns_add_u32 m0, m0, 1024\ns_add_u32 s{sG}, s{sG}, {32*7168}")
    pub()
loop(pWO, w1_group)
stamp("l_W1")
lF = lK
A(f"v_lshrrev_b32 v{vTmp2}, 5, v{vLane}\nv_and_b32 v{vTmp3}, 31, v{vLane}\nv_lshlrev_b32 v{lF}, 1, v{vTmp2}\nv_xor_b32 v{vTmp3}, v{vTmp3}, v{lF}\nv_lshlrev_b32 v{vTmp3}, 4, v{vTmp3}\nv_lshl_add_u32 v{lF}, v{vTmp2}, 11, v{vTmp3}")
for q in (1, 2, 3): A(f"v_xor_b32 v{lF+q}, {64*q}, v{lF}")
A(f"s_lshl_b32 s{sS}, s{sx8}, 5\ns_add_u32 s{sS}, s{sS}, s{si32}\ns_lshr_b32 s{sR4}, s{si32}, 2")
def fin_group(s_, slot, kshift):
    A(f"s_add_u32 s{sM}, s{sGi}, s{sR4}\ns_and_b32 s{sM}, s{sM}, 3\ns_xor_b32 s{sT2}, s{sGi}, s{sR4}\ns_bfe_u32 s{sT2}, s{sT2}, 0x10002")
    A(f"s_lshl_b32 s{sG}, s{sT2}, {kshift}\ns_add_u32 s{sG}, s{sG}, s{sT}\ns_lshl_b32 s{sT5}, s{sM}, 14\ns_add_u32 s{sG}, s{sG}, s{sT5}")
    A(f"s_lshl_b32 s{sT2}, s{sT2}, 2\ns_add_u32 s{sM}, s{sM}, s{sT2}\ns_lshl_b32 s{sM}, s{sM}, 12\ns_add_u32 m0, s{sM}, {slot}\ns_add_u32 s{sGi}, s{sGi}, 1")
    for q in range(4):
        A(f"s_waitcnt vmcnt({curW[0]-1})\nbuffer_load_dwordx4 v{lF+q}, {srd(s_)}, s{sG} offen{NT} lds")
        if q < 3: A(f"s_add_u32 m0, m0, 1024\ns_add_u32 s{sG}, s{sG}, 4096")
    pub()
trans(OPT["Wo"])
waitPW(1)
A(f"s_lshr_b32 s{sT}, s{sS}, 4\ns_lshl_b32 s{sT}, s{sT}, 19\ns_and_b32 s{sT2}, s{sR4}, 3\ns_lshl_b32 s{sT2}, s{sT2}, 16\ns_add_u32 s{sT}, s{sT}, s{sT2}\ns_add_u32 s{sT}, s{sT}, s{sT3}\ns_mov_b32 s{sGi}, 0")
loop(pW2, lambda: fin_group(sWO, S0, 18))
stamp("l_WO")
trans(OPT["W2"])
waitPW(2)
A(f"s_lshl_b32 s{sT}, s{sCG2}, 17\ns_add_u32 s{sT}, s{sT}, s{sT3}\ns_mov_b32 s{sGi}, 0")
aloop(pEND, lambda: fin_group(sW2, S1, 16), OPT["W2x"], 6)
stamp("l_W2")
fWS, fB2, fOUT = sWQ, sK, sV
vOo, vG3 = vP+12, vP+13
A(f"s_load_dwordx2 s[{fB2}:{fB2+1}], s[0:1], 72\ns_load_dwordx2 s[{fOUT}:{fOUT+1}], s[0:1], 80")
A(f"s_mov_b32 s{fWS}, s{sMk}\ns_mov_b32 s{fWS+1}, s{sMk+1}\ns_mov_b32 s{fWS+2}, {WSSZ:#x}\ns_movk_i32 s{fB2+2}, 2048\ns_movk_i32 s{fOUT+2}, 4096")
A(f"v_and_b32 v{vTmp2}, 1, v{vLane}\nv_lshlrev_b32 v{vOo}, 3, v{vTmp2}\nv_lshrrev_b32 v{vTmp3}, 1, v{vLane}\nv_lshlrev_b32 v{vG3}, 4, v{vTmp2}\nv_lshl_add_u32 v{vG3}, v{vTmp3}, 11, v{vG3}")
sOo = sM
A(f"s_lshr_b32 s{sT}, s{sS}, 6\ns_lshl_b32 s{sT3}, s{sT}, 9\ns_and_b32 s{sT2}, s{sS}, 31\ns_lshl_b32 s{sT2}, s{sT2}, 4\ns_add_u32 s{sT3}, s{sT3}, s{sT2}")
A(f"s_bfe_u32 s{sT2}, s{sS}, 0x10005\ns_lshl_b32 s{sT2}, s{sT2}, 11\ns_add_u32 s{sOo}, s{sT3}, s{sT2}")
A(f"s_lshl_b32 s{sT}, s{sT}, 17\ns_and_b32 s{sT2}, s{sS}, 63\ns_lshl_b32 s{sT2}, s{sT2}, 5\ns_add_u32 s{sT}, s{sT}, s{sT2}\ns_add_u32 s{sT}, s{sT}, {P3:#x}\ns_add_u32 s{sT2}, s{sT}, 65536")
A(f"s_add_u32 s{sT32}, s{sT32}, 1\ns_and_b32 s{sT6}, s{sT32}, 63\ns_mov_b32 s{sHI}, 0xffff0000\ns_mov_b32 s{sSpin}, {OPT['spin']}")
trans(0)
stamp("l_end")
if OPT.get("abl") == 1: A("s_branch L_lend")
A("s_waitcnt lgkmcnt(0)")
A(f"buffer_load_dwordx2 {vr(vSm,2)}, v{vOo}, {srd(sX)}, s{sOo} offen\nbuffer_load_dwordx2 {vr(vSm+2,2)}, v{vOo}, {srd(fB2)}, s{sT3} offen")
A("L_g3:")
for k, so in enumerate((sT, sT2)): A(f"buffer_load_dwordx4 {vr(vG+4*k,4)}, v{vG3}, {srd(fWS)}, s{so} offen sc1")
A(f"s_add_u32 s{sRetry}, s{sRetry}, 0x1000000\ns_sub_u32 s{sSpin}, s{sSpin}, 1\ns_cbranch_scc1 L_end\ns_waitcnt vmcnt(0)")
for r in range(8): A(f"v_xor_b32 v{vG+r}, s{sT6}, v{vG+r}")
orred(vS, range(vG, vG+8))
A(f"v_and_b32 v{vS}, 63, v{vS}\nv_cmp_ne_u32 vcc, 0, v{vS}\ns_and_b64 exec, exec, vcc\ns_cbranch_scc1 L_g3\ns_mov_b64 exec, -1")
stamp("l_g3ok")
vH = vQ
pk("add", vG, vG, vG+4); pk("add", vG+2, vG+2, vG+6)
unpack(vH, vH+1, vSm); unpack(vH+2, vH+3, vSm+1)
A(f"v_permlane32_swap_b32 v{vG}, v{vG+2}\nv_permlane32_swap_b32 v{vG+1}, v{vG+3}")
unpack(vH+4, vH+5, vSm+2)
pk("add", vG, vG, vG+2)
unpack(vH+6, vH+7, vSm+3)
A(f"v_permlane16_swap_b32 v{vG}, v{vG+1}")
pk("add", vH, vH, vH+4)
A(f"v_add_f32 v{vG}, v{vG}, v{vG+1}")
pk("add", vH+2, vH+2, vH+6)
A(f"s_mov_b32 vcc_lo, 0xffff0000\ns_mov_b32 vcc_hi, 0xffff0000")
allred(vG, "v_add_f32", ["r2"], None)
A(f"v_cndmask_b32 v{vH}, v{vH}, v{vH+1}, vcc\nv_cndmask_b32 v{vH+2}, v{vH+2}, v{vH+3}, vcc")
allred(vG, "v_add_f32", ["r4"], None)
A(f"s_mov_b32 vcc_lo, 0\ns_mov_b32 vcc_hi, -1\nv_cndmask_b32 v{vH}, v{vH}, v{vH+2}, vcc")
allred(vG, "v_add_f32", ["r8"], None)
A(f"v_lshrrev_b32 v{vTmp2}, 4, v{vLane}\nv_lshl_add_u32 v{vOo}, v{vTmp2}, 1, v{vOo}")
A(f"v_add_f32 v{vH}, v{vH}, v{vG}\nv_cvt_pk_bf16_f32 v{vH}, v{vH}, v{vH}")
A("s_mov_b32 exec_lo, 0x00030003\ns_mov_b32 exec_hi, 0x00030003")
A(f"buffer_store_short v{vH}, v{vOo}, {srd(fOUT)}, s{sOo} offen")
A(f"s_cmp_lg_u32 s2, 0\ns_cbranch_scc1 L_lend")
A(f"v_mov_b32 v{vS}, s{sT32}\nv_mov_b32 v{vS+1}, 0\ns_mov_b64 exec, 1\nbuffer_store_dword v{vS}, v{vS+1}, {srd(fWS)}, 0 offen sc1")
A("L_lend:")
stamp("l_fin")
if DUMP: dump_stamps(lambda n: n.startswith("l_"), 8*30)
if "probe" in OPT and STN[0].startswith("l_"): probe_pad()
A("L_end:\ns_endpgm")
nst[0] = 1 if OPT["stamps"] else 0
sec("common")
A("L_notloader:")
j = vJ
A(f"v_mov_b32 v{aFL}, {FLG}\nv_mov_b32 v{vFl}, 0\nv_lshl_add_u32 v{aPW}, v{vLane}, 2, v{aFL}\nds_write_b32 v{aPW}, v{vFl}")
A(f"s_lshr_b32 s{sWave}, s{sWave}, 6\ns_sub_u32 s{sWave}, s{sWave}, 1\nv_lshrrev_b32 v{vJ}, 6, v0\nv_lshrrev_b32 v{vG4}, 4, v{vLane}")
A(f"s_waitcnt lgkmcnt(0)\ns_load_dword s{sT32}, s[{sMk}:{sMk+1}], 0\ns_mov_b32 s{sWS}, s{sMk}\ns_mov_b32 s{sWS+1}, s{sMk+1}\ns_barrier")
A(f"v_lshl_add_u32 v{aPW}, v{j}, 2, v{aFL}\nv_and_b32 v{vN16}, 15, v{vLane}")
A(f"s_mov_b32 s{sWS+2}, {WSSZ:#x}\ns_mov_b32 s{sWS+3}, 0x20000\ns_mov_b32 s{sHI}, 0xffff0000\ns_mov_b32 s{sC63}, 63")
if OPT["dry"]:
    A(f"s_cmp_lt_u32 s{sWave}, 4\ns_cbranch_scc1 L_nodry1")
    dry_on()
    A(f"s_cmp_eq_u32 s{sWave}, 4\ns_cbranch_scc1 L_dry4\ns_call_b64 s[{sRA}:{sRA+1}], L_proj\ns_branch L_dry5\nL_dry4:\ns_call_b64 s[{sRA}:{sRA+1}], L_ln\nL_dry5:")
    dry_off()
    A("L_nodry1:")
if OPT.get("abl") == 1:
    A(f"v_mov_b32 v{vFl}, 100\nds_write_b32 v{aPW}, v{vFl}\ns_cmp_eq_u32 s{sWave}, 0\ns_cbranch_scc1 L_ablend\ns_endpgm")
A(f"s_mov_b32 s{sRetry}, 0\ns_mov_b32 s{sSpin}, {OPT['spin']}")
r_, c4 = vTmp2, vTmp3
A(f"v_lshrrev_b32 v{r_}, 2, v{vN16}\nv_and_b32 v{c4}, 3, v{vN16}\nv_lshlrev_b32 v{c4}, 3, v{c4}\nv_lshl_add_u32 v{r_}, v{vG4}, 2, v{r_}")
A(f"s_cmp_lt_u32 s{sWave}, 2\ns_cbranch_scc1 L_attn")
sCGp, sKSp = sCnt, sG
qidx(sCGp, sKSp, sT)
A(f"s_cmp_lt_u32 s{sWave}, 4\ns_cbranch_scc1 L_isq")
midx(sCGp, sKSp, sT)
A("L_isq:")
A(f"v_lshrrev_b32 v{t1}, 5, v{vLane}\nv_and_b32 v{t2}, 31, v{vLane}\nv_lshlrev_b32 v{t0}, 6, v{t2}\nv_lshl_add_u32 v{t0}, v{t1}, 11, v{t0}\nv_add_u32 v{t0}, {XR}, v{t0}\ns_lshl_b32 s{sT}, s{sKSp}, 4")
for t in range(4):
    A(f"v_add_u32 v{vXB+t}, s{sT}, v{t0}")
    if t < 3: A(f"s_add_u32 s{sT}, s{sT}, 16\ns_and_b32 s{sT}, s{sT}, 63")
A(f"s_cmp_lt_u32 s{sWave}, 4\ns_cselect_b32 s{sT2}, {S0}, {S3}\ns_cselect_b32 s{sPB}, {pWQ}, {pW1}\ns_cselect_b32 s{sT3}, 0, {YN-XN}\ns_cselect_b32 s{sT4}, 1, 0\ns_cselect_b32 s{sT5}, 14, 8\ns_add_u32 s{sT3}, s{sT3}, {XN}")
A(f"v_lshlrev_b32 v{aXW}, 4, v{t2}\nv_lshl_add_u32 v{aXW}, v{t1}, 9, v{aXW}\nv_add_u32 v{aXW}, s{sT3}, v{aXW}")
stamp("c_set")
waitLC(pX + 4)
for t in range(4): A(f"ds_read_b128 {vr(vP+4*t,4)}, v{vXB+t}")
stamp("x")
A(f"s_and_b32 s{sT}, s{sWave}, 1\ns_lshl_b32 s{sT}, s{sT}, 1\nv_bfe_u32 v{t1}, v{r_}, 1, 2\nv_xor_b32 v{t1}, s{sT}, v{t1}\nv_lshl_add_u32 v{aPj}, v{r_}, 7, v{c4}\nv_lshl_add_u32 v{aPj}, v{t1}, 5, v{aPj}")
A(f"v_add_u32 v{aPj}, s{sT2}, v{aPj}\nv_xor_b32 v{aPj+1}, 32, v{aPj}\nv_mov_b32 v{vSig}, s{sT4}")
A(f"v_and_b32 v{t0}, 1, v{vN16}\nv_lshlrev_b32 v{t1}, 3, v{vG4}\nv_lshl_add_u32 v{aXB}, v{t0}, 9, v{t1}\nv_add_u32 v{aXB}, s{sT3}, v{aXB}")
A(f"v_lshlrev_b32 v{vPub}, s{sT5}, v{t0}\nv_lshl_add_u32 v{vPub}, v{t1}, 1, v{vPub}\nv_bfe_u32 v{t0}, v{vN16}, 1, 1\nv_lshl_add_u32 v{vPub}, v{t0}, 6, v{vPub}\ns_lshl_b32 s{sT}, s{sT}, 6\nv_add_u32 v{vPub}, s{sT}, v{vPub}")
A(f"s_mov_b32 s{sMk}, 0x0c0c0c0c\ns_mov_b32 s{sMk+1}, s{sMk}")
A(f"s_waitcnt lgkmcnt(0)\ns_add_u32 s{sT32}, s{sT32}, 1\ns_and_b32 s{sT6}, s{sT32}, 63")
A(f"s_call_b64 s[{sRA}:{sRA+1}], L_ln")
A(f"s_cmp_lt_u32 s{sWave}, 4\ns_cbranch_scc0 L_mlp")
A(f"s_lshr_b32 s{sT3}, s{sCGp}, 4\ns_lshl_b32 s{sT3}, s{sT3}, 15\ns_and_b32 s{sT}, s{sCGp}, 15\ns_lshl_b32 s{sT}, s{sT}, 8\ns_add_u32 s{sT3}, s{sT3}, s{sT}")
A(f"s_lshl_b32 s{sT}, s{sKSp}, 12\ns_add_u32 s{sT3}, s{sT3}, s{sT}\ns_add_u32 s{sT3}, s{sT3}, {P1:#x}")
stamp("ln1")
A(f"s_call_b64 s[{sRA}:{sRA+1}], L_proj")
stamp("S1")
A("s_branch L_attn2")
sec("mlp")
A("L_mlp:")
mlp_first = nst[0]
def norm(q):
    a0, mean = vS, vS+6
    for i in range(4*q, 4*q+4): pk("add", vU+2*i, vU+2*i, mean, None, NEG)
    for i in range(4*q, 4*q+4): A(f"v_cvt_pk_bf16_f32 v{vP+i}, v{vU+2*i}, v{vU+2*i+1}")
    for i in range(4*q, 4*q+4): unpack(vU+2*i, vU+2*i+1, vP+i)
    for i in range(4*q, 4*q+4): pk("mul", vU+2*i, vU+2*i, a0, None, BC)
    for i in range(4*q, 4*q+4): A(f"v_cvt_pk_bf16_f32 v{vP+i}, v{vU+2*i}, v{vU+2*i+1}")
A(f"s_load_dwordx2 s[{sB1}:{sB1+1}], s[0:1], 56")
A(f"s_cmp_lt_u32 s{si32}, 28\ns_cselect_b32 s{sB1+2}, 7168, 0\ns_mov_b32 s{sB1+3}, 0x20000")
for q in (1, 2, 3): norm(q)
A(f"s_call_b64 s[{sRA}:{sRA+1}], L_ln")
A(f"s_lshl_b32 s{sT4}, s{sCGp}, 11\ns_add_u32 s{sT4}, s{sT4}, {P4:#x}\ns_lshl_b32 s{sT}, s{sKSp}, 9\ns_add_u32 s{sT3}, s{sT4}, s{sT}")
vG4o, vB1o, aHW = vG2, vG2l, aOLW
A(f"s_and_b32 s{sT}, s{sWave}, 1\ns_lshl_b32 s{sT2}, s{sT}, 8\nv_lshlrev_b32 v{vB1o}, 3, v{vN16}\nv_lshlrev_b32 v{vG4o}, 9, v{vG4}\nv_lshl_add_u32 v{vG4o}, v{vN16}, 4, v{vG4o}\nv_add_u32 v{vG4o}, s{sT2}, v{vG4o}")
A(f"s_lshl_b32 s{sT}, s{sT}, 7\ns_add_u32 s{sT}, s{sT}, {HL}\nv_and_b32 v{t0}, 3, v{vN16}\nv_lshlrev_b32 v{t0}, 4, v{t0}\nv_bfe_u32 v{t1}, v{vN16}, 2, 1\nv_lshl_add_u32 v{t0}, v{t1}, 3, v{t0}\nv_lshrrev_b32 v{t1}, 3, v{vN16}\nv_lshl_add_u32 v{t0}, v{t1}, 6, v{t0}\nv_add_u32 v{aHW}, s{sT}, v{t0}")
A(f"s_lshl_b32 s{sT}, s{sCGp}, 7\ns_waitcnt lgkmcnt(0)\nbuffer_load_dwordx2 {vr(vSm,2)}, v{vB1o}, {srd(sB1)}, s{sT} offen")
stamp("m_ln2")
if OPT["dry"]:
    dry_on(); A("s_branch L_mtail\nL_mreal:"); dry_off()
A(f"s_call_b64 s[{sRA}:{sRA+1}], L_proj")
stamp("m_S4")
A("L_mtail:")
waitLC(OPT["g4"])
A("s_waitcnt vmcnt(0)")
stamp("m_g4i")
def g4(): vm(f"buffer_load_dwordx4 {vr(vG,4)}, v{vG4o}, {srd(sWS)}, s{sT4} offen sc1")
g4()
unpack(vU+8, vU+9, vSm); unpack(vU+10, vU+11, vSm+1)
A("s_waitcnt vmcnt(0)")
chk6(vG, 4, "g4", g4, 0x10000)
stamp("m_g4ok")
vH = vG
allred([vH, vH+1, vH+2, vH+3], "v_add_f32", ["p16", "p32"], [vH+4, vH+5, vH+6, vH+7])
A(f"v_cvt_pk_bf16_f32 v{vH+4}, v{vH}, v{vH+1}\nv_cvt_pk_bf16_f32 v{vH+5}, v{vH+2}, v{vH+3}")
unpack(vH, vH+1, vH+4); unpack(vH+2, vH+3, vH+5)
pk("add", vH, vH, vU+8); pk("add", vH+2, vH+2, vU+10)
A(f"v_cvt_pk_bf16_f32 v{vH+4}, v{vH}, v{vH+1}\nv_cvt_pk_bf16_f32 v{vH+5}, v{vH+2}, v{vH+3}")
unpack(vH, vH+1, vH+4); unpack(vH+2, vH+3, vH+5)
pk("mul", vH+4, vH, vH); pk("mul", vH+6, vH+2, vH+2)
for r in range(4): A(f"v_mul_f32 v{vH+4+r}, 0xbdd2d3e8, v{vH+4+r}")
for r in range(4): A(f"v_add_f32 v{vH+4+r}, 0xc0135761, v{vH+4+r}")
pk("mul", vH+4, vH+4, vH); pk("mul", vH+6, vH+6, vH+2)
for r in range(4): A(f"v_exp_f32 v{vH+4+r}, v{vH+4+r}")
for r in range(4): A(f"v_add_f32 v{vH+4+r}, 1.0, v{vH+4+r}")
for r in range(4): A(f"v_rcp_f32 v{vH+4+r}, v{vH+4+r}")
pk("mul", vH, vH, vH+4); pk("mul", vH+2, vH+2, vH+6)
A(f"v_cvt_pk_bf16_f32 v{vH}, v{vH}, v{vH+1}\nv_cvt_pk_bf16_f32 v{vH+1}, v{vH+2}, v{vH+3}")
A(f"ds_write_b64 v{aHW}, {vr(vH,2)}")
signal(1)
if OPT["dry"]: A("s_cbranch_execz L_mreal")
stamp("m_h")
if DUMP:
    A(f"s_cmp_lg_u32 s{sWave}, 4\ns_cbranch_scc1 L_end"); dump_stamps(lambda n: n.startswith("m_"), 8*31+4)
if "probe" in OPT and STN[0].startswith("m_"): probe_pad()
A("s_endpgm")
nst[0] = mlp_first
sec("attn")
A("L_attn:")
signal(1)
A(f"s_waitcnt lgkmcnt(0)\ns_add_u32 s{sT32}, s{sT32}, 1\ns_and_b32 s{sT6}, s{sT32}, 63")
A("L_attn2:")
A(f"s_lshl_b32 s{sS}, s{sx8}, 5\ns_add_u32 s{sS}, s{sS}, s{si32}\ns_lshl_b32 s{sW8}, s{sWave}, 3\ns_add_u32 s{sW8}, s{sW8}, 8")
A(f"s_bfe_u32 s{sR4}, s{si32}, 0x10004\ns_lshl_b32 s{sT}, s{sR4}, 14")
A(f"v_and_b32 v{t0}, 7, v{r_}\nv_lshlrev_b32 v{t2}, 2, v{j}\nv_xor_b32 v{t1}, v{t0}, v{t2}\nv_lshl_add_u32 v{aW}, v{r_}, 9, v{c4}\nv_lshl_add_u32 v{aW}, v{t1}, 5, v{aW}\nv_add_u32 v{aW}, s{sT}, v{aW}")
for ct in (1, 2, 3): A(f"v_xor_b32 v{aW+ct}, {32*ct}, v{aW}")
A(f"v_lshlrev_b32 v{t2}, 1, v{j}\nv_xor_b32 v{t1}, v{t0}, v{t2}\nv_lshl_add_u32 v{aV}, v{r_}, 8, v{c4}\nv_lshl_add_u32 v{aV}, v{t1}, 5, v{aV}\nv_add_u32 v{aV}, {S2}, v{aV}\nv_xor_b32 v{aV+1}, 32, v{aV}")
A(f"v_xor_b32 v{t1}, v{vG4}, v{vN16}\nv_lshlrev_b32 v{t1}, 4, v{t1}\nv_lshl_add_u32 v{t1}, v{vN16}, 8, v{t1}\nv_lshl_add_u32 v{t1}, v{j}, 13, v{t1}\nv_add_u32 v{aK}, {S1}, v{t1}")
for s_ in (1, 2, 3): A(f"v_xor_b32 v{aK+s_}, {64*s_}, v{aK}")
A(f"v_and_b32 v{t1}, 7, v{vN16}\nv_mul_u32_u24 v{aQ}, 272, v{t1}\nv_lshl_add_u32 v{aQ}, v{vG4}, 4, v{aQ}\nv_add_u32 v{aQ}, {QL}, v{aQ}")
A(f"v_lshlrev_b32 v{vS2l}, 3, v{t1}\nv_add_u32 v{aMLR}, {ML}, v{vS2l}\nv_lshl_add_u32 v{aMLW}, v{j}, 6, v{aMLR}")
A(f"v_lshlrev_b32 v{vS2o}, 6, v{t1}\nv_lshl_add_u32 v{vS2o}, v{j}, 9, v{vS2o}\nv_lshl_add_u32 v{vS2o}, v{vG4}, 4, v{vS2o}")
A(f"v_lshlrev_b32 v{vG1}, 4, v0\nv_add_u32 v{aPXW}, {PX}, v{vG1}\nv_lshlrev_b32 v{aPXR}, 4, v{vLane}\nv_add_u32 v{aPXR}, {PX}, v{aPXR}")
A(f"v_lshrrev_b32 v{t1}, 5, v0\nv_and_b32 v{t2}, 31, v0\nv_mul_u32_u24 v{aQW}, 272, v{t1}\nv_lshl_add_u32 v{aQW}, v{t2}, 3, v{aQW}\nv_add_u32 v{aQW}, {QL}, v{aQW}")
A(f"v_lshrrev_b32 v{t0}, 3, v{vLane}\nv_and_b32 v{t1}, 7, v{vLane}\nv_lshlrev_b32 v{t2}, 4, v{t1}\nv_lshl_add_u32 v{vG2}, v{t0}, 11, v{t2}")
A(f"v_lshrrev_b32 v{t1}, 2, v{t1}\nv_lshlrev_b32 v{t1}, 3, v{t1}\nv_lshl_add_u32 v{vG2l}, v{t0}, 7, v{t1}")
A(f"v_lshl_add_u32 v{aOLW}, v{t0}, 1, v{t2}\nv_lshl_add_u32 v{aOLW}, v{j}, 7, v{aOLW}\nv_add_u32 v{aOLW}, {OL}, v{aOLW}")
A(f"v_and_b32 v{t1}, 1, v{vLane}\nv_lshlrev_b32 v{aOLR}, 4, v{vG4}\nv_lshl_add_u32 v{aOLR}, v{t1}, 7, v{aOLR}\ns_lshl_b32 s{sT}, s{sR4}, 6\ns_add_u32 s{sT}, s{sT}, {OL}\nv_add_u32 v{aOLR}, s{sT}, v{aOLR}")
A(f"v_lshlrev_b32 v{vP3}, 10, v{t1}\nv_lshl_add_u32 v{vP3}, v{j}, 8, v{vP3}\nv_lshl_add_u32 v{vP3}, v{vG4}, 4, v{vP3}\nv_bfe_u32 v{t2}, v{vLane}, 1, 2\nv_lshl_add_u32 v{vP3}, v{t2}, 6, v{vP3}")
for i, mk in enumerate((0x0c0c0c0c, 0x30303030, 0xc0c0c0c0)):
    A(f"s_mov_b32 s{sMk+2*i}, {mk:#x}\ns_mov_b32 s{sMk+2*i+1}, s{sMk+2*i}")
for k in range(4): A(f"s_bfe_u32 s{sE+k}, s{sT32}, {k | (1 << 16):#x}")
if OPT["dry"]:
    A(f"s_cmp_ge_u32 s{sWave}, 2\ns_cbranch_scc1 L_partA")
    dry_on()
    A(f"s_cmp_eq_u32 s{sWave}, 1\ns_cbranch_scc1 L_partB\ns_branch L_partA\nL_areal:")
    dry_off()
A("L_partA:")
A(f"s_lshl_b32 s{sT}, s{sx8}, 14\ns_add_u32 s{sT}, s{sT}, {P1:#x}\ns_add_u32 s{sT2}, s{sT}, 4096\ns_add_u32 s{sT3}, s{sT}, 8192\ns_add_u32 s{sT4}, s{sT}, 12288")
def g1(): vm("\n".join(f"buffer_load_dwordx4 {vr(vG+4*k,4)}, v{vG1}, {srd(sWS)}, s{so} offen sc1" for k, so in enumerate((sT, sT2, sT3, sT4))))
def kfrags():
    waitLC(pK, sW8)
    for T in range(2):
        for s_ in range(4): A(f"ds_read_b128 {vr(vKF+16*T+4*s_,4)}, v{aK+s_} offset:{4096*T}")
if OPT["g1"] >= pV: kfrags()
waitLC(OPT["g1"])
stamp("g1i")
g1()
if OPT["g1"] < pV:
    kfrags()
signal(3)
A(f"v_mov_b32 v{vS+4}, 0x3db504f3\nv_mov_b32 v{vS+6}, 0x3fb8aa3b")
A("s_waitcnt vmcnt(0)")
stamp("g1a")
chk6(vG, 16, "g1", g1, 1)
stamp("g1ok")
pk("add", vG, vG, vG+4); pk("add", vG+8, vG+8, vG+12); pk("add", vG+2, vG+2, vG+6); pk("add", vG+10, vG+10, vG+14)
pk("add", vG, vG, vG+8); pk("add", vG+2, vG+2, vG+10)
A(f"v_cvt_pk_bf16_f32 v{vG}, v{vG}, v{vG+1}\nv_cvt_pk_bf16_f32 v{vG+1}, v{vG+2}, v{vG+3}\nds_write_b64 v{aQW}, {vr(vG,2)}")
LB(4)
stamp("lb3")
for s_ in range(4): A(f"ds_read_b128 {vr(vQ+4*s_,4)}, v{aQ} offset:{64*s_}")
for s_ in range(4):
    A(f"s_waitcnt lgkmcnt({3-s_})")
    for T in range(2):
        c = "0" if s_ == 0 else vr(vU+4*T, 4)
        A(f"v_mfma_f32_16x16x32_bf16 {vr(vU+4*T,4)}, {vr(vKF+16*T+4*s_,4)}, {vr(vQ+4*s_,4)}, {c}")
vM, vL = vS, vS+1
for p in range(4): A(f"v_cvt_pk_bf16_f32 v{vU+8+p}, v{vU+2*p}, v{vU+2*p+1}")
for p in range(4): unpack(vU+2*p, vU+2*p+1, vU+8+p)
for p in range(4): pk("mul", vU+2*p, vU+2*p, vS+4, None, BC)
for p in range(4): A(f"v_cvt_pk_bf16_f32 v{vU+8+p}, v{vU+2*p}, v{vU+2*p+1}")
for p in range(4): unpack(vU+2*p, vU+2*p+1, vU+8+p)
A(f"v_max3_f32 v{vM}, v{vU}, v{vU+1}, v{vU+2}\nv_max3_f32 v{vS+2}, v{vU+3}, v{vU+4}, v{vU+5}\nv_max3_f32 v{vM}, v{vM}, v{vU+6}, v{vU+7}\nv_max_f32 v{vM}, v{vM}, v{vS+2}")
allred(vM, "v_max_f32", ["p16", "p32"], vS+2)
A(f"v_mul_f32 v{vM}, v{vM}, v{vS+6}")
for p in range(4): pk("fma", vU+2*p, vU+2*p, vS+6, vM, "op_sel_hi:[1,0,0] neg_lo:[0,0,1] neg_hi:[0,0,1]")
for r in range(8): A(f"v_exp_f32 v{vU+r}, v{vU+r}")
for p in range(4): A(f"v_cvt_pk_bf16_f32 v{vU+8+p}, v{vU+2*p}, v{vU+2*p+1}")
A(f"ds_write_b128 v{aPXW}, {vr(vU+8,4)}")
pk("add", vU, vU, vU+2); pk("add", vU+4, vU+4, vU+6); pk("add", vU, vU, vU+4)
A(f"v_add_f32 v{vL}, v{vU}, v{vU+1}")
allred(vL, "v_add_f32", ["p16", "p32"], vS+2)
A(f"ds_write_b64 v{aMLW}, {vr(vM,2)}")
signal(5)
stamp("sm")
waitLC(pW1)
for w in range(4):
    for d in range(2):
        f = vF + 8*w + 4*d
        A(f"ds_read_b64_tr_b16 {vr(f,2)}, v{aV+d} offset:{8192*w}\nds_read_b64_tr_b16 {vr(f+2,2)}, v{aV+d} offset:{8192*w + 4096}")
A(f"s_lshl_b32 s{sT}, s{sS}, 11\ns_add_u32 s{sT}, s{sT}, {P2:#x}\ns_lshl_b32 s{sT2}, s{sS}, 7\ns_add_u32 s{sT2}, s{sT2}, {P2L:#x}\ns_mov_b32 s{sT3}, 0xfffe0000\ns_mov_b32 s{sT4}, 0x10000")
waitPW(5)
stamp("lb4")
for w in range(4): A(f"ds_read_b128 {vr(vQ+4*w,4)}, v{aPXR} offset:{1024*w}")
for w in range(4): A(f"ds_read_b64 {vr(vU+16+2*w,2)}, v{aMLR} offset:{64*w}")
for w in range(4):
    A(f"s_waitcnt lgkmcnt({7-w})")
    for d in range(2): A(f"v_mfma_f32_16x16x32_bf16 {vr(vAcc+8*w+4*d,4)}, {vr(vF+8*w+4*d,4)}, {vr(vQ+4*w,4)}, 0")
A("s_waitcnt lgkmcnt(0)")
m = lambda w: vU + 16 + 2*w
A(f"v_max3_f32 v{vM}, v{m(0)}, v{m(1)}, v{m(2)}\nv_max_f32 v{vM}, v{vM}, v{m(3)}")
for w in range(4): A(f"v_sub_f32 v{m(w)}, v{m(w)}, v{vM}")
for w in range(4): A(f"v_exp_f32 v{m(w)}, v{m(w)}")
A(f"v_mul_f32 v{vL}, v{m(0)}, v{m(0)+1}")
for w in range(1, 4): A(f"v_fmac_f32 v{vL}, v{m(w)}, v{m(w)+1}")
A(f"v_rcp_f32 v{vS+2}, v{vL}\nv_log_f32 v{vS+3}, v{vL}")
for w in range(4): A(f"v_mul_f32 v{m(w)}, v{m(w)}, v{vS+2}")
for h in (0, 2, 4, 6): pk("mul", vAcc+h, vAcc+h, m(0), None, BC)
for w in range(1, 4):
    for h in (0, 2, 4, 6): pk("fma", vAcc+h, vAcc+8*w+h, m(w), vAcc+h, BC3)
for k in range(4): A(f"v_add_u32 v{vAcc+2*k}, s{sT4}, v{vAcc+2*k}")
for k in range(4): A(f"v_and_b32 v{vAcc+2*k}, s{sT3}, v{vAcc+2*k}")
for k in range(4): A(f"v_cvt_pk_bf16_f32 v{vU+k}, v{vAcc+2*k}, v{vAcc+2*k+1}")
for k in range(4): A(f"v_or_b32 v{vU+k}, s{sE+k}, v{vU+k}")
A(f"v_add_f32 v{vU+4}, v{vM}, v{vS+3}\nv_mov_b32 v{vU+5}, s{sT32}")
setexec(0x00ff00ff00ff00ff)
vm(f"buffer_store_dwordx4 {vr(vU,4)}, v{vS2o}, {srd(sWS)}, s{sT} offen sc1")
A(f"s_cmp_lg_u32 s{sWave}, 0\ns_cbranch_scc1 L_nolse")
setexec(0xff)
vm(f"buffer_store_dwordx2 {vr(vU+4,2)}, v{vS2l}, {srd(sWS)}, s{sT2} offen sc1")
A("L_nolse:")
fullexec()
if OPT["dry"]: A("s_cbranch_execz L_areal")
stamp("S2")
A("L_partB:")
def frag_reads(fb, base, k):
    for ct in range(4):
        f = fb + 16*k + 4*ct
        A(f"ds_read_b64_tr_b16 {vr(f,2)}, v{aW+ct} offset:{base}\nds_read_b64_tr_b16 {vr(f+2,2)}, v{aW+ct} offset:{base + 8192}")
def flipW():
    for ct in range(4): A(f"v_xor_b32 v{aW+ct}, 0x4000, v{aW+ct}")
def mfmas(fb, xb, first, wait=None):
    for ct in range(4):
        if wait is not None: A(f"s_waitcnt lgkmcnt({wait + 6 - 2*ct})")
        c = "0" if first else vr(vAcc+4*ct, 4)
        A(f"v_mfma_f32_16x16x32_bf16 {vr(vAcc+4*ct,4)}, {vr(fb+4*ct,4)}, {vr(xb,4)}, {c}")
vZ = vSm
def g2():
    vm("\n".join(f"buffer_load_dwordx4 {vr(vG+4*k,4)}, v{vG2}, {srd(sWS)}, s{so} offen sc1" for k, so in enumerate((sT, sT2, sT3, sT4))) + "\n" +
       "\n".join(f"buffer_load_dwordx2 {vr(vZ+2*k,2)}, v{vG2l}, {srd(sWS)}, s{sT5} offen offset:{1024*k} sc1" for k in range(4)))
A(f"s_cmp_ge_u32 s{sWave}, 2\ns_cbranch_scc1 L_nog2a")
A(f"s_and_b32 s{sT5}, s{sx8}, 6\ns_add_u32 s{sT5}, s{sT5}, s{sWave}\ns_lshl_b32 s{sT}, s{sT5}, 16\ns_lshl_b32 s{sT5}, s{sT5}, 12")
A(f"s_bfe_u32 s{sT2}, s{sS}, 0x20002\ns_lshl_b32 s{sT2}, s{sT2}, 9\ns_add_u32 s{sT}, s{sT}, s{sT2}\ns_bfe_u32 s{sT2}, s{sS}, 0x20004\ns_lshl_b32 s{sT3}, s{sT2}, 7\ns_add_u32 s{sT}, s{sT}, s{sT3}\ns_add_u32 s{sT}, s{sT}, {P2:#x}")
A(f"s_lshl_b32 s{sT2}, s{sT2}, 4\ns_add_u32 s{sT5}, s{sT5}, s{sT2}\ns_add_u32 s{sT5}, s{sT5}, {P2L:#x}")
A(f"s_add_u32 s{sT2}, s{sT}, 16384\ns_add_u32 s{sT3}, s{sT}, 32768\ns_add_u32 s{sT4}, s{sT}, 49152")
waitLC(OPT["g2"])
A("s_waitcnt vmcnt(0)")
stamp("g2i")
g2()
A("L_nog2a:")
signal(6)
waitLC(pW2)
frag_reads(vF, S0, 0); flipW(); frag_reads(vF, S0, 1); flipW()
A(f"s_cmp_ge_u32 s{sWave}, 2\ns_cbranch_scc1 L_nog2b")
A("s_waitcnt vmcnt(0)")
stamp("g2a")
A("L_g2chk:")
for t in range(4):
    for k in range(4): A(f"v_xor_b32 v{vG+4*t+k}, s{sE+k}, v{vG+4*t+k}")
for t in range(4): A(f"v_xor_b32 v{vZ+2*t+1}, s{sT32}, v{vZ+2*t+1}")
orred(vS, range(vG, vG+16))
A(f"v_or3_b32 v{vS+1}, v{vZ+1}, v{vZ+3}, v{vZ+5}\nv_and_b32 v{vS}, 1, v{vS}\nv_or3_b32 v{vS}, v{vS}, v{vS+1}, v{vZ+7}")
retry_tail("g2", g2, 0x100, False)
stamp("g2ok")
ls = lambda t: vZ + 2*t
A(f"v_max3_f32 v{vM}, v{ls(0)}, v{ls(1)}, v{ls(2)}\nv_max_f32 v{vM}, v{vM}, v{ls(3)}")
up = [(vU + 8*t + 2*k, vG + 4*t + k) for t in range(4) for k in range(4)]
def ups(n):
    for _ in range(n):
        d, s_ = up.pop(0); unpack(d, d+1, s_)
ups(1); allred(vM, "v_max_f32", ["r8"], None)
A(f"v_mov_b32 v{vS+2}, v{vM}"); ups(1); A(f"v_permlane16_swap_b32 v{vM}, v{vS+2}\nv_max_f32 v{vM}, v{vM}, v{vS+2}")
A(f"v_mov_b32 v{vS+2}, v{vM}"); ups(1); A(f"v_permlane32_swap_b32 v{vM}, v{vS+2}\nv_max_f32 v{vM}, v{vM}, v{vS+2}")
for t in range(4): A(f"v_sub_f32 v{ls(t)}, v{ls(t)}, v{vM}")
for t in range(4): A(f"v_exp_f32 v{ls(t)}, v{ls(t)}")
ups(13)
A(f"v_add_f32 v{vL}, v{ls(0)}, v{ls(1)}\nv_add_f32 v{vS+2}, v{ls(2)}, v{ls(3)}\nv_add_f32 v{vL}, v{vL}, v{vS+2}")
for h in (0, 2, 4, 6): pk("mul", vU+h, vU+h, ls(0), None, BC)
allred(vL, "v_add_f32", ["r8"], None)
for h in (0, 2, 4, 6): pk("fma", vU+h, vU+8+h, ls(1), vU+h, BC3)
A(f"v_mov_b32 v{vS+2}, v{vL}")
for h in (0, 2, 4, 6): pk("fma", vU+h, vU+16+h, ls(2), vU+h, BC3)
A(f"v_permlane16_swap_b32 v{vL}, v{vS+2}\nv_add_f32 v{vL}, v{vL}, v{vS+2}\nv_mov_b32 v{vS+2}, v{vL}")
for h in (0, 2, 4, 6): pk("fma", vU+h, vU+24+h, ls(3), vU+h, BC3)
A(f"v_permlane32_swap_b32 v{vL}, v{vS+2}\nv_add_f32 v{vL}, v{vL}, v{vS+2}")
for k in range(4): A(f"v_permlane32_swap_b32 v{vU+k}, v{vU+4+k}")
A(f"v_rcp_f32 v{vL}, v{vL}")
pk("add", vU, vU, vU+4); pk("add", vU+2, vU+2, vU+6)
A(f"s_mov_b32 vcc_lo, 0xff00ff00\ns_mov_b32 vcc_hi, vcc_lo")
A(f"v_permlane16_swap_b32 v{vU}, v{vU+2}\nv_permlane16_swap_b32 v{vU+1}, v{vU+3}")
pk("add", vU, vU, vU+2)
A(f"v_cndmask_b32 v{vU+2}, v{vU}, v{vU+1}, vcc\nv_cndmask_b32 v{vU+3}, v{vU+1}, v{vU}, vcc")
A(f"v_add_f32_dpp v{vU+2}, v{vU+3}, v{vU+2} row_ror:8 row_mask:0xf bank_mask:0xf")
A(f"v_mul_f32 v{vU+2}, v{vU+2}, v{vL}\nv_cvt_pk_bf16_f32 v{vU+2}, v{vU+2}, v{vU+2}\nds_write_b16 v{aOLW}, v{vU+2}")
A("L_nog2b:")
signal(7)
stamp("oc")
A(f"s_and_b32 s{sT}, s{sS}, 3\ns_lshl_b32 s{sT}, s{sT}, 17\ns_lshr_b32 s{sT2}, s{sS}, 2\ns_lshl_b32 s{sT2}, s{sT2}, 11\ns_add_u32 s{sT}, s{sT}, s{sT2}\ns_add_u32 s{sT}, s{sT}, {P3:#x}")
A(f"v_mov_b32 v{vS}, s{sT6}\nv_xor_b32 v{vS+1}, 64, v{aOLR}")
waitLC(pW2 + 16)
frag_reads(vXB, S1, 0); flipW()
waitPW(7)
stamp("lb5")
A(f"ds_read_b128 {vr(vQ,4)}, v{aOLR}\nds_read_b128 {vr(vQ+4,4)}, v{vS+1}")
A("s_waitcnt lgkmcnt(1)"); mfmas(vF, vQ, True)
A("s_waitcnt lgkmcnt(0)"); mfmas(vF+16, vQ+4, False)
stamp("wo")
waitMW(1)
A(f"ds_read_b128 {vr(vQ+8,4)}, v{aOLR} offset:256\nds_read_b128 {vr(vQ+12,4)}, v{vS+1} offset:256")
stamp("h")
A("s_waitcnt lgkmcnt(1)"); mfmas(vXB, vQ+8, False)
waitLC(pEND)
frag_reads(vXB, S1, 1)
mfmas(vXB+16, vQ+12, False, 0)
stamp("fin")
for ct in range(1, 4):
    for r in range(4): A(f"v_cndmask_b32 v{vAcc+r}, v{vAcc+r}, v{vAcc+4*ct+r}, s[{sMk+2*ct-2}:{sMk+2*ct-1}]")
for r in range(4): A(f"v_bfi_b32 v{vAcc+r}, s{sC63}, v{vS}, v{vAcc+r}")
setexec(0x00ff00ff00ff00ff)
if OPT["dry"]: A("s_cbranch_execz L_areal")
A(f"buffer_store_dwordx4 {vr(vAcc,4)}, v{vP3}, {srd(sWS)}, s{sT} offen sc1")
A("L_ablend:")
if "probe" in OPT:
    stamp("end")
    if STN[0][:2] not in ("l_", "m_"):
        A(f"s_cmp_lg_u32 s{sWave}, {OPT['swave']}\ns_cbranch_scc1 L_end"); probe_pad()
elif DUMP:
    stamp("end")
    l3 = ("x", "ln1", "S1", "c_set")
    A(f"s_cmp_lg_u32 s{sWave}, 3\ns_cbranch_scc1 L_d0")
    dump_stamps(lambda n: n in l3, None)
    A(f"s_endpgm\nL_d0:\ns_cmp_lg_u32 s{sWave}, {OPT['swave']}\ns_cbranch_scc1 L_end")
    dump_stamps(lambda n: n not in l3 and n[:2] not in ("l_", "m_"), 8*31)
A("s_endpgm")
A(f"L_bail:\ns_mov_b64 exec, -1\nv_mov_b32 v{vFl}, 0x7fffffff\nds_write_b32 v{aPW}, v{vFl}\ns_waitcnt lgkmcnt(0)\ns_endpgm")
sec("proj")
A("L_proj:")
A(f"ds_write_b128 v{aXW}, {vr(vP,4)}")
for k in range(8): A(f"ds_read2_b64 {vr(vXB+4*k,4)}, v{aXB} offset0:{8*k} offset1:{8*k+4}")
A(f"v_mov_b32 v{vS}, s{sT6}")
def pj_batch(ks):
    waitLC(4*(ks[-1]+1), sPB)
    for i, k in enumerate(ks):
        for c in range(2):
            f = vF + 8*i + 4*c
            A(f"ds_read_b64_tr_b16 {vr(f,2)}, v{aPj+c} offset:{4096*k}\nds_read_b64_tr_b16 {vr(f+2,2)}, v{aPj+c} offset:{4096*k + 2048}")
    if ks[-1] == 7: A(f"ds_write_b32 v{aPW}, v{vSig}")
    n = 4*len(ks) + (1 if ks[-1] == 7 else 0)
    for i, k in enumerate(ks):
        for c in range(2):
            n -= 2
            cc = "0" if k == 0 else vr(vAcc+4*c, 4)
            A(f"s_waitcnt lgkmcnt({n})\nv_mfma_f32_16x16x32_bf16 {vr(vAcc+4*c,4)}, {vr(vF+8*i+4*c,4)}, {vr(vXB+4*k,4)}, {cc}")
pj_batch([0, 1, 2, 3]); pj_batch([4, 5, 6]); pj_batch([7])
for r in range(4): A(f"v_cndmask_b32 v{vAcc+r}, v{vAcc+r}, v{vAcc+4+r}, s[{sMk}:{sMk+1}]")
for r in range(4): A(f"v_add_u32 v{vAcc+r}, 32, v{vAcc+r}")
for r in range(4): A(f"v_bfi_b32 v{vAcc+r}, s{sC63}, v{vS}, v{vAcc+r}")
setexec(0x000f000f000f000f)
vm(f"buffer_store_dwordx4 {vr(vAcc,4)}, v{vPub}, {srd(sWS)}, s{sT3} offen sc1")
fullexec()
A(f"s_setpc_b64 s[{sRA}:{sRA+1}]")
sec("ln")
A("L_ln:")
for i in range(16): unpack(vU+2*i, vU+2*i+1, vP+i)
a0, a1, mean = vS, vS+2, vS+6
pk("add", a0, vU, vU+2); pk("add", a1, vU+4, vU+6)
for i in range(4, 16, 2): pk("add", a0, a0, vU+2*i); pk("add", a1, a1, vU+2*i+2)
pk("add", a0, a0, a1); A(f"v_add_f32 v{a0}, v{a0}, v{a0+1}")
allred(a0, "v_add_f32", ["q1", "q2", "hm", "m", "p16"], a1)
A(f"v_mul_f32 v{mean}, 0x3a800000, v{a0}")
for i in range(16):
    acc = a0 if i % 2 == 0 else a1
    dd = vF + 2*(i % 4)
    pk("add", dd, vU+2*i, mean, None, NEG)
    if i < 2: pk("mul", acc, dd, dd)
    else: pk("fma", acc, dd, dd, acc)
pk("add", a0, a0, a1); A(f"v_add_f32 v{a0}, v{a0}, v{a0+1}")
allred(a0, "v_add_f32", ["q1", "q2", "hm", "m", "p16"], a1)
A(f"v_mul_f32 v{a0}, 0x3a800000, v{a0}\nv_cvt_pk_bf16_f32 v{a0}, v{a0}, v{mean}")
A(f"v_and_b32 v{mean}, s{sHI}, v{a0}\nv_lshlrev_b32 v{a0}, 16, v{a0}\nv_add_f32 v{a0}, 0x3727c5ac, v{a0}")
A(f"v_cvt_pk_bf16_f32 v{a0}, v{a0}, v{a0}\nv_lshlrev_b32 v{a0}, 16, v{a0}\nv_sqrt_f32 v{a0}, v{a0}")
A(f"v_cvt_pk_bf16_f32 v{a0}, v{a0}, v{a0}\nv_lshlrev_b32 v{a0}, 16, v{a0}\nv_rcp_f32 v{a0}, v{a0}")
norm(0)
A(f"s_setpc_b64 s[{sRA}:{sRA+1}]")

order = {0: "top common ln proj ld2 attn mlp", 1: "top common ld2 ln proj attn mlp"}[OPT["lay"]].split()
ALL = [x for n in order for x in SEC[n]] + ["L_codeend:"]
body, nadd = hz.pad("\n".join(ALL))
if STN: body += "\n; STAMPS start," + ",".join(STN) + ",end"
hdr = open(os.path.join(os.path.dirname(__file__), "header.txt")).read()
out = f"""{hdr}; @launch grid=(256,1,1) block=(448,1,1) lds={LDS_END}
.amdgcn_target "amdgcn-amd-amdhsa--gfx950"
.text
.globl {NAME}_kernel
.p2align 8
.type {NAME}_kernel,@function
{NAME}_kernel:
{body}
.section .rodata,"a"
.p2align 6
.amdhsa_kernel {NAME}_kernel
  .amdhsa_next_free_vgpr {NV}
  .amdhsa_next_free_sgpr 102
  .amdhsa_accum_offset {NV}
  .amdhsa_group_segment_fixed_size 0
  .amdhsa_kernarg_size 104
  .amdhsa_user_sgpr_count 2
  .amdhsa_user_sgpr_kernarg_segment_ptr 1
  .amdhsa_system_sgpr_workgroup_id_x 1
  .amdhsa_float_denorm_mode_32 3
.end_amdhsa_kernel
"""
open(sys.argv[1], "w").write(out)
print("NV", NV, "LDS", LDS_END, "nops added", nadd, file=sys.stderr)
```

```python
import sys, os
sys.path.insert(0, os.path.dirname(__file__))
import hz
NAME = "parallel_sum__sliding_block_cached__mixer_channel_mlp__decode"
OPT = dict(stamps=0, nt=1, spin=1 << 16, swave=0, Wk=20, Wv=20, Wvb=32, W1=20, Wo=20, W2=20, W2x=36,
           g1=64, g2=152, g4=152, cpf=1, dry=1, qmap=3, lay=0, loc4=1, pr4=1, rs4=2, pr1=0, pr2=0)
STN = None
for a in sys.argv[2:]:
    k, v = a.split("=")
    if k == "st": STN = v.split(","); OPT["stamps"] = 1
    elif k == "W":
        for kk in ("Wk", "Wv", "W1", "Wo", "W2"): OPT[kk] = int(v)
    else: OPT[k] = int(v)
NT = " nt" if OPT["nt"] else ""
SEC = {}; L = []
def sec(name):
    global L
    L = SEC.setdefault(name, [])
def A(s):
    for x in s.split("\n"): L.append("    " + x.strip() if not x.strip().endswith(":") else x.strip())
class Alloc:
    def __init__(s, start): s.n = start
    def __call__(s, cnt=1, al=1):
        s.n = (s.n + al - 1) // al * al
        r = s.n; s.n += cnt; return r
VA = Alloc(1)
def vr(r, n): return f"v[{r}:{r+n-1}]"
def srd(r): return f"s[{r}:{r+3}]"
sLive = 6
sX, sWQ, sK, sV, sW1, sWO, sW2 = range(8, 36, 4)
sB1, sWS = sWQ, sW1
(sx8, si32, sS, sCG2, sWave, sT, sT2, sT3, sT4, sT5, sT32, sT6, sHI, sSpin, sC63, sRetry, sW8, sGi, sNeed, sPB, sCnt, sM, sG, sR4) = range(36, 60)
sPub = sW8
sRA = 60; sMk = 62; sTgM, sTgR, sTgV, sRes = 32, 33, 34, 35
STB = 68
P1, P4, P2L, P2, P3, WSSZ = 0x10000, 0x40000, 0x60000, 0x100000, 0x200000, 0x400000
S0, S1, S2, S3, M = 0, 32768, 65536, 98304, 131072
XR, PX, XN, YN, QL = M, M + 4096, M + 8192, M + 9216, M + 10240
ML = QL + 2304; OL = ML + 256; HL = OL + 256; FLG = HL + 256
LDS_END = FLG + 256
LCO = 24
pX, pWQ, pK, pV, pW1, pWO, pW2, pEND = 0, 4, 36, 68, 100, 132, 164, 196
vLane, vG4, vN16, vJ, vTmp2, vTmp3 = [VA() for _ in range(6)]
aFL = VA(); aPW = VA()
aW = VA(4); aK = VA(4); aV = VA(2); aQ = VA(); aXB = VA(); aXW = VA(); aPj = VA(2)
vPub = VA(); vG1 = VA(); aQW = VA(); aPXW = VA(); aPXR = VA(); aMLW = VA(); aMLR = VA(); vS2o = VA(); vS2l = VA()
vG2 = VA(); vG2l = VA(); vP3 = VA(); aOLW = VA(); aOLR = VA(); vSig = VA(); vE = VA(4)
vP = VA(16, 4); vU = VA(32, 4); vS = VA(8, 4); vXB = VA(32, 4); vF = VA(32, 4); vAcc = VA(32, 4)
vQ = VA(16, 4); vG = VA(16, 4); vSm = VA(8, 2); vFl = VA(4, 2)
vKF = vXB
NV = (VA.n + 7) // 8 * 8
assert NV <= 256, NV
t0, t1, t2 = vS, vS+1, vS+2
nst = [0]; slots = {}
def stamp(name):
    if OPT["stamps"] and (name in STN or name in ("start", "end")):
        i = nst[0]; nst[0] += 1
        slots[name] = (i, 0 if name == "start" else (len(STN) + 1 if name == "end" else STN.index(name) + 1))
        assert STB + 2*i + 1 <= 101
        A(f"s_memrealtime s[{STB+2*i}:{STB+2*i+1}]")
lab = [0]
def newlab(p):
    lab[0] += 1; return f"L_{p}{lab[0]}"
DPP = dict(q1="quad_perm:[1,0,3,2]", q2="quad_perm:[2,3,0,1]", hm="row_half_mirror", m="row_mirror",
           r2="row_ror:2", r4="row_ror:4", r8="row_ror:8")
def allred(reg, op, steps, tmp):
    regs_ = reg if isinstance(reg, list) else [reg]
    tmps = tmp if isinstance(tmp, list) else [tmp]
    for st in steps:
        if st in DPP:
            for r in regs_: A(f"{op}_dpp v{r}, v{r}, v{r} {DPP[st]} row_mask:0xf bank_mask:0xf")
        else:
            ins = "v_permlane16_swap_b32" if st == "p16" else "v_permlane32_swap_b32"
            for r, t in zip(regs_, tmps): A(f"v_mov_b32 v{t}, v{r}")
            for r, t in zip(regs_, tmps): A(f"{ins} v{r}, v{t}")
            for r, t in zip(regs_, tmps): A(f"{op} v{r}, v{r}, v{t}")
def unpack(dlo, dhi, src): A(f"v_lshlrev_b32 v{dlo}, 16, v{src}\nv_and_b32 v{dhi}, s{sHI}, v{src}")
def pk(op, d, a, b, c=None, mods=""):
    A(f"v_pk_{op}_f32 {vr(d,2)}, {vr(a,2)}, {vr(b,2)}" + (f", {vr(c,2)}" if c is not None else "") + (" " + mods if mods else ""))
BC = "op_sel_hi:[1,0]"; BC3 = "op_sel_hi:[1,0,1]"; NEG = "op_sel_hi:[1,0] neg_lo:[0,1] neg_hi:[0,1]"
def setexec(m):
    lo, hi = m & 0xffffffff, (m >> 32) & 0xffffffff
    if lo == hi: A(f"s_and_b32 exec_lo, s{sLive}, {lo:#x}\ns_mov_b32 exec_hi, exec_lo")
    else: A(f"s_and_b32 exec_lo, s{sLive}, {lo:#x}\ns_and_b32 exec_hi, s{sLive}, {hi:#x}")
def fullexec(): A(f"s_mov_b64 exec, s[{sLive}:{sLive+1}]")
ABL = OPT.get("abl", 0)
def vm(s_):
    if ABL in (2, 3, 4) and "load" in s_: return
    if ABL == 3 and "store" in s_: return
    if ABL == 4: s_ = s_.replace(" sc1", "")
    l = newlab("vm"); A(f"s_cbranch_execz {l}"); A(s_); A(f"{l}:")
def dry_on(): A(f"s_mov_b64 s[{sLive}:{sLive+1}], 0\ns_mov_b64 exec, 0")
def dry_off(): A(f"s_mov_b64 s[{sLive}:{sLive+1}], -1\ns_mov_b64 exec, -1")
def waitLC(base, sreg=None):
    l = newlab("lc")
    if sreg is None: A(f"s_movk_i32 s{sNeed}, {base}")
    else: A(f"s_add_u32 s{sNeed}, s{sreg}, {base}")
    A(f"{l}:\nds_read_b32 v{vFl}, v{aFL} offset:{LCO}\ns_waitcnt lgkmcnt(0)\nv_cmp_gt_i32 vcc, s{sNeed}, v{vFl}\ns_cbranch_vccnz {l}")
def signal(stage): A(f"v_mov_b32 v{vFl}, {stage}\nds_write_b32 v{aPW}, v{vFl}")
def pwtest(stage): A(f"v_min3_i32 v{vFl}, v{vFl}, v{vFl+1}, v{vFl+2}\nv_min_i32 v{vFl}, v{vFl}, v{vFl+3}\nv_cmp_gt_i32 vcc, {stage}, v{vFl}")
def waitPW(stage):
    l = newlab("pw")
    A(f"{l}:\nds_read_b128 {vr(vFl,4)}, v{aFL}\ns_waitcnt lgkmcnt(0)"); pwtest(stage); A(f"s_cbranch_vccnz {l}")
def waitMW(stage):
    l = newlab("mw")
    A(f"{l}:\nds_read_b64 {vr(vFl,2)}, v{aFL} offset:16\ns_waitcnt lgkmcnt(0)\nv_min_i32 v{vFl}, v{vFl}, v{vFl+1}\nv_cmp_gt_i32 vcc, {stage}, v{vFl}\ns_cbranch_vccnz {l}")
def LB(stage): signal(stage); waitPW(stage)
def orred(dst, regs_):
    regs_ = list(regs_)
    A(f"v_or3_b32 v{dst}, v{regs_[0]}, v{regs_[1]}, v{regs_[2]}"); r = 3
    while r + 1 < len(regs_):
        A(f"v_or3_b32 v{dst}, v{dst}, v{regs_[r]}, v{regs_[r+1]}"); r += 2
    if r < len(regs_): A(f"v_or_b32 v{dst}, v{dst}, v{regs_[r]}")
def retry_tail(name, reissue, inc, masked):
    A(f"v_cmp_ne_u32 vcc, 0, v{vS}\n" + ("s_branch" if ABL else "s_cbranch_vccz") + f" L_{name}ok")
    A(f"s_add_u32 s{sRetry}, s{sRetry}, {inc}\ns_sub_u32 s{sSpin}, s{sSpin}, 1\ns_cbranch_scc1 L_bail")
    if masked: A("s_mov_b64 exec, vcc")
    reissue()
    A(f"s_waitcnt vmcnt(0)\ns_branch L_{name}chk\nL_{name}ok:")
    if masked: fullexec()
def chk6(base, n, name, reissue, inc):
    A(f"L_{name}chk:")
    for r in range(n): A(f"v_xor_b32 v{base+r}, s{sT6}, v{base+r}")
    orred(vS, range(base, base + n))
    A(f"v_and_b32 v{vS}, 63, v{vS}")
    retry_tail(name, reissue, inc, False)
DUMP = OPT["stamps"] and "probe" not in OPT
def dump_stamps(pred, retry_slot):
    A("s_mov_b64 exec, 1\ns_load_dwordx2 s[4:5], s[0:1], 96")
    A(f"s_waitcnt lgkmcnt(0)\ns_lshl_b32 s{sT}, s2, 8\ns_add_u32 s4, s4, s{sT}\ns_addc_u32 s5, s5, 0\ns_add_u32 s4, s4, 0x8000000\ns_addc_u32 s5, s5, 0\nv_mov_b32 v{vS+2}, 0")
    for nm, (i, sl) in slots.items():
        if pred(nm):
            A(f"v_mov_b32 v{vS}, s{STB+2*i}\nv_mov_b32 v{vS+1}, s{STB+2*i+1}\nglobal_store_dwordx2 v{vS+2}, {vr(vS,2)}, s[4:5] offset:{8*sl}\ns_nop 1")
    if retry_slot is not None:
        A(f"v_mov_b32 v{vS}, s{sRetry}\nglobal_store_dword v{vS+2}, v{vS}, s[4:5] offset:{retry_slot}")
def probe_pad():
    k = slots[STN[0]][0]; l = newlab("pad")
    A(f"s_waitcnt lgkmcnt(0)\ns_sub_u32 s{sT}, s{STB+2*k}, s{STB}\ns_lshl_b32 s{sT}, s{sT}, 2\ns_add_u32 s{sT}, s{sT}, 2000")
    A(f"{l}:\ns_memrealtime s[4:5]\ns_waitcnt lgkmcnt(0)\ns_sub_u32 s4, s4, s{STB}\ns_cmp_lt_u32 s4, s{sT}\ns_cbranch_scc1 {l}")
def qidx(cg, ks, tmp):
    if OPT["qmap"] == 3:
        A(f"s_cmp_ge_u32 s{si32}, 14\ns_cselect_b32 s{ks}, 1, 0\ns_cselect_b32 s{tmp}, 14, 0\ns_sub_u32 s{cg}, s{si32}, s{tmp}")
        A(f"s_cmp_ge_u32 s{cg}, 10\ns_addc_u32 s{tmp}, s{cg}, 0\ns_cmp_ge_u32 s{cg}, 3\ns_addc_u32 s{cg}, s{tmp}, 0")
        A(f"s_and_b32 s{tmp}, s{si32}, 1\ns_lshl_b32 s{tmp}, s{tmp}, 3\ns_add_u32 s{tmp}, s{tmp}, 3\ns_bfe_u32 s{sCG2}, s{si32}, 0x10001")
        A(f"s_cmp_ge_u32 s{si32}, 28\ns_cselect_b32 s{cg}, s{tmp}, s{cg}\ns_cselect_b32 s{ks}, s{sCG2}, s{ks}")
    else:
        A(f"s_and_b32 s{cg}, s{si32}, 15\ns_lshr_b32 s{ks}, s{si32}, 4")
    A(f"s_lshr_b32 s{tmp}, s{sx8}, 1\ns_lshl_b32 s{tmp}, s{tmp}, 4\ns_add_u32 s{cg}, s{cg}, s{tmp}\ns_and_b32 s{tmp}, s{sx8}, 1\ns_lshl_b32 s{tmp}, s{tmp}, 1\ns_add_u32 s{ks}, s{ks}, s{tmp}")
def midx(cg, ks, tmp):
    A(f"s_mul_i32 s{cg}, s{sx8}, 7\ns_lshr_b32 s{tmp}, s{si32}, 2\ns_add_u32 s{cg}, s{cg}, s{tmp}\ns_add_u32 s{tmp}, s{sx8}, 56\ns_cmp_lt_u32 s{si32}, 28\ns_cselect_b32 s{cg}, s{cg}, s{tmp}\ns_and_b32 s{ks}, s{si32}, 3")

sec("top")
stamp("start")
A(f"s_load_dwordx2 s[{sX}:{sX+1}], s[0:1], 0\ns_load_dwordx2 s[{sWQ}:{sWQ+1}], s[0:1], 24\ns_load_dwordx2 s[{sMk}:{sMk+1}], s[0:1], 96")
A("s_cmp_ge_u32 s2, 256\ns_cbranch_scc1 L_end")
A(f"v_readfirstlane_b32 s{sWave}, v0\nv_and_b32 v{vLane}, 63, v0\nv_subrev_u32 v0, 64, v0")
if OPT["cpf"]:
    A(f"s_getpc_b64 s[4:5]\nL_pc:\nv_lshlrev_b32 v{vU}, 7, v0\nv_cmp_gt_u32 vcc, (L_codeend-L_pc)/128, v0\ns_and_saveexec_b64 s[{sLive}:{sLive+1}], vcc\ns_cbranch_execz L_nocpf")
    A(f"global_load_dword v{vU+1}, v{vU}, s[4:5]\nL_nocpf:")
dry_off()
A(f"s_and_b32 s{sx8}, s2, 7\ns_lshr_b32 s{si32}, s2, 3")
A(f"s_cmp_lg_u32 s{sWave}, 0\ns_cbranch_scc1 L_notloader")
lX, lT8, lT7, lK, lV, lC = vP, vP+1, vP+2, vP+4, vP+8, vP+10
A(f"s_movk_i32 s{sX+2}, 4096\ns_mov_b32 s{sX+3}, 0x20000\nv_lshlrev_b32 v{lX}, 4, v{vLane}")
A(f"v_lshrrev_b32 v{vTmp2}, 3, v{vLane}\nv_and_b32 v{vS}, 6, v{vTmp2}\nv_and_b32 v{vTmp3}, 7, v{vLane}\nv_xor_b32 v{vTmp3}, v{vTmp3}, v{vS}\nv_lshlrev_b32 v{vTmp3}, 4, v{vTmp3}")
A(f"v_lshl_add_u32 v{lT8}, v{vTmp2}, 13, v{vTmp3}")
A(f"s_mov_b32 s{sWQ+2}, {1<<23:#x}\ns_mov_b32 s{sWQ+3}, s{sX+3}")
qidx(sG, sT3, sT)
A(f"s_lshl_b32 s{sG}, s{sG}, 7\ns_lshl_b32 s{sT}, s{sT3}, 16\ns_add_u32 s{sG}, s{sG}, s{sT}")
A(f"s_mov_b32 m0, {XR}\ns_waitcnt lgkmcnt(0)")
stamp("l_karg")
for q in range(4): A(f"buffer_load_dwordx4 v{lX}, {srd(sX)}, 0 offen offset:{1024*q} lds")
curW = [36]
sThr = 3
def thr():
    if not OPT.get("thr"): return
    l = newlab("th")
    A(f"s_cmp_ge_i32 s{sCnt}, s{sThr}\ns_cbranch_scc1 {l}\ns_waitcnt vmcnt({OPT['thrW']-4})\ns_add_u32 s{sNeed}, s{sCnt}, {curW[0] - OPT['thrW'] + 4}\ns_max_i32 s{sPub}, s{sPub}, s{sNeed}\n{l}:")
def pub(): A(f"s_add_u32 s{sCnt}, s{sCnt}, 4\ns_max_i32 s{sPub}, s{sPub}, s{sCnt}\nv_mov_b32 v{lC}, s{sPub}\nds_write_b32 v{aFL}, v{lC} offset:{LCO}")
def trans(Wn):
    Wo = curW[0]; assert Wn % 4 == 0
    if Wn < Wo:
        for k in range(Wo - 4, Wn - 1, -4): A(f"s_waitcnt vmcnt({k})"); pub()
    elif Wn > Wo: A(f"s_sub_u32 s{sCnt}, s{sCnt}, {Wn - Wo}")
    curW[0] = Wn
def loop(n_end, body):
    l = newlab("ld"); A(f"{l}:"); body()
    A(f"s_cmp_lg_u32 s{sCnt}, {(n_end - curW[0]) & 0xffffffff}\ns_cbranch_scc1 {l}")
def aloop(n_end, body, Wb, stage):
    Wa = curW[0]
    if Wb <= Wa: loop(n_end, body); return
    la, ld = newlab("aa"), newlab("ad")
    if stage > 0: A(f"{la}:\nds_read_b128 {vr(vFl,4)}, v{aFL}")
    else: A(f"{la}:\nds_read_b64 {vr(vFl,2)}, v{aFL} offset:16")
    body()
    A(f"s_cmp_eq_u32 s{sCnt}, {(n_end - Wa) & 0xffffffff}\ns_cbranch_scc1 {ld}\ns_waitcnt lgkmcnt(1)")
    if stage > 0: pwtest(stage)
    else: A(f"v_min_i32 v{vFl}, v{vFl}, v{vFl+1}\nv_cmp_gt_i32 vcc, {-stage}, v{vFl}")
    A(f"s_cbranch_vccnz {la}")
    trans(Wb); loop(n_end, body); trans(Wa)
    A(f"{ld}:")
A(f"s_mov_b32 m0, {S0}\ns_mov_b32 s{sCnt}, 8\nL_pre:")
for q in range(4):
    A(f"buffer_load_dwordx4 v{lT8}, {srd(sWQ)}, s{sG} offen{NT} lds\ns_add_u32 m0, m0, 1024\ns_add_u32 s{sG}, s{sG}, {32*8192}")
A(f"s_sub_u32 s{sCnt}, s{sCnt}, 1\ns_cmp_lg_u32 s{sCnt}, 0\ns_cbranch_scc1 L_pre")
for r, off in ((sK, 8), (sV, 16), (sW1, 48), (sWO, 32), (sW2, 64)):
    A(f"s_load_dwordx2 s[{r}:{r+1}], s[0:1], {off}")
A(f"s_mov_b32 s{sPub}, 0\ns_mov_b32 s{sRetry}, 0\nv_mov_b32 v{aFL}, {FLG}\ns_setprio 3\ns_barrier")
trans(32)
stamp("l_x")
A("s_branch L_loader2")
sec("ld2")
A("L_loader2:")
A(f"v_lshrrev_b32 v{vG4}, 4, v{vLane}\nv_and_b32 v{vN16}, 15, v{vLane}")
A(f"v_mul_u32_u24 v{lT7}, 7168, v{vTmp2}\nv_add_u32 v{lT7}, v{lT7}, v{vTmp3}")
A(f"v_lshlrev_b32 v{vTmp2}, 8, v{vG4}\nv_xor_b32 v{vTmp3}, v{vN16}, v{vG4}\nv_lshl_add_u32 v{lK}, v{vTmp3}, 4, v{vTmp2}")
for q in (1, 2, 3): A(f"v_xor_b32 v{lK+q}, {64*q}, v{lK}")
A(f"v_xor_b32 v{vTmp3}, v{vN16}, v{vS}\nv_lshl_add_u32 v{lV}, v{vTmp3}, 4, v{vTmp2}\nv_xor_b32 v{lV+1}, 128, v{lV}")
A(f"s_mov_b32 s{sK+2}, {1<<25:#x}\ns_mov_b32 s{sV+2}, s{sK+2}\ns_mov_b32 s{sWO+2}, s{sWQ+2}")
for r in (sK, sV, sW1, sWO, sW2): A(f"s_mov_b32 s{r+3}, 0x20000")
A(f"s_cmp_lt_u32 s{si32}, 28\ns_cselect_b32 s{sW1+2}, {1024*7168}, 0\ns_mov_b32 s{sW2+2}, s{sW1+2}")
sKV = sT4
A(f"s_and_b32 s{sKV}, s{sx8}, 1\ns_lshl_b32 s{sKV}, s{sKV}, 2\ns_lshr_b32 s{sT}, s{sx8}, 1\ns_add_u32 s{sKV}, s{sKV}, s{sT}\ns_lshl_b32 s{sKV}, s{sKV}, 22\ns_add_u32 s{sKV}, s{sKV}, 0x300000")
A(f"s_waitcnt lgkmcnt(0)\ns_load_dword s{sT32}, s[{sMk}:{sMk+1}], 0")
def kv_group(s_, voff, nreg):
    thr()
    A(f"s_and_b32 s{sM}, s{sM}, 0x1ffff\ns_add_u32 s{sG}, s{sT2}, s{sM}\ns_add_u32 s{sM}, s{sM}, {5*4096}\ns_add_u32 s{sT2}, s{sT2}, 131072")
    for q in range(4):
        A(f"s_waitcnt vmcnt({curW[0]-1})\nbuffer_load_dwordx4 v{voff + q % nreg}, {srd(s_)}, s{sG} offen offset:{1024*q}{NT} lds")
    A(f"s_add_u32 m0, m0, 4096")
    pub()
if OPT.get("thr"): A(f"s_lshr_b32 s{sThr}, {OPT['thr']}, s{sx8}\ns_bitcmp1_b32 s{sThr}, 0\ns_cselect_b32 s{sThr}, {OPT['thrN']}, -16")
trans(OPT["Wk"])
A(f"s_mov_b32 s{sT2}, s{sKV}\ns_lshl_b32 s{sM}, s{si32}, 12")
loop(pV, lambda: kv_group(sK, lK, 4))
stamp("l_K")
trans(OPT["Wv"])
A(f"s_mov_b32 s{sT2}, s{sKV}\ns_lshl_b32 s{sM}, s{si32}, 12")
aloop(pW1, lambda: kv_group(sV, lV, 2), OPT["Wvb"], 3)
stamp("l_V")
midx(sCG2, sT3, sT)
A(f"s_lshl_b32 s{sG}, s{sCG2}, 7\ns_mul_i32 s{sT}, s{sT3}, {8*7168}\ns_add_u32 s{sG}, s{sG}, s{sT}\ns_lshl_b32 s{sT3}, s{sT3}, 9")
trans(OPT["W1"])
def w1_group():
    thr()
    for q in range(4):
        A(f"s_waitcnt vmcnt({curW[0]-1})\nbuffer_load_dwordx4 v{lT7}, {srd(sW1)}, s{sG} offen{NT} lds\ns_add_u32 m0, m0, 1024\ns_add_u32 s{sG}, s{sG}, {32*7168}")
    pub()
loop(pWO, w1_group)
stamp("l_W1")
lF = lK
A(f"v_lshrrev_b32 v{vTmp2}, 5, v{vLane}\nv_and_b32 v{vTmp3}, 31, v{vLane}\nv_lshlrev_b32 v{lF}, 1, v{vTmp2}\nv_xor_b32 v{vTmp3}, v{vTmp3}, v{lF}\nv_lshlrev_b32 v{vTmp3}, 4, v{vTmp3}\nv_lshl_add_u32 v{lF}, v{vTmp2}, 11, v{vTmp3}")
for q in (1, 2, 3): A(f"v_xor_b32 v{lF+q}, {64*q}, v{lF}")
A(f"s_lshl_b32 s{sS}, s{sx8}, 5\ns_add_u32 s{sS}, s{sS}, s{si32}\ns_lshr_b32 s{sR4}, s{si32}, 2")
def fin_group(s_, slot, kshift):
    A(f"s_add_u32 s{sM}, s{sGi}, s{sR4}\ns_and_b32 s{sM}, s{sM}, 3\ns_xor_b32 s{sT2}, s{sGi}, s{sR4}\ns_bfe_u32 s{sT2}, s{sT2}, 0x10002")
    A(f"s_lshl_b32 s{sG}, s{sT2}, {kshift}\ns_add_u32 s{sG}, s{sG}, s{sT}\ns_lshl_b32 s{sT5}, s{sM}, 14\ns_add_u32 s{sG}, s{sG}, s{sT5}")
    A(f"s_lshl_b32 s{sT2}, s{sT2}, 2\ns_add_u32 s{sM}, s{sM}, s{sT2}\ns_lshl_b32 s{sM}, s{sM}, 12\ns_add_u32 m0, s{sM}, {slot}\ns_add_u32 s{sGi}, s{sGi}, 1")
    for q in range(4):
        A(f"s_waitcnt vmcnt({curW[0]-1})\nbuffer_load_dwordx4 v{lF+q}, {srd(s_)}, s{sG} offen{NT} lds")
        if q < 3: A(f"s_add_u32 m0, m0, 1024\ns_add_u32 s{sG}, s{sG}, 4096")
    pub()
trans(OPT["Wo"])
waitPW(1)
A(f"s_lshr_b32 s{sT}, s{sS}, 4\ns_lshl_b32 s{sT}, s{sT}, 19\ns_and_b32 s{sT2}, s{sR4}, 3\ns_lshl_b32 s{sT2}, s{sT2}, 16\ns_add_u32 s{sT}, s{sT}, s{sT2}\ns_add_u32 s{sT}, s{sT}, s{sT3}\ns_mov_b32 s{sGi}, 0")
loop(pW2, lambda: fin_group(sWO, S0, 18))
stamp("l_WO")
trans(OPT["W2"])
waitPW(2)
A(f"s_lshl_b32 s{sT}, s{sCG2}, 17\ns_add_u32 s{sT}, s{sT}, s{sT3}\ns_mov_b32 s{sGi}, 0")
aloop(pEND, lambda: fin_group(sW2, S1, 16), OPT["W2x"], -1)
stamp("l_W2")
fWS, fB2, fOUT = sWQ, sK, sV
vOo, vG3 = vP+12, vP+13
A(f"s_load_dwordx2 s[{fB2}:{fB2+1}], s[0:1], 72\ns_load_dwordx2 s[{fOUT}:{fOUT+1}], s[0:1], 80")
A(f"s_mov_b32 s{fWS}, s{sMk}\ns_mov_b32 s{fWS+1}, s{sMk+1}\ns_mov_b32 s{fWS+2}, {WSSZ:#x}\ns_movk_i32 s{fB2+2}, 2048\ns_movk_i32 s{fOUT+2}, 4096")
A(f"v_and_b32 v{vTmp2}, 1, v{vLane}\nv_lshlrev_b32 v{vOo}, 3, v{vTmp2}\nv_lshrrev_b32 v{vTmp3}, 1, v{vLane}\nv_lshlrev_b32 v{vG3}, 4, v{vTmp2}\nv_lshl_add_u32 v{vG3}, v{vTmp3}, 11, v{vG3}")
sOo = sM
A(f"s_lshr_b32 s{sT}, s{sS}, 6\ns_lshl_b32 s{sT3}, s{sT}, 9\ns_and_b32 s{sT2}, s{sS}, 31\ns_lshl_b32 s{sT2}, s{sT2}, 4\ns_add_u32 s{sT3}, s{sT3}, s{sT2}")
A(f"s_bfe_u32 s{sT2}, s{sS}, 0x10005\ns_lshl_b32 s{sT2}, s{sT2}, 11\ns_add_u32 s{sOo}, s{sT3}, s{sT2}")
A(f"s_lshl_b32 s{sT}, s{sT}, 17\ns_and_b32 s{sT2}, s{sS}, 63\ns_lshl_b32 s{sT2}, s{sT2}, 5\ns_add_u32 s{sT}, s{sT}, s{sT2}\ns_add_u32 s{sT}, s{sT}, {P3:#x}\ns_add_u32 s{sT2}, s{sT}, 65536")
A(f"s_add_u32 s{sT32}, s{sT32}, 9\ns_and_b32 s{sT6}, s{sT32}, 0xfff\ns_mov_b32 s{sHI}, 0xffff0000\ns_mov_b32 s{sSpin}, {OPT['spin']}")
trans(0)
stamp("l_end")
if OPT.get("abl"): A("s_branch L_lend")
A("s_waitcnt lgkmcnt(0)")
A(f"buffer_load_dwordx2 {vr(vSm,2)}, v{vOo}, {srd(sX)}, s{sOo} offen\nbuffer_load_dwordx2 {vr(vSm+2,2)}, v{vOo}, {srd(fB2)}, s{sT3} offen")
A("L_g3:")
for k, so in enumerate((sT, sT2)): A(f"buffer_load_dwordx4 {vr(vG+4*k,4)}, v{vG3}, {srd(fWS)}, s{so} offen sc1")
A(f"s_add_u32 s{sRetry}, s{sRetry}, 0x1000000\ns_sub_u32 s{sSpin}, s{sSpin}, 1\ns_cbranch_scc1 L_end\ns_waitcnt vmcnt(0)")
for r in range(8): A(f"v_xor_b32 v{vG+r}, s{sT6}, v{vG+r}")
orred(vS, range(vG, vG+8))
A(f"v_and_b32 v{vS}, 0xfff, v{vS}\nv_cmp_ne_u32 vcc, 0, v{vS}\ns_and_b64 exec, exec, vcc\ns_cbranch_scc1 L_g3\ns_mov_b64 exec, -1")
stamp("l_g3ok")
vH = vQ
pk("add", vG, vG, vG+4); pk("add", vG+2, vG+2, vG+6)
unpack(vH, vH+1, vSm); unpack(vH+2, vH+3, vSm+1)
A(f"v_permlane32_swap_b32 v{vG}, v{vG+2}\nv_permlane32_swap_b32 v{vG+1}, v{vG+3}")
unpack(vH+4, vH+5, vSm+2)
pk("add", vG, vG, vG+2)
unpack(vH+6, vH+7, vSm+3)
A(f"v_permlane16_swap_b32 v{vG}, v{vG+1}")
pk("add", vH, vH, vH+4)
A(f"v_add_f32 v{vG}, v{vG}, v{vG+1}")
pk("add", vH+2, vH+2, vH+6)
A(f"s_mov_b32 vcc_lo, 0xffff0000\ns_mov_b32 vcc_hi, 0xffff0000")
allred(vG, "v_add_f32", ["r2"], None)
A(f"v_cndmask_b32 v{vH}, v{vH}, v{vH+1}, vcc\nv_cndmask_b32 v{vH+2}, v{vH+2}, v{vH+3}, vcc")
allred(vG, "v_add_f32", ["r4"], None)
A(f"s_mov_b32 vcc_lo, 0\ns_mov_b32 vcc_hi, -1\nv_cndmask_b32 v{vH}, v{vH}, v{vH+2}, vcc")
allred(vG, "v_add_f32", ["r8"], None)
A(f"v_lshrrev_b32 v{vTmp2}, 4, v{vLane}\nv_lshl_add_u32 v{vOo}, v{vTmp2}, 1, v{vOo}")
A(f"v_add_f32 v{vH}, v{vH}, v{vG}\nv_cvt_pk_bf16_f32 v{vH}, v{vH}, v{vH}")
A("s_mov_b32 exec_lo, 0x00030003\ns_mov_b32 exec_hi, 0x00030003")
A(f"buffer_store_short v{vH}, v{vOo}, {srd(fOUT)}, s{sOo} offen")
A(f"s_cmp_lg_u32 s2, 0\ns_cbranch_scc1 L_lend")
A(f"v_mov_b32 v{vS}, s{sT32}\nv_mov_b32 v{vS+1}, 0\ns_mov_b64 exec, 1\nbuffer_store_dword v{vS}, v{vS+1}, {srd(fWS)}, 0 offen sc1")
A("L_lend:")
stamp("l_fin")
if DUMP: dump_stamps(lambda n: n.startswith("l_"), 8*30)
if "probe" in OPT and STN[0].startswith("l_"): probe_pad()
A("L_end:\ns_endpgm")
nst[0] = 1 if OPT["stamps"] else 0
sec("common")
A("L_notloader:")
j = vJ
A(f"v_mov_b32 v{aFL}, {FLG}\nv_mov_b32 v{vFl}, 0\nv_lshl_add_u32 v{aPW}, v{vLane}, 2, v{aFL}\nds_write_b32 v{aPW}, v{vFl}")
A(f"s_lshr_b32 s{sWave}, s{sWave}, 6\ns_sub_u32 s{sWave}, s{sWave}, 1\nv_lshrrev_b32 v{vJ}, 6, v0\nv_lshrrev_b32 v{vG4}, 4, v{vLane}")
A(f"s_waitcnt lgkmcnt(0)\ns_load_dword s{sT32}, s[{sMk}:{sMk+1}], 0\ns_mov_b32 s{sWS}, s{sMk}\ns_mov_b32 s{sWS+1}, s{sMk+1}\ns_barrier")
A(f"v_lshl_add_u32 v{aPW}, v{j}, 2, v{aFL}\nv_and_b32 v{vN16}, 15, v{vLane}")
A(f"s_mov_b32 s{sWS+2}, {WSSZ:#x}\ns_mov_b32 s{sWS+3}, 0x20000\ns_mov_b32 s{sHI}, 0xffff0000")
if OPT["dry"]:
    A(f"s_cmp_lt_u32 s{sWave}, 4\ns_cbranch_scc1 L_nodry1")
    dry_on()
    A(f"s_cmp_eq_u32 s{sWave}, 4\ns_cbranch_scc1 L_dry4\ns_call_b64 s[{sRA}:{sRA+1}], L_proj\ns_branch L_dry5\nL_dry4:\ns_call_b64 s[{sRA}:{sRA+1}], L_ln\nL_dry5:")
    dry_off()
    A("L_nodry1:")
if OPT.get("abl") == 1:
    A(f"v_mov_b32 v{vFl}, 100\nds_write_b32 v{aPW}, v{vFl}\ns_cmp_eq_u32 s{sWave}, 0\ns_cbranch_scc1 L_ablend\ns_endpgm")
A(f"s_mov_b32 s{sRetry}, 0\ns_mov_b32 s{sSpin}, {OPT['spin']}")
r_, c4 = vTmp2, vTmp3
A(f"v_lshrrev_b32 v{r_}, 2, v{vN16}\nv_and_b32 v{c4}, 3, v{vN16}\nv_lshlrev_b32 v{c4}, 3, v{c4}\nv_lshl_add_u32 v{r_}, v{vG4}, 2, v{r_}")
A(f"s_cmp_lt_u32 s{sWave}, 2\ns_cbranch_scc1 L_attn")
sCGp, sKSp = sCnt, sG
qidx(sCGp, sKSp, sT)
A(f"s_cmp_lt_u32 s{sWave}, 4\ns_cbranch_scc1 L_isq")
midx(sCGp, sKSp, sT)
A("L_isq:")
A(f"v_lshrrev_b32 v{t1}, 5, v{vLane}\nv_and_b32 v{t2}, 31, v{vLane}\nv_lshlrev_b32 v{t0}, 6, v{t2}\nv_lshl_add_u32 v{t0}, v{t1}, 11, v{t0}\nv_add_u32 v{t0}, {XR}, v{t0}\ns_lshl_b32 s{sT}, s{sKSp}, 4")
for t in range(4):
    A(f"v_add_u32 v{vXB+t}, s{sT}, v{t0}")
    if t < 3: A(f"s_add_u32 s{sT}, s{sT}, 16\ns_and_b32 s{sT}, s{sT}, 63")
A(f"s_cmp_lt_u32 s{sWave}, 4\ns_cselect_b32 s{sT2}, {S0}, {S3}\ns_cselect_b32 s{sPB}, {pWQ}, {pW1}\ns_cselect_b32 s{sT3}, 0, {YN-XN}\ns_cselect_b32 s{sT4}, 1, 0\ns_cselect_b32 s{sT5}, 14, 8\ns_add_u32 s{sT3}, s{sT3}, {XN}")
A(f"v_lshlrev_b32 v{aXW}, 4, v{t2}\nv_lshl_add_u32 v{aXW}, v{t1}, 9, v{aXW}\nv_add_u32 v{aXW}, s{sT3}, v{aXW}")
stamp("c_set")
waitLC(pX + 4)
for t in range(4): A(f"ds_read_b128 {vr(vP+4*t,4)}, v{vXB+t}")
stamp("x")
A(f"s_and_b32 s{sT}, s{sWave}, 1\ns_lshl_b32 s{sT}, s{sT}, 1\nv_bfe_u32 v{t1}, v{r_}, 1, 2\nv_xor_b32 v{t1}, s{sT}, v{t1}\nv_lshl_add_u32 v{aPj}, v{r_}, 7, v{c4}\nv_lshl_add_u32 v{aPj}, v{t1}, 5, v{aPj}")
A(f"v_add_u32 v{aPj}, s{sT2}, v{aPj}\nv_xor_b32 v{aPj+1}, 32, v{aPj}\nv_mov_b32 v{vSig}, s{sT4}")
A(f"v_and_b32 v{t0}, 1, v{vN16}\nv_lshlrev_b32 v{t1}, 3, v{vG4}\nv_lshl_add_u32 v{aXB}, v{t0}, 9, v{t1}\nv_add_u32 v{aXB}, s{sT3}, v{aXB}")
A(f"v_lshlrev_b32 v{vPub}, s{sT5}, v{t0}\nv_lshl_add_u32 v{vPub}, v{t1}, 1, v{vPub}\nv_bfe_u32 v{t0}, v{vN16}, 1, 1\nv_lshl_add_u32 v{vPub}, v{t0}, 6, v{vPub}\ns_lshl_b32 s{sT}, s{sT}, 6\nv_add_u32 v{vPub}, s{sT}, v{vPub}")
A(f"s_mov_b32 s{sMk}, 0x0c0c0c0c\ns_mov_b32 s{sMk+1}, s{sMk}")
A(f"s_waitcnt lgkmcnt(0)\ns_add_u32 s{sT32}, s{sT32}, 9\ns_and_b32 s{sT6}, s{sT32}, 63")
A(f"s_call_b64 s[{sRA}:{sRA+1}], L_ln")
A(f"s_cmp_lt_u32 s{sWave}, 4\ns_cbranch_scc0 L_mlp")
A(f"s_lshr_b32 s{sT3}, s{sCGp}, 4\ns_lshl_b32 s{sT3}, s{sT3}, 15\ns_and_b32 s{sT}, s{sCGp}, 15\ns_lshl_b32 s{sT}, s{sT}, 8\ns_add_u32 s{sT3}, s{sT3}, s{sT}")
A(f"s_lshl_b32 s{sT}, s{sKSp}, 12\ns_add_u32 s{sT3}, s{sT3}, s{sT}\ns_add_u32 s{sT3}, s{sT3}, {P1:#x}")
A(f"s_mov_b32 s{sTgM}, 63\ns_mov_b32 s{sTgR}, 32\ns_mov_b32 s{sTgV}, s{sT6}")
stamp("ln1")
A(f"s_call_b64 s[{sRA}:{sRA+1}], L_proj")
stamp("S1")
A("s_branch L_attn2")
sec("mlp")
A("L_mlp:")
mlp_first = nst[0]
def norm(q):
    a0, mean = vS, vS+6
    for i in range(4*q, 4*q+4): pk("add", vU+2*i, vU+2*i, mean, None, NEG)
    for i in range(4*q, 4*q+4): A(f"v_cvt_pk_bf16_f32 v{vP+i}, v{vU+2*i}, v{vU+2*i+1}")
    for i in range(4*q, 4*q+4): unpack(vU+2*i, vU+2*i+1, vP+i)
    for i in range(4*q, 4*q+4): pk("mul", vU+2*i, vU+2*i, a0, None, BC)
    for i in range(4*q, 4*q+4): A(f"v_cvt_pk_bf16_f32 v{vP+i}, v{vU+2*i}, v{vU+2*i+1}")
A(f"s_load_dwordx2 s[{sB1}:{sB1+1}], s[0:1], 56")
A(f"s_cmp_lt_u32 s{si32}, 28\ns_cselect_b32 s{sB1+2}, 7168, 0\ns_mov_b32 s{sB1+3}, 0x20000")
for q in (1, 2, 3): norm(q)
A(f"s_call_b64 s[{sRA}:{sRA+1}], L_ln")
A(f"s_lshl_b32 s{sM}, s{sCGp}, 11\ns_add_u32 s{sM}, s{sM}, {P4:#x}")
vG4o, vB1o, aHW = vG1, aQW, aPXW
sG4 = sPB + 0
A(f"s_and_b32 s{sT}, s{sWave}, 1\ns_lshl_b32 s{sT2}, s{sT}, 8\nv_lshlrev_b32 v{vB1o}, 3, v{vN16}\nv_lshlrev_b32 v{vG4o}, 9, v{vG4}\nv_lshl_add_u32 v{vG4o}, v{vN16}, 4, v{vG4o}\nv_add_u32 v{vG4o}, s{sT2}, v{vG4o}")
A(f"s_lshl_b32 s{sT}, s{sT}, 7\ns_add_u32 s{sT}, s{sT}, {HL}\nv_and_b32 v{t0}, 3, v{vN16}\nv_lshlrev_b32 v{t0}, 4, v{t0}\nv_bfe_u32 v{t1}, v{vN16}, 2, 1\nv_lshl_add_u32 v{t0}, v{t1}, 3, v{t0}\nv_lshrrev_b32 v{t1}, 3, v{vN16}\nv_lshl_add_u32 v{t0}, v{t1}, 6, v{t0}\nv_add_u32 v{aHW}, s{sT}, v{t0}")
A(f"s_lshl_b32 s{sT}, s{sCGp}, 7\ns_waitcnt lgkmcnt(0)\nbuffer_load_dwordx2 {vr(vSm,2)}, v{vB1o}, {srd(sB1)}, s{sT} offen")
A(f"v_lshrrev_b32 v{t0}, 3, v{vLane}\nv_and_b32 v{t1}, 7, v{vLane}\nv_lshlrev_b32 v{t2}, 4, v{t1}\nv_lshl_add_u32 v{vG2}, v{t0}, 11, v{t2}")
A(f"v_lshrrev_b32 v{t1}, 2, v{t1}\nv_lshlrev_b32 v{t1}, 3, v{t1}\nv_lshl_add_u32 v{vG2l}, v{t0}, 7, v{t1}")
A(f"v_lshl_add_u32 v{aOLW}, v{t0}, 1, v{t2}\ns_and_b32 s{sT}, s{sWave}, 1\ns_lshl_b32 s{sT}, s{sT}, 7\ns_add_u32 s{sT}, s{sT}, {OL}\nv_add_u32 v{aOLW}, s{sT}, v{aOLW}")
A(f"v_and_b32 v{t0}, 7, v{vLane}\nv_xor_b32 v{t0}, s{sT32}, v{t0}")
for k in range(4): A(f"v_bfe_u32 v{vE+k}, v{t0}, {k}, 1")
A(f"s_lshl_b32 s{sS}, s{sx8}, 5\ns_add_u32 s{sS}, s{sS}, s{si32}")
A(f"s_getreg_b32 s{sTgV}, hwreg(HW_REG_XCC_ID, 0, 3)\ns_and_b32 s{sT}, s{sT32}, 0x3f8\ns_or_b32 s{sTgV}, s{sTgV}, s{sT}\ns_movk_i32 s{sTgM}, 1023\ns_movk_i32 s{sTgR}, 512\ns_mov_b32 s{sRes}, 0")
if OPT["loc4"] and OPT["pr4"]: A(f"buffer_load_dword v{vQ}, v{vG4o}, {srd(sWS)}, s{sM} offen sc1")
stamp("m_ln2")
if OPT["dry"]:
    dry_on(); A("s_branch L_mtail\nL_mreal:"); dry_off()
A(f"s_lshl_b32 s{sT}, s{sKSp}, 9\ns_add_u32 s{sT3}, s{sM}, s{sT}\ns_mov_b32 s{sGi}, s{sT3}")
A(f"s_call_b64 s[{sRA}:{sRA+1}], L_proj")
stamp("m_S4")
A("L_mtail:")
vM, vL = vS, vS+1
vZ = vSm
def g2():
    vm("\n".join(f"buffer_load_dwordx4 {vr(vG+4*k,4)}, v{vG2}, {srd(sWS)}, s{so} offen sc1" for k, so in enumerate((sT, sT2, sT3, sT4))) + "\n" +
       "\n".join(f"buffer_load_dwordx2 {vr(vZ+2*k,2)}, v{vG2l}, {srd(sWS)}, s{sT5} offen offset:{1024*k} sc1" for k in range(4)))
A(f"s_and_b32 s{sT5}, s{sx8}, 6\ns_and_b32 s{sT}, s{sWave}, 1\ns_add_u32 s{sT5}, s{sT5}, s{sT}\ns_lshl_b32 s{sT}, s{sT5}, 16\ns_lshl_b32 s{sT5}, s{sT5}, 12")
A(f"s_bfe_u32 s{sT2}, s{sS}, 0x20002\ns_lshl_b32 s{sT2}, s{sT2}, 9\ns_add_u32 s{sT}, s{sT}, s{sT2}\ns_bfe_u32 s{sT2}, s{sS}, 0x20004\ns_lshl_b32 s{sT3}, s{sT2}, 7\ns_add_u32 s{sT}, s{sT}, s{sT3}\ns_add_u32 s{sT}, s{sT}, {P2:#x}")
A(f"s_lshl_b32 s{sT2}, s{sT2}, 4\ns_add_u32 s{sT5}, s{sT5}, s{sT2}\ns_add_u32 s{sT5}, s{sT5}, {P2L:#x}")
A(f"s_add_u32 s{sT2}, s{sT}, 16384\ns_add_u32 s{sT3}, s{sT}, 32768\ns_add_u32 s{sT4}, s{sT}, 49152")
A("s_waitcnt vmcnt(1)")
unpack(vU+8, vU+9, vSm); unpack(vU+10, vU+11, vSm+1)
if OPT["pr2"]:
    l = newlab("p2")
    A(f"s_cbranch_execnz {l}\ns_mov_b64 exec, -1\ns_lshl_b32 s{sNeed}, s{sKSp}, 14\ns_add_u32 s{sNeed}, s{sNeed}, s{sT}")
    A(f"buffer_load_dword v{vQ+1}, v{vG2}, {srd(sWS)}, s{sNeed} offen sc1")
    A(f"s_lshl_b32 s{sNeed}, s{sKSp}, 10\ns_add_u32 s{sNeed}, s{sNeed}, s{sT5}\nbuffer_load_dword v{vQ+2}, v{vG2l}, {srd(sWS)}, s{sNeed} offen sc1\ns_mov_b64 exec, 0\n{l}:")
waitLC(OPT["g4"])
if OPT.get("ackw", 0): A("s_waitcnt vmcnt(0)")
stamp("m_g4i")
def g4(): vm(f"buffer_load_dwordx4 {vr(vQ,4)}, v{vG4o}, {srd(sWS)}, s{sM} offen sc1")
g4()
waitLC(OPT["g2"])
stamp("m_g2i")
g2()
signal(1)
A("s_waitcnt vmcnt(8)")
def restore4():
    l = newlab("rs")
    A(f"s_cmp_lg_u32 s{sRes}, 0\ns_cbranch_scc1 {l}\ns_mov_b32 s{sRes}, 1")
    setexec(0x000f000f000f000f)
    vm(f"buffer_store_dwordx4 {vr(vAcc,4)}, v{vPub}, {srd(sWS)}, s{sGi} offen sc1")
    fullexec()
    A(f"{l}:")
def g4retry():
    if OPT["loc4"]:
        l = newlab("nr")
        A(f"s_bfe_u32 s{sNeed}, s{sRetry}, 0x80010\ns_cmp_lt_u32 s{sNeed}, {OPT['rs4']}\ns_cbranch_scc1 {l}")
        restore4(); A(f"{l}:")
    g4()
A("L_g4chk:")
for r in range(4): A(f"v_xor_b32 v{vQ+r}, s{sTgV}, v{vQ+r}")
orred(vS+1, range(vQ, vQ+4))
A(f"v_and_b32 v{vS}, 0x3f8, v{vS+1}")
retry_tail("g4", g4retry, 0x10000, False)
if OPT["loc4"]:
    A(f"v_and_b32 v{vS}, 7, v{vS+1}\nv_cmp_ne_u32 vcc, 0, v{vS}\ns_cbranch_vccz L_alllocal")
    restore4()
    A("L_alllocal:")
stamp("m_g4ok")
vH = vQ
allred([vH, vH+1, vH+2, vH+3], "v_add_f32", ["p16", "p32"], [vH+4, vH+5, vH+6, vH+7])
A(f"v_cvt_pk_bf16_f32 v{vH+4}, v{vH}, v{vH+1}\nv_cvt_pk_bf16_f32 v{vH+5}, v{vH+2}, v{vH+3}")
unpack(vH, vH+1, vH+4); unpack(vH+2, vH+3, vH+5)
pk("add", vH, vH, vU+8); pk("add", vH+2, vH+2, vU+10)
A(f"v_cvt_pk_bf16_f32 v{vH+4}, v{vH}, v{vH+1}\nv_cvt_pk_bf16_f32 v{vH+5}, v{vH+2}, v{vH+3}")
unpack(vH, vH+1, vH+4); unpack(vH+2, vH+3, vH+5)
pk("mul", vH+4, vH, vH); pk("mul", vH+6, vH+2, vH+2)
for r in range(4): A(f"v_mul_f32 v{vH+4+r}, 0xbdd2d3e8, v{vH+4+r}")
for r in range(4): A(f"v_add_f32 v{vH+4+r}, 0xc0135761, v{vH+4+r}")
pk("mul", vH+4, vH+4, vH); pk("mul", vH+6, vH+6, vH+2)
for r in range(4): A(f"v_exp_f32 v{vH+4+r}, v{vH+4+r}")
for r in range(4): A(f"v_add_f32 v{vH+4+r}, 1.0, v{vH+4+r}")
for r in range(4): A(f"v_rcp_f32 v{vH+4+r}, v{vH+4+r}")
pk("mul", vH, vH, vH+4); pk("mul", vH+2, vH+2, vH+6)
A(f"v_cvt_pk_bf16_f32 v{vH}, v{vH}, v{vH+1}\nv_cvt_pk_bf16_f32 v{vH+1}, v{vH+2}, v{vH+3}")
A(f"ds_write_b64 v{aHW}, {vr(vH,2)}")
signal(2)
stamp("m_h")
A("s_waitcnt vmcnt(0)")
stamp("m_g2a")
A("L_g2chk:")
for t in range(4):
    for k in range(4): A(f"v_xor_b32 v{vG+4*t+k}, v{vE+k}, v{vG+4*t+k}")
for t in range(4): A(f"v_xor_b32 v{vZ+2*t+1}, s{sT32}, v{vZ+2*t+1}")
orred(vS, range(vG, vG+16))
A(f"v_or3_b32 v{vS+1}, v{vZ+1}, v{vZ+3}, v{vZ+5}\nv_and_b32 v{vS}, 1, v{vS}\nv_or3_b32 v{vS}, v{vS}, v{vS+1}, v{vZ+7}")
retry_tail("g2", g2, 0x100, False)
stamp("m_g2ok")
ls = lambda t: vZ + 2*t
A(f"v_max3_f32 v{vM}, v{ls(0)}, v{ls(1)}, v{ls(2)}\nv_max_f32 v{vM}, v{vM}, v{ls(3)}")
up = [(vU + 8*t + 2*k, vG + 4*t + k) for t in range(4) for k in range(4)]
def ups(n):
    for _ in range(n):
        d, s_ = up.pop(0); unpack(d, d+1, s_)
ups(1); allred(vM, "v_max_f32", ["r8"], None)
A(f"v_mov_b32 v{vS+2}, v{vM}"); ups(1); A(f"v_permlane16_swap_b32 v{vM}, v{vS+2}\nv_max_f32 v{vM}, v{vM}, v{vS+2}")
A(f"v_mov_b32 v{vS+2}, v{vM}"); ups(1); A(f"v_permlane32_swap_b32 v{vM}, v{vS+2}\nv_max_f32 v{vM}, v{vM}, v{vS+2}")
for t in range(4): A(f"v_sub_f32 v{ls(t)}, v{ls(t)}, v{vM}")
for t in range(4): A(f"v_exp_f32 v{ls(t)}, v{ls(t)}")
ups(13)
A(f"v_add_f32 v{vL}, v{ls(0)}, v{ls(1)}\nv_add_f32 v{vS+2}, v{ls(2)}, v{ls(3)}\nv_add_f32 v{vL}, v{vL}, v{vS+2}")
for h in (0, 2, 4, 6): pk("mul", vU+h, vU+h, ls(0), None, BC)
allred(vL, "v_add_f32", ["r8"], None)
for h in (0, 2, 4, 6): pk("fma", vU+h, vU+8+h, ls(1), vU+h, BC3)
A(f"v_mov_b32 v{vS+2}, v{vL}")
for h in (0, 2, 4, 6): pk("fma", vU+h, vU+16+h, ls(2), vU+h, BC3)
A(f"v_permlane16_swap_b32 v{vL}, v{vS+2}\nv_add_f32 v{vL}, v{vL}, v{vS+2}\nv_mov_b32 v{vS+2}, v{vL}")
for h in (0, 2, 4, 6): pk("fma", vU+h, vU+24+h, ls(3), vU+h, BC3)
A(f"v_permlane32_swap_b32 v{vL}, v{vS+2}\nv_add_f32 v{vL}, v{vL}, v{vS+2}")
for k in range(4): A(f"v_permlane32_swap_b32 v{vU+k}, v{vU+4+k}")
A(f"v_rcp_f32 v{vL}, v{vL}")
pk("add", vU, vU, vU+4); pk("add", vU+2, vU+2, vU+6)
A(f"s_mov_b32 vcc_lo, 0xff00ff00\ns_mov_b32 vcc_hi, vcc_lo")
A(f"v_permlane16_swap_b32 v{vU}, v{vU+2}\nv_permlane16_swap_b32 v{vU+1}, v{vU+3}")
pk("add", vU, vU, vU+2)
A(f"v_cndmask_b32 v{vU+2}, v{vU}, v{vU+1}, vcc\nv_cndmask_b32 v{vU+3}, v{vU+1}, v{vU}, vcc")
A(f"v_add_f32_dpp v{vU+2}, v{vU+3}, v{vU+2} row_ror:8 row_mask:0xf bank_mask:0xf")
A(f"v_mul_f32 v{vU+2}, v{vU+2}, v{vL}\nv_cvt_pk_bf16_f32 v{vU+2}, v{vU+2}, v{vU+2}\nds_write_b16 v{aOLW}, v{vU+2}")
signal(3)
if OPT["dry"]: A("s_cbranch_execz L_mreal")
stamp("m_o")
if DUMP:
    A(f"s_cmp_lg_u32 s{sWave}, 4\ns_cbranch_scc1 L_end"); dump_stamps(lambda n: n.startswith("m_"), 8*31+4)
if "probe" in OPT and STN[0].startswith("m_"): probe_pad()
A("s_endpgm")
nst[0] = mlp_first
sec("attn")
A("L_attn:")
signal(1)
A(f"s_waitcnt lgkmcnt(0)\ns_add_u32 s{sT32}, s{sT32}, 9\ns_and_b32 s{sT6}, s{sT32}, 63")
A("L_attn2:")
A(f"s_lshl_b32 s{sS}, s{sx8}, 5\ns_add_u32 s{sS}, s{sS}, s{si32}\ns_lshl_b32 s{sW8}, s{sWave}, 3\ns_add_u32 s{sW8}, s{sW8}, 8")
A(f"s_bfe_u32 s{sR4}, s{si32}, 0x10004\ns_lshl_b32 s{sT}, s{sR4}, 14")
A(f"v_and_b32 v{t0}, 7, v{r_}\nv_lshlrev_b32 v{t2}, 2, v{j}\nv_xor_b32 v{t1}, v{t0}, v{t2}\nv_lshl_add_u32 v{aW}, v{r_}, 9, v{c4}\nv_lshl_add_u32 v{aW}, v{t1}, 5, v{aW}\nv_add_u32 v{aW}, s{sT}, v{aW}")
for ct in (1, 2, 3): A(f"v_xor_b32 v{aW+ct}, {32*ct}, v{aW}")
A(f"v_lshlrev_b32 v{t2}, 1, v{j}\nv_xor_b32 v{t1}, v{t0}, v{t2}\nv_lshl_add_u32 v{aV}, v{r_}, 8, v{c4}\nv_lshl_add_u32 v{aV}, v{t1}, 5, v{aV}\nv_add_u32 v{aV}, {S2}, v{aV}\nv_xor_b32 v{aV+1}, 32, v{aV}")
A(f"v_xor_b32 v{t1}, v{vG4}, v{vN16}\nv_lshlrev_b32 v{t1}, 4, v{t1}\nv_lshl_add_u32 v{t1}, v{vN16}, 8, v{t1}\nv_lshl_add_u32 v{t1}, v{j}, 13, v{t1}\nv_add_u32 v{aK}, {S1}, v{t1}")
for s_ in (1, 2, 3): A(f"v_xor_b32 v{aK+s_}, {64*s_}, v{aK}")
A(f"v_and_b32 v{t1}, 7, v{vN16}\nv_mul_u32_u24 v{aQ}, 272, v{t1}\nv_lshl_add_u32 v{aQ}, v{vG4}, 4, v{aQ}\nv_add_u32 v{aQ}, {QL}, v{aQ}")
A(f"v_lshlrev_b32 v{vS2l}, 3, v{t1}\nv_add_u32 v{aMLR}, {ML}, v{vS2l}\nv_lshl_add_u32 v{aMLW}, v{j}, 6, v{aMLR}")
A(f"v_lshlrev_b32 v{vS2o}, 6, v{t1}\nv_lshl_add_u32 v{vS2o}, v{j}, 9, v{vS2o}\nv_lshl_add_u32 v{vS2o}, v{vG4}, 4, v{vS2o}")
A(f"v_lshlrev_b32 v{vG1}, 4, v0\nv_add_u32 v{aPXW}, {PX}, v{vG1}\nv_lshlrev_b32 v{aPXR}, 4, v{vLane}\nv_add_u32 v{aPXR}, {PX}, v{aPXR}")
A(f"v_lshrrev_b32 v{t1}, 5, v0\nv_and_b32 v{t2}, 31, v0\nv_mul_u32_u24 v{aQW}, 272, v{t1}\nv_lshl_add_u32 v{aQW}, v{t2}, 3, v{aQW}\nv_add_u32 v{aQW}, {QL}, v{aQW}")
A(f"v_and_b32 v{t1}, 1, v{vLane}\nv_lshlrev_b32 v{aOLR}, 4, v{vG4}\nv_lshl_add_u32 v{aOLR}, v{t1}, 7, v{aOLR}\ns_lshl_b32 s{sT}, s{sR4}, 6\ns_add_u32 s{sT}, s{sT}, {OL}\nv_add_u32 v{aOLR}, s{sT}, v{aOLR}")
A(f"v_lshlrev_b32 v{vP3}, 10, v{t1}\nv_lshl_add_u32 v{vP3}, v{j}, 8, v{vP3}\nv_lshl_add_u32 v{vP3}, v{vG4}, 4, v{vP3}\nv_bfe_u32 v{t2}, v{vLane}, 1, 2\nv_lshl_add_u32 v{vP3}, v{t2}, 6, v{vP3}")
for i, mk in enumerate((0x0c0c0c0c, 0x30303030, 0xc0c0c0c0)):
    A(f"s_mov_b32 s{sMk+2*i}, {mk:#x}\ns_mov_b32 s{sMk+2*i+1}, s{sMk+2*i}")
A(f"v_and_b32 v{t0}, 1, v{vLane}\nv_lshl_add_u32 v{t0}, v{t0}, 2, v{vG4}\nv_xor_b32 v{t0}, s{sT32}, v{t0}")
for k in range(4): A(f"v_bfe_u32 v{vE+k}, v{t0}, {k}, 1")
if OPT["pr1"]:
    A(f"s_cmp_lg_u32 s{sWave}, 0\ns_cbranch_scc1 L_nopr\ns_lshl_b32 s{sT}, s{sS}, 9\ns_add_u32 s{sT}, s{sT}, {P1:#x}\nv_lshlrev_b32 v{t0}, 6, v{vLane}\ns_mov_b64 exec, 0xff")
    A(f"buffer_load_dword v{vU+3}, v{t0}, {srd(sWS)}, s{sT} offen sc1\ns_mov_b64 exec, -1\nL_nopr:")
if OPT["dry"]:
    A(f"s_cmp_ge_u32 s{sWave}, 2\ns_cbranch_scc1 L_partA")
    dry_on()
    A(f"s_cmp_eq_u32 s{sWave}, 1\ns_cbranch_scc1 L_partB\ns_branch L_partA\nL_areal:")
    dry_off()
A("L_partA:")
A(f"s_lshl_b32 s{sT}, s{sx8}, 14\ns_add_u32 s{sT}, s{sT}, {P1:#x}\ns_add_u32 s{sT2}, s{sT}, 4096\ns_add_u32 s{sT3}, s{sT}, 8192\ns_add_u32 s{sT4}, s{sT}, 12288")
def g1(): vm("\n".join(f"buffer_load_dwordx4 {vr(vG+4*k,4)}, v{vG1}, {srd(sWS)}, s{so} offen sc1" for k, so in enumerate((sT, sT2, sT3, sT4))))
def kfrags():
    waitLC(pK, sW8)
    for T in range(2):
        for s_ in range(4): A(f"ds_read_b128 {vr(vKF+16*T+4*s_,4)}, v{aK+s_} offset:{4096*T}")
if OPT["g1"] >= pV: kfrags()
waitLC(OPT["g1"])
stamp("g1i")
g1()
if OPT["g1"] < pV:
    kfrags()
signal(3)
A(f"v_mov_b32 v{vS+4}, 0x3db504f3\nv_mov_b32 v{vS+6}, 0x3fb8aa3b")
A("s_waitcnt vmcnt(0)")
stamp("g1a")
chk6(vG, 16, "g1", g1, 1)
stamp("g1ok")
pk("add", vG, vG, vG+4); pk("add", vG+8, vG+8, vG+12); pk("add", vG+2, vG+2, vG+6); pk("add", vG+10, vG+10, vG+14)
pk("add", vG, vG, vG+8); pk("add", vG+2, vG+2, vG+10)
A(f"v_cvt_pk_bf16_f32 v{vG}, v{vG}, v{vG+1}\nv_cvt_pk_bf16_f32 v{vG+1}, v{vG+2}, v{vG+3}\nds_write_b64 v{aQW}, {vr(vG,2)}")
LB(4)
stamp("lb3")
for s_ in range(4): A(f"ds_read_b128 {vr(vQ+4*s_,4)}, v{aQ} offset:{64*s_}")
for s_ in range(4):
    A(f"s_waitcnt lgkmcnt({3-s_})")
    for T in range(2):
        c = "0" if s_ == 0 else vr(vU+4*T, 4)
        A(f"v_mfma_f32_16x16x32_bf16 {vr(vU+4*T,4)}, {vr(vKF+16*T+4*s_,4)}, {vr(vQ+4*s_,4)}, {c}")
vM, vL = vS, vS+1
for p in range(4): A(f"v_cvt_pk_bf16_f32 v{vU+8+p}, v{vU+2*p}, v{vU+2*p+1}")
for p in range(4): unpack(vU+2*p, vU+2*p+1, vU+8+p)
for p in range(4): pk("mul", vU+2*p, vU+2*p, vS+4, None, BC)
for p in range(4): A(f"v_cvt_pk_bf16_f32 v{vU+8+p}, v{vU+2*p}, v{vU+2*p+1}")
for p in range(4): unpack(vU+2*p, vU+2*p+1, vU+8+p)
A(f"v_max3_f32 v{vM}, v{vU}, v{vU+1}, v{vU+2}\nv_max3_f32 v{vS+2}, v{vU+3}, v{vU+4}, v{vU+5}\nv_max3_f32 v{vM}, v{vM}, v{vU+6}, v{vU+7}\nv_max_f32 v{vM}, v{vM}, v{vS+2}")
allred(vM, "v_max_f32", ["p16", "p32"], vS+2)
A(f"v_mul_f32 v{vM}, v{vM}, v{vS+6}")
for p in range(4): pk("fma", vU+2*p, vU+2*p, vS+6, vM, "op_sel_hi:[1,0,0] neg_lo:[0,0,1] neg_hi:[0,0,1]")
for r in range(8): A(f"v_exp_f32 v{vU+r}, v{vU+r}")
for p in range(4): A(f"v_cvt_pk_bf16_f32 v{vU+8+p}, v{vU+2*p}, v{vU+2*p+1}")
A(f"ds_write_b128 v{aPXW}, {vr(vU+8,4)}")
pk("add", vU, vU, vU+2); pk("add", vU+4, vU+4, vU+6); pk("add", vU, vU, vU+4)
A(f"v_add_f32 v{vL}, v{vU}, v{vU+1}")
allred(vL, "v_add_f32", ["p16", "p32"], vS+2)
A(f"ds_write_b64 v{aMLW}, {vr(vM,2)}")
signal(5)
stamp("sm")
waitLC(pW1)
for w in range(4):
    for d in range(2):
        f = vF + 8*w + 4*d
        A(f"ds_read_b64_tr_b16 {vr(f,2)}, v{aV+d} offset:{8192*w}\nds_read_b64_tr_b16 {vr(f+2,2)}, v{aV+d} offset:{8192*w + 4096}")
A(f"s_lshl_b32 s{sT}, s{sS}, 11\ns_add_u32 s{sT}, s{sT}, {P2:#x}\ns_lshl_b32 s{sT2}, s{sS}, 7\ns_add_u32 s{sT2}, s{sT2}, {P2L:#x}\ns_mov_b32 s{sT3}, 0xfffe0000\ns_mov_b32 s{sT4}, 0x10000")
waitPW(5)
stamp("lb4")
for w in range(4): A(f"ds_read_b128 {vr(vQ+4*w,4)}, v{aPXR} offset:{1024*w}")
for w in range(4): A(f"ds_read_b64 {vr(vU+16+2*w,2)}, v{aMLR} offset:{64*w}")
for w in range(4):
    A(f"s_waitcnt lgkmcnt({7-w})")
    for d in range(2): A(f"v_mfma_f32_16x16x32_bf16 {vr(vAcc+8*w+4*d,4)}, {vr(vF+8*w+4*d,4)}, {vr(vQ+4*w,4)}, 0")
A("s_waitcnt lgkmcnt(0)")
m = lambda w: vU + 16 + 2*w
A(f"v_max3_f32 v{vM}, v{m(0)}, v{m(1)}, v{m(2)}\nv_max_f32 v{vM}, v{vM}, v{m(3)}")
for w in range(4): A(f"v_sub_f32 v{m(w)}, v{m(w)}, v{vM}")
for w in range(4): A(f"v_exp_f32 v{m(w)}, v{m(w)}")
A(f"v_mul_f32 v{vL}, v{m(0)}, v{m(0)+1}")
for w in range(1, 4): A(f"v_fmac_f32 v{vL}, v{m(w)}, v{m(w)+1}")
A(f"v_rcp_f32 v{vS+2}, v{vL}\nv_log_f32 v{vS+3}, v{vL}")
for w in range(4): A(f"v_mul_f32 v{m(w)}, v{m(w)}, v{vS+2}")
for h in (0, 2, 4, 6): pk("mul", vAcc+h, vAcc+h, m(0), None, BC)
for w in range(1, 4):
    for h in (0, 2, 4, 6): pk("fma", vAcc+h, vAcc+8*w+h, m(w), vAcc+h, BC3)
for k in range(4): A(f"v_add_u32 v{vAcc+2*k}, s{sT4}, v{vAcc+2*k}")
for k in range(4): A(f"v_and_b32 v{vAcc+2*k}, s{sT3}, v{vAcc+2*k}")
for k in range(4): A(f"v_cvt_pk_bf16_f32 v{vU+k}, v{vAcc+2*k}, v{vAcc+2*k+1}")
for k in range(4): A(f"v_or_b32 v{vU+k}, v{vE+k}, v{vU+k}")
A(f"v_add_f32 v{vU+4}, v{vM}, v{vS+3}\nv_mov_b32 v{vU+5}, s{sT32}")
setexec(0x00ff00ff00ff00ff)
vm(f"buffer_store_dwordx4 {vr(vU,4)}, v{vS2o}, {srd(sWS)}, s{sT} offen sc1")
A(f"s_cmp_lg_u32 s{sWave}, 0\ns_cbranch_scc1 L_nolse")
setexec(0xff)
vm(f"buffer_store_dwordx2 {vr(vU+4,2)}, v{vS2l}, {srd(sWS)}, s{sT2} offen sc1")
A("L_nolse:")
fullexec()
if OPT["dry"]: A("s_cbranch_execz L_areal")
stamp("S2")
A("L_partB:")
def frag_reads(fb, base, k):
    for ct in range(4):
        f = fb + 16*k + 4*ct
        A(f"ds_read_b64_tr_b16 {vr(f,2)}, v{aW+ct} offset:{base}\nds_read_b64_tr_b16 {vr(f+2,2)}, v{aW+ct} offset:{base + 8192}")
def flipW():
    for ct in range(4): A(f"v_xor_b32 v{aW+ct}, 0x4000, v{aW+ct}")
def mfmas(fb, xb, first, wait=None):
    for ct in range(4):
        if wait is not None: A(f"s_waitcnt lgkmcnt({wait + 6 - 2*ct})")
        c = "0" if first else vr(vAcc+4*ct, 4)
        A(f"v_mfma_f32_16x16x32_bf16 {vr(vAcc+4*ct,4)}, {vr(fb+4*ct,4)}, {vr(xb,4)}, {c}")
waitLC(pW2)
frag_reads(vF, S0, 0); flipW(); frag_reads(vF, S0, 1); flipW()
A(f"s_and_b32 s{sT}, s{sS}, 3\ns_lshl_b32 s{sT}, s{sT}, 17\ns_lshr_b32 s{sT2}, s{sS}, 2\ns_lshl_b32 s{sT2}, s{sT2}, 11\ns_add_u32 s{sT}, s{sT}, s{sT2}\ns_add_u32 s{sT}, s{sT}, {P3:#x}")
A(f"s_movk_i32 s{sC63}, 0xfff\ns_and_b32 s{sT2}, s{sT32}, s{sC63}\nv_mov_b32 v{vS}, s{sT2}\nv_xor_b32 v{vS+1}, 64, v{aOLR}")
waitLC(pW2 + 16)
frag_reads(vXB, S1, 0); flipW()
waitMW(2)
A(f"ds_read_b128 {vr(vQ+8,4)}, v{aOLR} offset:256\nds_read_b128 {vr(vQ+12,4)}, v{vS+1} offset:256")
stamp("h")
A("s_waitcnt lgkmcnt(1)"); mfmas(vXB, vQ+8, True)
def opart():
    A(f"ds_read_b128 {vr(vQ,4)}, v{aOLR}\nds_read_b128 {vr(vQ+4,4)}, v{vS+1}")
    A("s_waitcnt lgkmcnt(1)"); mfmas(vF, vQ, False)
    A("s_waitcnt lgkmcnt(0)"); mfmas(vF+16, vQ+4, False)
def wpart():
    frag_reads(vXB, S1, 1)
    mfmas(vXB+16, vQ+12, False, 0)
A(f"s_movk_i32 s{sNeed}, {pEND}\nL_race:\nds_read_b128 {vr(vFl,4)}, v{aFL} offset:16\ns_waitcnt lgkmcnt(0)")
A(f"v_cmp_gt_i32 vcc, s{sNeed}, v{vFl+2}\ns_cbranch_vccz L_wfirst\nv_min_i32 v{vFl}, v{vFl}, v{vFl+1}\nv_cmp_gt_i32 vcc, 3, v{vFl}\ns_cbranch_vccnz L_race")
A("L_ofirst:")
opart(); waitLC(pEND); wpart()
A("s_branch L_accdone\nL_wfirst:")
wpart(); waitMW(3); opart()
if OPT["dry"]: A("s_cbranch_execz L_ofirst")
A("L_accdone:")
stamp("fin")
for ct in range(1, 4):
    for r in range(4): A(f"v_cndmask_b32 v{vAcc+r}, v{vAcc+r}, v{vAcc+4*ct+r}, s[{sMk+2*ct-2}:{sMk+2*ct-1}]")
for r in range(4): A(f"v_bfi_b32 v{vAcc+r}, s{sC63}, v{vS}, v{vAcc+r}")
setexec(0x00ff00ff00ff00ff)
if OPT["dry"]: A("s_cbranch_execz L_areal")
A(f"buffer_store_dwordx4 {vr(vAcc,4)}, v{vP3}, {srd(sWS)}, s{sT} offen sc1")
A("L_ablend:")
if "probe" in OPT:
    stamp("end")
    if STN[0][:2] not in ("l_", "m_"):
        A(f"s_cmp_lg_u32 s{sWave}, {OPT['swave']}\ns_cbranch_scc1 L_end"); probe_pad()
elif DUMP:
    stamp("end")
    l3 = ("x", "ln1", "S1", "c_set")
    A(f"s_cmp_lg_u32 s{sWave}, 3\ns_cbranch_scc1 L_d0")
    dump_stamps(lambda n: n in l3, None)
    A(f"s_endpgm\nL_d0:\ns_cmp_lg_u32 s{sWave}, {OPT['swave']}\ns_cbranch_scc1 L_end")
    dump_stamps(lambda n: n not in l3 and n[:2] not in ("l_", "m_"), 8*31)
A("s_endpgm")
A(f"L_bail:\ns_mov_b64 exec, -1\nv_mov_b32 v{vFl}, 0x7fffffff\nds_write_b32 v{aPW}, v{vFl}\ns_waitcnt lgkmcnt(0)\ns_endpgm")
sec("proj")
A("L_proj:")
A(f"ds_write_b128 v{aXW}, {vr(vP,4)}")
for k in range(8): A(f"ds_read2_b64 {vr(vXB+4*k,4)}, v{aXB} offset0:{8*k} offset1:{8*k+4}")
A(f"v_mov_b32 v{vS}, s{sTgV}")
def pj_batch(ks):
    waitLC(4*(ks[-1]+1), sPB)
    for i, k in enumerate(ks):
        for c in range(2):
            f = vF + 8*i + 4*c
            A(f"ds_read_b64_tr_b16 {vr(f,2)}, v{aPj+c} offset:{4096*k}\nds_read_b64_tr_b16 {vr(f+2,2)}, v{aPj+c} offset:{4096*k + 2048}")
    if ks[-1] == 7: A(f"ds_write_b32 v{aPW}, v{vSig}")
    n = 4*len(ks) + (1 if ks[-1] == 7 else 0)
    for i, k in enumerate(ks):
        for c in range(2):
            n -= 2
            cc = "0" if k == 0 else vr(vAcc+4*c, 4)
            A(f"s_waitcnt lgkmcnt({n})\nv_mfma_f32_16x16x32_bf16 {vr(vAcc+4*c,4)}, {vr(vF+8*i+4*c,4)}, {vr(vXB+4*k,4)}, {cc}")
pj_batch([0, 1, 2, 3]); pj_batch([4, 5, 6]); pj_batch([7])
for r in range(4): A(f"v_cndmask_b32 v{vAcc+r}, v{vAcc+r}, v{vAcc+4+r}, s[{sMk}:{sMk+1}]")
for r in range(4): A(f"v_add_u32 v{vAcc+r}, s{sTgR}, v{vAcc+r}")
for r in range(4): A(f"v_bfi_b32 v{vAcc+r}, s{sTgM}, v{vS}, v{vAcc+r}")
setexec(0x000f000f000f000f)
if OPT["loc4"]:
    A(f"s_cbranch_execz L_pjdone\ns_cmp_lt_u32 s{sWave}, 4\ns_cbranch_scc0 L_pjloc")
    A(f"buffer_store_dwordx4 {vr(vAcc,4)}, v{vPub}, {srd(sWS)}, s{sT3} offen sc1\ns_branch L_pjdone")
    A(f"L_pjloc:\nbuffer_store_dwordx4 {vr(vAcc,4)}, v{vPub}, {srd(sWS)}, s{sT3} offen\nL_pjdone:")
else: vm(f"buffer_store_dwordx4 {vr(vAcc,4)}, v{vPub}, {srd(sWS)}, s{sT3} offen sc1")
fullexec()
A(f"s_setpc_b64 s[{sRA}:{sRA+1}]")
sec("ln")
A("L_ln:")
for i in range(16): unpack(vU+2*i, vU+2*i+1, vP+i)
a0, a1, mean = vS, vS+2, vS+6
pk("add", a0, vU, vU+2); pk("add", a1, vU+4, vU+6)
for i in range(4, 16, 2): pk("add", a0, a0, vU+2*i); pk("add", a1, a1, vU+2*i+2)
pk("add", a0, a0, a1); A(f"v_add_f32 v{a0}, v{a0}, v{a0+1}")
allred(a0, "v_add_f32", ["q1", "q2", "hm", "m", "p16"], a1)
A(f"v_mul_f32 v{mean}, 0x3a800000, v{a0}")
for i in range(16):
    acc = a0 if i % 2 == 0 else a1
    dd = vF + 2*(i % 4)
    pk("add", dd, vU+2*i, mean, None, NEG)
    if i < 2: pk("mul", acc, dd, dd)
    else: pk("fma", acc, dd, dd, acc)
pk("add", a0, a0, a1); A(f"v_add_f32 v{a0}, v{a0}, v{a0+1}")
allred(a0, "v_add_f32", ["q1", "q2", "hm", "m", "p16"], a1)
A(f"v_mul_f32 v{a0}, 0x3a800000, v{a0}\nv_cvt_pk_bf16_f32 v{a0}, v{a0}, v{mean}")
A(f"v_and_b32 v{mean}, s{sHI}, v{a0}\nv_lshlrev_b32 v{a0}, 16, v{a0}\nv_add_f32 v{a0}, 0x3727c5ac, v{a0}")
A(f"v_cvt_pk_bf16_f32 v{a0}, v{a0}, v{a0}\nv_lshlrev_b32 v{a0}, 16, v{a0}\nv_sqrt_f32 v{a0}, v{a0}")
A(f"v_cvt_pk_bf16_f32 v{a0}, v{a0}, v{a0}\nv_lshlrev_b32 v{a0}, 16, v{a0}\nv_rcp_f32 v{a0}, v{a0}")
norm(0)
A(f"s_setpc_b64 s[{sRA}:{sRA+1}]")

order = {0: "top common ln proj ld2 attn mlp", 1: "top common ld2 ln proj attn mlp"}[OPT["lay"]].split()
ALL = [x for n in order for x in SEC[n]] + ["L_codeend:"]
body, nadd = hz.pad("\n".join(ALL))
if STN: body += "\n; STAMPS start," + ",".join(STN) + ",end"
hdr = open(os.path.join(os.path.dirname(__file__), "header.txt")).read()
out = f"""{hdr}; @launch grid=(256,1,1) block=(448,1,1) lds={LDS_END}
.amdgcn_target "amdgcn-amd-amdhsa--gfx950"
.text
.globl {NAME}_kernel
.p2align 8
.type {NAME}_kernel,@function
{NAME}_kernel:
{body}
.section .rodata,"a"
.p2align 6
.amdhsa_kernel {NAME}_kernel
  .amdhsa_next_free_vgpr {NV}
  .amdhsa_next_free_sgpr 102
  .amdhsa_accum_offset {NV}
  .amdhsa_group_segment_fixed_size 0
  .amdhsa_kernarg_size 104
  .amdhsa_user_sgpr_count 2
  .amdhsa_user_sgpr_kernarg_segment_ptr 1
  .amdhsa_system_sgpr_workgroup_id_x 1
  .amdhsa_float_denorm_mode_32 3
.end_amdhsa_kernel
"""
open(sys.argv[1], "w").write(out)
print("NV", NV, "LDS", LDS_END, "nops added", nadd, file=sys.stderr)
```

```python
import sys, os
sys.path.insert(0, os.path.dirname(__file__))
import hz
NAME = "parallel_sum__sliding_block_cached__mixer_channel_mlp__decode"
OPT = dict(stamps=0, nt=1, spin=1 << 16, swave=0, Wk=20, Wv=20, Wkb=0, W1=20, Wo=20, W2=24, W2x=0,
           g1=80, g2=172, g4=108, cpf=1, dry=1, qmap=3, lay=0, loc4=1, pr4=1, rs4=2, pr1=0, pr2=0)
STN = None
for a in sys.argv[2:]:
    k, v = a.split("=")
    if k == "st": STN = v.split(","); OPT["stamps"] = 1
    elif k == "W":
        for kk in ("Wk", "Wv", "W1", "Wo", "W2"): OPT[kk] = int(v)
    else: OPT[k] = int(v)
NT = " nt" if OPT["nt"] else ""
SEC = {}; L = []
def sec(name):
    global L
    L = SEC.setdefault(name, [])
def A(s):
    for x in s.split("\n"): L.append("    " + x.strip() if not x.strip().endswith(":") else x.strip())
class Alloc:
    def __init__(s, start): s.n = start
    def __call__(s, cnt=1, al=1):
        s.n = (s.n + al - 1) // al * al
        r = s.n; s.n += cnt; return r
VA = Alloc(1)
def vr(r, n): return f"v[{r}:{r+n-1}]"
def srd(r): return f"s[{r}:{r+3}]"
sLive = 6
sX, sWQ, sK, sV, sW1, sWO, sW2 = range(8, 36, 4)
sB1, sWS = sWQ, sW1
(sx8, si32, sS, sCG2, sWave, sT, sT2, sT3, sT4, sT5, sT32, sT6, sHI, sSpin, sC63, sRetry, sW8, sGi, sNeed, sPB, sCnt, sM, sG, sR4) = range(36, 60)
sPub = sW8
sRA = 60; sMk = 62; sTgM, sTgR, sTgV, sRes = 32, 33, 34, 35
STB = 68
P1, P4, P2L, P2, P3, WSSZ = 0x10000, 0x40000, 0x60000, 0x100000, 0x200000, 0x400000
S0, S1, S2, S3, M = 0, 32768, 65536, 98304, 131072
XR, PX, XN, YN, QL = M, M + 4096, M + 8192, M + 9216, M + 10240
ML = QL + 2304; OL = ML + 256; HL = OL + 256; FLG = HL + 256
LDS_END = FLG + 256
LCO = 24
pX, pWQ, pW1, pK, pV, pWO, pW2, pEND = 0, 4, 36, 68, 100, 132, 164, 196
if OPT.get("bal"): pEND = 188
vLane, vG4, vN16, vJ, vTmp2, vTmp3 = [VA() for _ in range(6)]
aFL = VA(); aPW = VA()
aW = VA(4); aK = VA(4); aV = VA(2); aQ = VA(); aXB = VA(); aXW = VA(); aPj = VA(2)
vPub = VA(); vG1 = VA(); aQW = VA(); aPXW = VA(); aPXR = VA(); aMLW = VA(); aMLR = VA(); vS2o = VA(); vS2l = VA()
vG2 = VA(); vG2l = VA(); vP3 = VA(); aOLW = VA(); aOLR = VA(); vSig = VA(); vE = VA(4)
vP = VA(16, 4); vU = VA(32, 4); vS = VA(8, 4); vXB = VA(32, 4); vF = VA(32, 4); vAcc = VA(32, 4)
vQ = VA(16, 4); vG = VA(16, 4); vSm = VA(8, 2); vFl = VA(4, 2)
vKF = vXB
NV = (VA.n + 7) // 8 * 8
assert NV <= 256, NV
t0, t1, t2 = vS, vS+1, vS+2
nst = [0]; slots = {}
def stamp(name):
    if OPT["stamps"] and (name in STN or name in ("start", "end")):
        i = nst[0]; nst[0] += 1
        slots[name] = (i, 0 if name == "start" else (len(STN) + 1 if name == "end" else STN.index(name) + 1))
        assert STB + 2*i + 1 <= 101
        A(f"s_memrealtime s[{STB+2*i}:{STB+2*i+1}]")
lab = [0]
def newlab(p):
    lab[0] += 1; return f"L_{p}{lab[0]}"
DPP = dict(q1="quad_perm:[1,0,3,2]", q2="quad_perm:[2,3,0,1]", hm="row_half_mirror", m="row_mirror",
           r2="row_ror:2", r4="row_ror:4", r8="row_ror:8")
def allred(reg, op, steps, tmp):
    regs_ = reg if isinstance(reg, list) else [reg]
    tmps = tmp if isinstance(tmp, list) else [tmp]
    for st in steps:
        if st in DPP:
            for r in regs_: A(f"{op}_dpp v{r}, v{r}, v{r} {DPP[st]} row_mask:0xf bank_mask:0xf")
        else:
            ins = "v_permlane16_swap_b32" if st == "p16" else "v_permlane32_swap_b32"
            for r, t in zip(regs_, tmps): A(f"v_mov_b32 v{t}, v{r}")
            for r, t in zip(regs_, tmps): A(f"{ins} v{r}, v{t}")
            for r, t in zip(regs_, tmps): A(f"{op} v{r}, v{r}, v{t}")
def unpack(dlo, dhi, src): A(f"v_lshlrev_b32 v{dlo}, 16, v{src}\nv_and_b32 v{dhi}, s{sHI}, v{src}")
def pk(op, d, a, b, c=None, mods=""):
    A(f"v_pk_{op}_f32 {vr(d,2)}, {vr(a,2)}, {vr(b,2)}" + (f", {vr(c,2)}" if c is not None else "") + (" " + mods if mods else ""))
BC = "op_sel_hi:[1,0]"; BC3 = "op_sel_hi:[1,0,1]"; NEG = "op_sel_hi:[1,0] neg_lo:[0,1] neg_hi:[0,1]"
def setexec(m):
    lo, hi = m & 0xffffffff, (m >> 32) & 0xffffffff
    if lo == hi: A(f"s_and_b32 exec_lo, s{sLive}, {lo:#x}\ns_mov_b32 exec_hi, exec_lo")
    else: A(f"s_and_b32 exec_lo, s{sLive}, {lo:#x}\ns_and_b32 exec_hi, s{sLive}, {hi:#x}")
def fullexec(): A(f"s_mov_b64 exec, s[{sLive}:{sLive+1}]")
ABL = OPT.get("abl", 0)
def vm(s_):
    if ABL in (2, 3, 4) and "load" in s_: return
    if ABL == 7 and ("v{}".format(vG2) + "," in s_ or "v{}".format(vS2o) + "," in s_ or "v{}".format(vS2l) + "," in s_): return
    if ABL == 8 and "v{}".format(vG2) + "," in s_: return
    if ABL == 3 and "store" in s_: return
    if ABL == 4: s_ = s_.replace(" sc1", "")
    l = newlab("vm"); A(f"s_cbranch_execz {l}"); A(s_); A(f"{l}:")
def dry_on(): A(f"s_mov_b64 s[{sLive}:{sLive+1}], 0\ns_mov_b64 exec, 0")
def dry_off(): A(f"s_mov_b64 s[{sLive}:{sLive+1}], -1\ns_mov_b64 exec, -1")
def waitLC(base, sreg=None):
    l = newlab("lc")
    if sreg is None: A(f"s_movk_i32 s{sNeed}, {base}")
    else: A(f"s_add_u32 s{sNeed}, s{sreg}, {base}")
    A(f"{l}:\nds_read_b32 v{vFl}, v{aFL} offset:{LCO}\ns_waitcnt lgkmcnt(0)\nv_cmp_gt_i32 vcc, s{sNeed}, v{vFl}\ns_cbranch_vccnz {l}")
def signal(stage): A(f"v_mov_b32 v{vFl}, {stage}\nds_write_b32 v{aPW}, v{vFl}")
def pwtest(stage): A(f"v_min3_i32 v{vFl}, v{vFl}, v{vFl+1}, v{vFl+2}\nv_min_i32 v{vFl}, v{vFl}, v{vFl+3}\nv_cmp_gt_i32 vcc, {stage}, v{vFl}")
def waitPW(stage):
    l = newlab("pw")
    A(f"{l}:\nds_read_b128 {vr(vFl,4)}, v{aFL}\ns_waitcnt lgkmcnt(0)"); pwtest(stage); A(f"s_cbranch_vccnz {l}")
def waitMW(stage):
    l = newlab("mw")
    A(f"{l}:\nds_read_b64 {vr(vFl,2)}, v{aFL} offset:16\ns_waitcnt lgkmcnt(0)\nv_min_i32 v{vFl}, v{vFl}, v{vFl+1}\nv_cmp_gt_i32 vcc, {stage}, v{vFl}\ns_cbranch_vccnz {l}")
def LB(stage): signal(stage); waitPW(stage)
def orred(dst, regs_):
    regs_ = list(regs_)
    A(f"v_or3_b32 v{dst}, v{regs_[0]}, v{regs_[1]}, v{regs_[2]}"); r = 3
    while r + 1 < len(regs_):
        A(f"v_or3_b32 v{dst}, v{dst}, v{regs_[r]}, v{regs_[r+1]}"); r += 2
    if r < len(regs_): A(f"v_or_b32 v{dst}, v{dst}, v{regs_[r]}")
def retry_tail(name, reissue, inc, masked):
    A(f"v_cmp_ne_u32 vcc, 0, v{vS}\n" + ("s_branch" if ABL else "s_cbranch_vccz") + f" L_{name}ok")
    A(f"s_add_u32 s{sRetry}, s{sRetry}, {inc}\ns_sub_u32 s{sSpin}, s{sSpin}, 1\ns_cbranch_scc1 L_bail")
    if masked: A("s_mov_b64 exec, vcc")
    reissue()
    A(f"s_waitcnt vmcnt(0)\ns_branch L_{name}chk\nL_{name}ok:")
    if masked: fullexec()
def chk6(base, n, name, reissue, inc):
    A(f"L_{name}chk:")
    for r in range(n): A(f"v_xor_b32 v{base+r}, s{sT6}, v{base+r}")
    orred(vS, range(base, base + n))
    A(f"v_and_b32 v{vS}, 63, v{vS}")
    retry_tail(name, reissue, inc, False)
DUMP = OPT["stamps"] and "probe" not in OPT
def dump_stamps(pred, retry_slot):
    A("s_mov_b64 exec, 1\ns_load_dwordx2 s[4:5], s[0:1], 96")
    A(f"s_waitcnt lgkmcnt(0)\ns_lshl_b32 s{sT}, s2, 8\ns_add_u32 s4, s4, s{sT}\ns_addc_u32 s5, s5, 0\ns_add_u32 s4, s4, 0x8000000\ns_addc_u32 s5, s5, 0\nv_mov_b32 v{vS+2}, 0")
    for nm, (i, sl) in slots.items():
        if pred(nm):
            A(f"v_mov_b32 v{vS}, s{STB+2*i}\nv_mov_b32 v{vS+1}, s{STB+2*i+1}\nglobal_store_dwordx2 v{vS+2}, {vr(vS,2)}, s[4:5] offset:{8*sl}\ns_nop 1")
    if retry_slot is not None:
        A(f"v_mov_b32 v{vS}, s{sRetry}\nglobal_store_dword v{vS+2}, v{vS}, s[4:5] offset:{retry_slot}")
def probe_pad():
    k = slots[STN[0]][0]; l = newlab("pad")
    A(f"s_waitcnt lgkmcnt(0)\ns_sub_u32 s{sT}, s{STB+2*k}, s{STB}\ns_lshl_b32 s{sT}, s{sT}, 2\ns_add_u32 s{sT}, s{sT}, 2000")
    A(f"{l}:\ns_memrealtime s[4:5]\ns_waitcnt lgkmcnt(0)\ns_sub_u32 s4, s4, s{STB}\ns_cmp_lt_u32 s4, s{sT}\ns_cbranch_scc1 {l}")
def qidx(cg, ks, tmp):
    if OPT["qmap"] == 3:
        A(f"s_cmp_ge_u32 s{si32}, 14\ns_cselect_b32 s{ks}, 1, 0\ns_cselect_b32 s{tmp}, 14, 0\ns_sub_u32 s{cg}, s{si32}, s{tmp}")
        A(f"s_cmp_ge_u32 s{cg}, 10\ns_addc_u32 s{tmp}, s{cg}, 0\ns_cmp_ge_u32 s{cg}, 3\ns_addc_u32 s{cg}, s{tmp}, 0")
        A(f"s_and_b32 s{tmp}, s{si32}, 1\ns_lshl_b32 s{tmp}, s{tmp}, 3\ns_add_u32 s{tmp}, s{tmp}, 3\ns_bfe_u32 s{sCG2}, s{si32}, 0x10001")
        A(f"s_cmp_ge_u32 s{si32}, 28\ns_cselect_b32 s{cg}, s{tmp}, s{cg}\ns_cselect_b32 s{ks}, s{sCG2}, s{ks}")
    else:
        A(f"s_and_b32 s{cg}, s{si32}, 15\ns_lshr_b32 s{ks}, s{si32}, 4")
    A(f"s_lshr_b32 s{tmp}, s{sx8}, 1\ns_lshl_b32 s{tmp}, s{tmp}, 4\ns_add_u32 s{cg}, s{cg}, s{tmp}\ns_and_b32 s{tmp}, s{sx8}, 1\ns_lshl_b32 s{tmp}, s{tmp}, 1\ns_add_u32 s{ks}, s{ks}, s{tmp}")
def midx(cg, ks, tmp):
    A(f"s_mul_i32 s{cg}, s{sx8}, 7\ns_lshr_b32 s{tmp}, s{si32}, 2\ns_add_u32 s{cg}, s{cg}, s{tmp}\ns_add_u32 s{tmp}, s{sx8}, 56\ns_cmp_lt_u32 s{si32}, 28\ns_cselect_b32 s{cg}, s{cg}, s{tmp}\ns_and_b32 s{ks}, s{si32}, 3")

sec("top")
stamp("start")
A(f"s_load_dwordx2 s[{sX}:{sX+1}], s[0:1], 0\ns_load_dwordx2 s[{sWQ}:{sWQ+1}], s[0:1], 24\ns_load_dwordx2 s[{sMk}:{sMk+1}], s[0:1], 96")
A("s_cmp_ge_u32 s2, 256\ns_cbranch_scc1 L_end")
A(f"v_readfirstlane_b32 s{sWave}, v0\nv_and_b32 v{vLane}, 63, v0\nv_subrev_u32 v0, 64, v0")
if OPT["cpf"]:
    A(f"s_getpc_b64 s[4:5]\nL_pc:\nv_lshlrev_b32 v{vU}, 7, v0\nv_cmp_gt_u32 vcc, (L_codeend-L_pc)/128, v0\ns_and_saveexec_b64 s[{sLive}:{sLive+1}], vcc\ns_cbranch_execz L_nocpf")
    A(f"global_load_dword v{vU+1}, v{vU}, s[4:5]\nL_nocpf:")
dry_off()
A(f"s_and_b32 s{sx8}, s2, 7\ns_lshr_b32 s{si32}, s2, 3")
A(f"s_cmp_lg_u32 s{sWave}, 0\ns_cbranch_scc1 L_notloader")
lX, lT8, lT7, lK, lV, lC = vP, vP+1, vP+2, vP+4, vP+8, vP+10
A(f"s_movk_i32 s{sX+2}, 4096\ns_mov_b32 s{sX+3}, 0x20000\nv_lshlrev_b32 v{lX}, 4, v{vLane}")
A(f"v_lshrrev_b32 v{vTmp2}, 3, v{vLane}\nv_and_b32 v{vS}, 6, v{vTmp2}\nv_and_b32 v{vTmp3}, 7, v{vLane}\nv_xor_b32 v{vTmp3}, v{vTmp3}, v{vS}\nv_lshlrev_b32 v{vTmp3}, 4, v{vTmp3}")
A(f"v_lshl_add_u32 v{lT8}, v{vTmp2}, 13, v{vTmp3}")
A(f"s_mov_b32 s{sWQ+2}, {1<<23:#x}\ns_mov_b32 s{sWQ+3}, s{sX+3}")
qidx(sG, sT3, sT)
A(f"s_lshl_b32 s{sG}, s{sG}, 7\ns_lshl_b32 s{sT}, s{sT3}, 16\ns_add_u32 s{sG}, s{sG}, s{sT}")
A(f"s_mov_b32 m0, {XR}\ns_waitcnt lgkmcnt(0)")
stamp("l_karg")
for q in range(4): A(f"buffer_load_dwordx4 v{lX}, {srd(sX)}, 0 offen offset:{1024*q} lds")
curW = [36]
sThr = 3
def thr():
    if not OPT.get("thr") or curW[0] < OPT["thrW"]: return
    l = newlab("th")
    A(f"s_cmp_ge_i32 s{sCnt}, s{sThr}\ns_cbranch_scc1 {l}\ns_waitcnt vmcnt({OPT['thrW']-4})\ns_add_u32 s{sNeed}, s{sCnt}, {curW[0] - OPT['thrW'] + 4}\ns_max_i32 s{sPub}, s{sPub}, s{sNeed}\n{l}:")
def pub(): A(f"s_add_u32 s{sCnt}, s{sCnt}, 4\ns_max_i32 s{sPub}, s{sPub}, s{sCnt}\nv_mov_b32 v{lC}, s{sPub}\nds_write_b32 v{aFL}, v{lC} offset:{LCO}")
def trans(Wn):
    Wo = curW[0]; assert Wn % 4 == 0
    if Wn < Wo:
        for k in range(Wo - 4, Wn - 1, -4): A(f"s_waitcnt vmcnt({k})"); pub()
    elif Wn > Wo: A(f"s_sub_u32 s{sCnt}, s{sCnt}, {Wn - Wo}")
    curW[0] = Wn
def loop(n_end, body):
    l = newlab("ld"); A(f"{l}:"); body()
    A(f"s_cmp_lg_u32 s{sCnt}, {(n_end - curW[0]) & 0xffffffff}\ns_cbranch_scc1 {l}")
def aloop(n_end, body, Wb, stage):
    Wa = curW[0]
    if Wb <= Wa: loop(n_end, body); return
    la, ld = newlab("aa"), newlab("ad")
    if stage > 0: A(f"{la}:\nds_read_b128 {vr(vFl,4)}, v{aFL}")
    else: A(f"{la}:\nds_read_b64 {vr(vFl,2)}, v{aFL} offset:16")
    body()
    A(f"s_cmp_eq_u32 s{sCnt}, {(n_end - Wa) & 0xffffffff}\ns_cbranch_scc1 {ld}\ns_waitcnt lgkmcnt(1)")
    if stage > 0: pwtest(stage)
    else: A(f"v_min_i32 v{vFl}, v{vFl}, v{vFl+1}\nv_cmp_gt_i32 vcc, {-stage}, v{vFl}")
    A(f"s_cbranch_vccnz {la}")
    trans(Wb); loop(n_end, body); trans(Wa)
    A(f"{ld}:")
A(f"s_mov_b32 m0, {S0}\ns_mov_b32 s{sCnt}, 8\nL_pre:")
for q in range(4):
    A(f"buffer_load_dwordx4 v{lT8}, {srd(sWQ)}, s{sG} offen{NT} lds\ns_add_u32 m0, m0, 1024\ns_add_u32 s{sG}, s{sG}, {32*8192}")
A(f"s_sub_u32 s{sCnt}, s{sCnt}, 1\ns_cmp_lg_u32 s{sCnt}, 0\ns_cbranch_scc1 L_pre")
for r, off in ((sK, 8), (sV, 16), (sW1, 48), (sWO, 32), (sW2, 64)):
    A(f"s_load_dwordx2 s[{r}:{r+1}], s[0:1], {off}")
A(f"s_mov_b32 s{sPub}, 0\ns_mov_b32 s{sRetry}, 0\nv_mov_b32 v{aFL}, {FLG}\ns_setprio 3\ns_barrier")
trans(32)
stamp("l_x")
A("s_branch L_loader2")
sec("ld2")
A("L_loader2:")
A(f"v_lshrrev_b32 v{vG4}, 4, v{vLane}\nv_and_b32 v{vN16}, 15, v{vLane}")
A(f"v_mul_u32_u24 v{lT7}, 7168, v{vTmp2}\nv_add_u32 v{lT7}, v{lT7}, v{vTmp3}")
A(f"v_lshlrev_b32 v{vTmp2}, 8, v{vG4}\nv_xor_b32 v{vTmp3}, v{vN16}, v{vG4}\nv_lshl_add_u32 v{lK}, v{vTmp3}, 4, v{vTmp2}")
for q in (1, 2, 3): A(f"v_xor_b32 v{lK+q}, {64*q}, v{lK}")
A(f"v_xor_b32 v{vTmp3}, v{vN16}, v{vS}\nv_lshl_add_u32 v{lV}, v{vTmp3}, 4, v{vTmp2}\nv_xor_b32 v{lV+1}, 128, v{lV}")
A(f"s_mov_b32 s{sK+2}, {1<<25:#x}\ns_mov_b32 s{sV+2}, s{sK+2}\ns_mov_b32 s{sWO+2}, s{sWQ+2}")
for r in (sK, sV, sW1, sWO, sW2): A(f"s_mov_b32 s{r+3}, 0x20000")
A(f"s_cmp_lt_u32 s{si32}, 28\ns_cselect_b32 s{sW1+2}, {1024*7168}, {1024*7168 if OPT.get('bal') else 0}\ns_mov_b32 s{sW2+2}, s{sW1+2}")
sKV = sT4
A(f"s_and_b32 s{sKV}, s{sx8}, 1\ns_lshl_b32 s{sKV}, s{sKV}, 2\ns_lshr_b32 s{sT}, s{sx8}, 1\ns_add_u32 s{sKV}, s{sKV}, s{sT}\ns_lshl_b32 s{sKV}, s{sKV}, 22\ns_add_u32 s{sKV}, s{sKV}, 0x300000")
A(f"s_waitcnt lgkmcnt(0)\ns_load_dword s{sT32}, s[{sMk}:{sMk+1}], 0")
def kv_group(s_, voff, nreg):
    thr()
    A(f"s_and_b32 s{sM}, s{sM}, 0x1ffff\ns_add_u32 s{sG}, s{sT2}, s{sM}\ns_add_u32 s{sM}, s{sM}, {5*4096}\ns_add_u32 s{sT2}, s{sT2}, 131072")
    for q in range(4):
        A(f"s_waitcnt vmcnt({curW[0]-1})\nbuffer_load_dwordx4 v{voff + q % nreg}, {srd(s_)}, s{sG} offen offset:{1024*q}{NT} lds")
    A(f"s_add_u32 m0, m0, 4096")
    pub()
def w1_group():
    thr()
    for q in range(4):
        A(f"s_waitcnt vmcnt({curW[0]-1})\nbuffer_load_dwordx4 v{lT7}, {srd(sW1)}, s{sG} offen{NT} lds\ns_add_u32 m0, m0, 1024\ns_add_u32 s{sG}, s{sG}, {32*7168}")
    pub()
midx(sCG2, sT3, sT)
A(f"s_lshl_b32 s{sG}, s{sCG2}, 7\ns_mul_i32 s{sT}, s{sT3}, {8*7168}\ns_add_u32 s{sG}, s{sG}, s{sT}\ns_lshl_b32 s{sT3}, s{sT3}, 9\ns_mov_b32 m0, {S3}")
if OPT.get("thr"): A(f"s_lshr_b32 s{sThr}, {OPT['thr']}, s{sx8}\ns_bitcmp1_b32 s{sThr}, 0\ns_cselect_b32 s{sThr}, {OPT['thrN']}, -16")
trans(OPT["W1"])
loop(pK, w1_group)
stamp("l_W1")
trans(OPT["Wk"])
A(f"s_mov_b32 s{sT2}, s{sKV}\ns_lshl_b32 s{sM}, s{si32}, 12\ns_mov_b32 m0, {S1}")
aloop(pV, lambda: kv_group(sK, lK, 4), OPT["Wkb"], 2)
stamp("l_K")
A("s_waitcnt lgkmcnt(0)")
trans(OPT["Wv"])
A(f"s_mov_b32 s{sT2}, s{sKV}\ns_lshl_b32 s{sM}, s{si32}, 12")
loop(pWO, lambda: kv_group(sV, lV, 2))
stamp("l_V")
lF = lK
A(f"v_lshrrev_b32 v{vTmp2}, 5, v{vLane}\nv_and_b32 v{vTmp3}, 31, v{vLane}\nv_lshlrev_b32 v{lF}, 1, v{vTmp2}\nv_xor_b32 v{vTmp3}, v{vTmp3}, v{lF}\nv_lshlrev_b32 v{vTmp3}, 4, v{vTmp3}\nv_lshl_add_u32 v{lF}, v{vTmp2}, 11, v{vTmp3}")
for q in (1, 2, 3): A(f"v_xor_b32 v{lF+q}, {64*q}, v{lF}")
A(f"s_lshl_b32 s{sS}, s{sx8}, 5\ns_add_u32 s{sS}, s{sS}, s{si32}\ns_lshr_b32 s{sR4}, s{si32}, 2")
def fin_group(s_, slot, kshift):
    thr()
    A(f"s_add_u32 s{sM}, s{sGi}, s{sR4}\ns_and_b32 s{sM}, s{sM}, 3\ns_xor_b32 s{sT2}, s{sGi}, s{sR4}\ns_bfe_u32 s{sT2}, s{sT2}, 0x10002")
    A(f"s_lshl_b32 s{sG}, s{sT2}, {kshift}\ns_add_u32 s{sG}, s{sG}, s{sT}\ns_lshl_b32 s{sT5}, s{sM}, 14\ns_add_u32 s{sG}, s{sG}, s{sT5}")
    A(f"s_lshl_b32 s{sT2}, s{sT2}, 2\ns_add_u32 s{sM}, s{sM}, s{sT2}\ns_lshl_b32 s{sM}, s{sM}, 12\ns_add_u32 m0, s{sM}, {slot}\ns_add_u32 s{sGi}, s{sGi}, 1")
    for q in range(4):
        A(f"s_waitcnt vmcnt({curW[0]-1})\nbuffer_load_dwordx4 v{lF+q}, {srd(s_)}, s{sG} offen{NT} lds")
        if q < 3: A(f"s_add_u32 m0, m0, 1024\ns_add_u32 s{sG}, s{sG}, 4096")
    pub()
trans(OPT["Wo"])
waitPW(1)
A(f"s_lshr_b32 s{sT}, s{sS}, 4\ns_lshl_b32 s{sT}, s{sT}, 19\ns_and_b32 s{sT2}, s{sR4}, 3\ns_lshl_b32 s{sT2}, s{sT2}, 16\ns_add_u32 s{sT}, s{sT}, s{sT2}\ns_add_u32 s{sT}, s{sT}, s{sT3}\ns_mov_b32 s{sGi}, 0")
loop(pW2, lambda: fin_group(sWO, S0, 18))
stamp("l_WO")
trans(OPT["W2"])
waitPW(3)
if OPT.get("bal"): A(f"s_min_u32 s{sCG2}, s{sCG2}, 55")
A(f"s_lshl_b32 s{sT}, s{sCG2}, 17\ns_add_u32 s{sT}, s{sT}, s{sT3}\ns_mov_b32 s{sGi}, 0")
aloop(pEND, lambda: fin_group(sW2, S1, 16), OPT["W2x"], -2)
stamp("l_W2")
fWS, fB2, fOUT = sWQ, sK, sV
vOo, vG3 = vP+12, vP+13
A(f"s_load_dwordx2 s[{fB2}:{fB2+1}], s[0:1], 72\ns_load_dwordx2 s[{fOUT}:{fOUT+1}], s[0:1], 80")
A(f"s_mov_b32 s{fWS}, s{sMk}\ns_mov_b32 s{fWS+1}, s{sMk+1}\ns_mov_b32 s{fWS+2}, {WSSZ:#x}\ns_movk_i32 s{fB2+2}, 2048\ns_movk_i32 s{fOUT+2}, 4096")
A(f"v_and_b32 v{vTmp2}, 1, v{vLane}\nv_lshlrev_b32 v{vOo}, 3, v{vTmp2}\nv_lshrrev_b32 v{vTmp3}, 1, v{vLane}\nv_lshlrev_b32 v{vG3}, 4, v{vTmp2}\nv_lshl_add_u32 v{vG3}, v{vTmp3}, 11, v{vG3}")
sOo = sM
A(f"s_lshr_b32 s{sT}, s{sS}, 6\ns_lshl_b32 s{sT3}, s{sT}, 9\ns_and_b32 s{sT2}, s{sS}, 31\ns_lshl_b32 s{sT2}, s{sT2}, 4\ns_add_u32 s{sT3}, s{sT3}, s{sT2}")
A(f"s_bfe_u32 s{sT2}, s{sS}, 0x10005\ns_lshl_b32 s{sT2}, s{sT2}, 11\ns_add_u32 s{sOo}, s{sT3}, s{sT2}")
A(f"s_lshl_b32 s{sT}, s{sT}, 17\ns_and_b32 s{sT2}, s{sS}, 63\ns_lshl_b32 s{sT2}, s{sT2}, 5\ns_add_u32 s{sT}, s{sT}, s{sT2}\ns_add_u32 s{sT}, s{sT}, {P3:#x}\ns_add_u32 s{sT2}, s{sT}, 65536")
A(f"s_add_u32 s{sT32}, s{sT32}, 9\ns_and_b32 s{sT6}, s{sT32}, 0xfff\ns_mov_b32 s{sHI}, 0xffff0000\ns_mov_b32 s{sSpin}, {OPT['spin']}")
trans(0)
stamp("l_end")
if OPT.get("abl"): A("s_branch L_lend")
A("s_waitcnt lgkmcnt(0)")
A(f"buffer_load_dwordx2 {vr(vSm,2)}, v{vOo}, {srd(sX)}, s{sOo} offen\nbuffer_load_dwordx2 {vr(vSm+2,2)}, v{vOo}, {srd(fB2)}, s{sT3} offen")
if OPT.get("g3w"): waitPW(8)
if OPT.get("g3s"): A(f"s_sleep {OPT['g3s']}")
A("L_g3:")
for k, so in enumerate((sT, sT2)): A(f"buffer_load_dwordx4 {vr(vG+4*k,4)}, v{vG3}, {srd(fWS)}, s{so} offen sc1")
A(f"s_add_u32 s{sRetry}, s{sRetry}, 0x1000000\ns_sub_u32 s{sSpin}, s{sSpin}, 1\ns_cbranch_scc1 L_end\ns_waitcnt vmcnt(0)")
for r in range(8): A(f"v_xor_b32 v{vG+r}, s{sT6}, v{vG+r}")
orred(vS, range(vG, vG+8))
A(f"v_and_b32 v{vS}, 0xfff, v{vS}\nv_cmp_ne_u32 vcc, 0, v{vS}\ns_and_b64 exec, exec, vcc\ns_cbranch_scc1 L_g3\ns_mov_b64 exec, -1")
stamp("l_g3ok")
vH = vQ
pk("add", vG, vG, vG+4); pk("add", vG+2, vG+2, vG+6)
unpack(vH, vH+1, vSm); unpack(vH+2, vH+3, vSm+1)
A(f"v_permlane32_swap_b32 v{vG}, v{vG+2}\nv_permlane32_swap_b32 v{vG+1}, v{vG+3}")
unpack(vH+4, vH+5, vSm+2)
pk("add", vG, vG, vG+2)
unpack(vH+6, vH+7, vSm+3)
A(f"v_permlane16_swap_b32 v{vG}, v{vG+1}")
pk("add", vH, vH, vH+4)
A(f"v_add_f32 v{vG}, v{vG}, v{vG+1}")
pk("add", vH+2, vH+2, vH+6)
A(f"s_mov_b32 vcc_lo, 0xffff0000\ns_mov_b32 vcc_hi, 0xffff0000")
allred(vG, "v_add_f32", ["r2"], None)
A(f"v_cndmask_b32 v{vH}, v{vH}, v{vH+1}, vcc\nv_cndmask_b32 v{vH+2}, v{vH+2}, v{vH+3}, vcc")
allred(vG, "v_add_f32", ["r4"], None)
A(f"s_mov_b32 vcc_lo, 0\ns_mov_b32 vcc_hi, -1\nv_cndmask_b32 v{vH}, v{vH}, v{vH+2}, vcc")
allred(vG, "v_add_f32", ["r8"], None)
A(f"v_lshrrev_b32 v{vTmp2}, 4, v{vLane}\nv_lshl_add_u32 v{vOo}, v{vTmp2}, 1, v{vOo}")
A(f"v_add_f32 v{vH}, v{vH}, v{vG}\nv_cvt_pk_bf16_f32 v{vH}, v{vH}, v{vH}")
A("s_mov_b32 exec_lo, 0x00030003\ns_mov_b32 exec_hi, 0x00030003")
A(f"buffer_store_short v{vH}, v{vOo}, {srd(fOUT)}, s{sOo} offen" + (" sc1" if OPT.get("osc") else ""))
A(f"s_cmp_lg_u32 s2, 0\ns_cbranch_scc1 L_lend")
A(f"v_mov_b32 v{vS}, s{sT32}\nv_mov_b32 v{vS+1}, 0\ns_mov_b64 exec, 1\nbuffer_store_dword v{vS}, v{vS+1}, {srd(fWS)}, 0 offen" + (" sc1" if OPT.get("esc") else ""))
A("L_lend:")
stamp("l_fin")
if DUMP: dump_stamps(lambda n: n.startswith("l_"), 8*30)
if "probe" in OPT and STN[0].startswith("l_"): probe_pad()
A("L_end:\ns_endpgm")
nst[0] = 1 if OPT["stamps"] else 0
sec("common")
A("L_notloader:")
j = vJ
A(f"v_mov_b32 v{aFL}, {FLG}\nv_mov_b32 v{vFl}, 0\nv_lshl_add_u32 v{aPW}, v{vLane}, 2, v{aFL}\nds_write_b32 v{aPW}, v{vFl}")
A(f"s_lshr_b32 s{sWave}, s{sWave}, 6\ns_sub_u32 s{sWave}, s{sWave}, 1\nv_lshrrev_b32 v{vJ}, 6, v0\nv_lshrrev_b32 v{vG4}, 4, v{vLane}")
A(f"s_waitcnt lgkmcnt(0)\ns_load_dword s{sT32}, s[{sMk}:{sMk+1}], 0\ns_mov_b32 s{sWS}, s{sMk}\ns_mov_b32 s{sWS+1}, s{sMk+1}\ns_barrier")
A(f"v_lshl_add_u32 v{aPW}, v{j}, 2, v{aFL}\nv_and_b32 v{vN16}, 15, v{vLane}")
A(f"s_mov_b32 s{sWS+2}, {WSSZ:#x}\ns_mov_b32 s{sWS+3}, 0x20000\ns_mov_b32 s{sHI}, 0xffff0000")
if OPT["dry"]:
    A(f"s_cmp_lt_u32 s{sWave}, 4\ns_cbranch_scc1 L_nodry1")
    dry_on()
    A(f"s_cmp_eq_u32 s{sWave}, 4\ns_cbranch_scc1 L_dry4\ns_call_b64 s[{sRA}:{sRA+1}], L_proj\ns_branch L_dry5\nL_dry4:\ns_call_b64 s[{sRA}:{sRA+1}], L_ln\nL_dry5:")
    dry_off()
    A("L_nodry1:")
if OPT.get("abl") == 1:
    A(f"v_mov_b32 v{vFl}, 100\nds_write_b32 v{aPW}, v{vFl}\ns_cmp_eq_u32 s{sWave}, 0\ns_cbranch_scc1 L_ablend\ns_endpgm")
A(f"s_mov_b32 s{sRetry}, 0\ns_mov_b32 s{sSpin}, {OPT['spin']}")
r_, c4 = vTmp2, vTmp3
A(f"v_lshrrev_b32 v{r_}, 2, v{vN16}\nv_and_b32 v{c4}, 3, v{vN16}\nv_lshlrev_b32 v{c4}, 3, v{c4}\nv_lshl_add_u32 v{r_}, v{vG4}, 2, v{r_}")
A(f"s_cmp_lt_u32 s{sWave}, 2\ns_cbranch_scc1 L_attn")
sCGp, sKSp = sCnt, sG
qidx(sCGp, sKSp, sT)
A(f"s_cmp_lt_u32 s{sWave}, 4\ns_cbranch_scc1 L_isq")
midx(sCGp, sKSp, sT)
A("L_isq:")
A(f"v_lshrrev_b32 v{t1}, 5, v{vLane}\nv_and_b32 v{t2}, 31, v{vLane}\nv_lshlrev_b32 v{t0}, 6, v{t2}\nv_lshl_add_u32 v{t0}, v{t1}, 11, v{t0}\nv_add_u32 v{t0}, {XR}, v{t0}\ns_lshl_b32 s{sT}, s{sKSp}, 4")
for t in range(4):
    A(f"v_add_u32 v{vXB+t}, s{sT}, v{t0}")
    if t < 3: A(f"s_add_u32 s{sT}, s{sT}, 16\ns_and_b32 s{sT}, s{sT}, 63")
A(f"s_cmp_lt_u32 s{sWave}, 4\ns_cselect_b32 s{sT2}, {S0}, {S3}\ns_cselect_b32 s{sPB}, {pWQ}, {pW1}\ns_cselect_b32 s{sT3}, 0, {YN-XN}\ns_cselect_b32 s{sT4}, 1, 0\ns_cselect_b32 s{sT5}, 14, 8\ns_add_u32 s{sT3}, s{sT3}, {XN}")
A(f"v_lshlrev_b32 v{aXW}, 4, v{t2}\nv_lshl_add_u32 v{aXW}, v{t1}, 9, v{aXW}\nv_add_u32 v{aXW}, s{sT3}, v{aXW}")
stamp("c_set")
waitLC(pX + 4)
for t in range(4): A(f"ds_read_b128 {vr(vP+4*t,4)}, v{vXB+t}")
stamp("x")
A(f"s_and_b32 s{sT}, s{sWave}, 1\ns_lshl_b32 s{sT}, s{sT}, 1\nv_bfe_u32 v{t1}, v{r_}, 1, 2\nv_xor_b32 v{t1}, s{sT}, v{t1}\nv_lshl_add_u32 v{aPj}, v{r_}, 7, v{c4}\nv_lshl_add_u32 v{aPj}, v{t1}, 5, v{aPj}")
A(f"v_add_u32 v{aPj}, s{sT2}, v{aPj}\nv_xor_b32 v{aPj+1}, 32, v{aPj}\nv_mov_b32 v{vSig}, s{sT4}")
A(f"v_and_b32 v{t0}, 1, v{vN16}\nv_lshlrev_b32 v{t1}, 3, v{vG4}\nv_lshl_add_u32 v{aXB}, v{t0}, 9, v{t1}\nv_add_u32 v{aXB}, s{sT3}, v{aXB}")
A(f"v_lshlrev_b32 v{vPub}, s{sT5}, v{t0}\nv_lshl_add_u32 v{vPub}, v{t1}, 1, v{vPub}\nv_bfe_u32 v{t0}, v{vN16}, 1, 1\nv_lshl_add_u32 v{vPub}, v{t0}, 6, v{vPub}\ns_lshl_b32 s{sT}, s{sT}, 6\nv_add_u32 v{vPub}, s{sT}, v{vPub}")
A(f"s_mov_b32 s{sMk}, 0x0c0c0c0c\ns_mov_b32 s{sMk+1}, s{sMk}")
A(f"s_waitcnt lgkmcnt(0)\ns_add_u32 s{sT32}, s{sT32}, 9\ns_and_b32 s{sT6}, s{sT32}, 63")
A(f"s_call_b64 s[{sRA}:{sRA+1}], L_ln")
A(f"s_cmp_lt_u32 s{sWave}, 4\ns_cbranch_scc0 L_mlp")
A(f"s_lshr_b32 s{sT3}, s{sCGp}, 4\ns_lshl_b32 s{sT3}, s{sT3}, 15\ns_and_b32 s{sT}, s{sCGp}, 15\ns_lshl_b32 s{sT}, s{sT}, 8\ns_add_u32 s{sT3}, s{sT3}, s{sT}")
A(f"s_lshl_b32 s{sT}, s{sKSp}, 12\ns_add_u32 s{sT3}, s{sT3}, s{sT}\ns_add_u32 s{sT3}, s{sT3}, {P1:#x}")
A(f"s_mov_b32 s{sTgM}, 63\ns_mov_b32 s{sTgR}, 32\ns_mov_b32 s{sTgV}, s{sT6}")
stamp("ln1")
A(f"s_call_b64 s[{sRA}:{sRA+1}], L_proj")
stamp("S1")
A("s_branch L_attn2")
sec("mlp")
A("L_mlp:")
mlp_first = nst[0]
def norm(q):
    a0, mean = vS, vS+6
    for i in range(4*q, 4*q+4): pk("add", vU+2*i, vU+2*i, mean, None, NEG)
    for i in range(4*q, 4*q+4): A(f"v_cvt_pk_bf16_f32 v{vP+i}, v{vU+2*i}, v{vU+2*i+1}")
    for i in range(4*q, 4*q+4): unpack(vU+2*i, vU+2*i+1, vP+i)
    for i in range(4*q, 4*q+4): pk("mul", vU+2*i, vU+2*i, a0, None, BC)
    for i in range(4*q, 4*q+4): A(f"v_cvt_pk_bf16_f32 v{vP+i}, v{vU+2*i}, v{vU+2*i+1}")
A(f"s_load_dwordx2 s[{sB1}:{sB1+1}], s[0:1], 56")
A(f"s_cmp_lt_u32 s{si32}, 28\ns_cselect_b32 s{sB1+2}, 7168, 0\ns_mov_b32 s{sB1+3}, 0x20000")
for q in (1, 2, 3): norm(q)
A(f"s_call_b64 s[{sRA}:{sRA+1}], L_ln")
A(f"s_lshl_b32 s{sM}, s{sCGp}, 11\ns_add_u32 s{sM}, s{sM}, {P4:#x}")
A(f"s_getreg_b32 s{sTgV}, hwreg(HW_REG_XCC_ID, 0, 3)\ns_and_b32 s{sT}, s{sT32}, 0x3f8\ns_or_b32 s{sTgV}, s{sTgV}, s{sT}\ns_movk_i32 s{sTgM}, 1023\ns_movk_i32 s{sTgR}, 512\ns_mov_b32 s{sRes}, 0")
stamp("m_ln2")
A(f"s_lshl_b32 s{sT}, s{sKSp}, 9\ns_add_u32 s{sT3}, s{sM}, s{sT}\ns_mov_b32 s{sGi}, s{sT3}")
A(f"s_call_b64 s[{sRA}:{sRA+1}], L_proj")
stamp("m_S4")
vG4o, vB1o, aHW = vG1, aQW, aPXW
sG4 = sPB + 0
A(f"s_and_b32 s{sT}, s{sWave}, 1\ns_lshl_b32 s{sT2}, s{sT}, 8\nv_lshlrev_b32 v{vB1o}, 3, v{vN16}\nv_lshlrev_b32 v{vG4o}, 9, v{vG4}\nv_lshl_add_u32 v{vG4o}, v{vN16}, 4, v{vG4o}\nv_add_u32 v{vG4o}, s{sT2}, v{vG4o}")
A(f"s_lshl_b32 s{sT}, s{sT}, 7\ns_add_u32 s{sT}, s{sT}, {HL}\nv_and_b32 v{t0}, 3, v{vN16}\nv_lshlrev_b32 v{t0}, 4, v{t0}\nv_bfe_u32 v{t1}, v{vN16}, 2, 1\nv_lshl_add_u32 v{t0}, v{t1}, 3, v{t0}\nv_lshrrev_b32 v{t1}, 3, v{vN16}\nv_lshl_add_u32 v{t0}, v{t1}, 6, v{t0}\nv_add_u32 v{aHW}, s{sT}, v{t0}")
A(f"s_lshl_b32 s{sT}, s{sCGp}, 7\ns_waitcnt lgkmcnt(0)\nbuffer_load_dwordx2 {vr(vSm,2)}, v{vB1o}, {srd(sB1)}, s{sT} offen")
A(f"v_lshrrev_b32 v{t0}, 3, v{vLane}\nv_and_b32 v{t1}, 7, v{vLane}\nv_lshlrev_b32 v{t2}, 4, v{t1}\nv_lshl_add_u32 v{vG2}, v{t0}, 11, v{t2}")
A(f"v_lshrrev_b32 v{t1}, 2, v{t1}\nv_lshlrev_b32 v{t1}, 3, v{t1}\nv_lshl_add_u32 v{vG2l}, v{t0}, 7, v{t1}")
A(f"v_lshl_add_u32 v{aOLW}, v{t0}, 1, v{t2}\ns_and_b32 s{sT}, s{sWave}, 1\ns_lshl_b32 s{sT}, s{sT}, 7\ns_add_u32 s{sT}, s{sT}, {OL}\nv_add_u32 v{aOLW}, s{sT}, v{aOLW}")
A(f"v_and_b32 v{t0}, 7, v{vLane}\nv_xor_b32 v{t0}, s{sT32}, v{t0}")
for k in range(4): A(f"v_bfe_u32 v{vE+k}, v{t0}, {k}, 1")
A(f"s_lshl_b32 s{sS}, s{sx8}, 5\ns_add_u32 s{sS}, s{sS}, s{si32}")
if OPT["dry"]:
    dry_on(); A("s_branch L_mtail\nL_mreal:"); dry_off()
A("L_mtail:")
vM, vL = vS, vS+1
vZ = vSm
def g2():
    vm("\n".join(f"buffer_load_dwordx4 {vr(vG+4*k,4)}, v{vG2}, {srd(sWS)}, s{so} offen sc1" for k, so in enumerate((sT, sT2, sT3, sT4))) + "\n" +
       "\n".join(f"buffer_load_dwordx2 {vr(vZ+2*k,2)}, v{vG2l}, {srd(sWS)}, s{sT5} offen offset:{1024*k} sc1" for k in range(4)))
A(f"s_and_b32 s{sT5}, s{sx8}, 6\ns_and_b32 s{sT}, s{sWave}, 1\ns_add_u32 s{sT5}, s{sT5}, s{sT}\ns_lshl_b32 s{sT}, s{sT5}, 16\ns_lshl_b32 s{sT5}, s{sT5}, 12")
A(f"s_bfe_u32 s{sT2}, s{sS}, 0x20002\ns_lshl_b32 s{sT2}, s{sT2}, 9\ns_add_u32 s{sT}, s{sT}, s{sT2}\ns_bfe_u32 s{sT2}, s{sS}, 0x20004\ns_lshl_b32 s{sT3}, s{sT2}, 7\ns_add_u32 s{sT}, s{sT}, s{sT3}\ns_add_u32 s{sT}, s{sT}, {P2:#x}")
A(f"s_lshl_b32 s{sT2}, s{sT2}, 4\ns_add_u32 s{sT5}, s{sT5}, s{sT2}\ns_add_u32 s{sT5}, s{sT5}, {P2L:#x}")
A(f"s_add_u32 s{sT2}, s{sT}, 16384\ns_add_u32 s{sT3}, s{sT}, 32768\ns_add_u32 s{sT4}, s{sT}, 49152")
if OPT["pr2"]:
    l = newlab("p2")
    A(f"s_cbranch_execnz {l}\ns_mov_b64 exec, -1\ns_lshl_b32 s{sNeed}, s{sKSp}, 14\ns_add_u32 s{sNeed}, s{sNeed}, s{sT}")
    A(f"buffer_load_dword v{vQ+1}, v{vG2}, {srd(sWS)}, s{sNeed} offen sc1")
    A(f"s_lshl_b32 s{sNeed}, s{sKSp}, 10\ns_add_u32 s{sNeed}, s{sNeed}, s{sT5}\nbuffer_load_dword v{vQ+2}, v{vG2l}, {srd(sWS)}, s{sNeed} offen sc1\ns_mov_b64 exec, 0\n{l}:")
waitLC(OPT["g4"])

stamp("m_g4i")
def g4(): vm(f"buffer_load_dwordx4 {vr(vQ,4)}, v{vG4o}, {srd(sWS)}, s{sM} offen sc1")
g4()
vm("s_waitcnt vmcnt(0)")
unpack(vU+8, vU+9, vSm); unpack(vU+10, vU+11, vSm+1)
def restore4():
    l = newlab("rs")
    A(f"s_cmp_lg_u32 s{sRes}, 0\ns_cbranch_scc1 {l}\ns_mov_b32 s{sRes}, 1")
    setexec(0x000f000f000f000f)
    vm(f"buffer_store_dwordx4 {vr(vAcc,4)}, v{vPub}, {srd(sWS)}, s{sGi} offen sc1")
    fullexec()
    A(f"{l}:")
def g4retry():
    if OPT["loc4"]:
        l = newlab("nr")
        A(f"s_bfe_u32 s{sNeed}, s{sRetry}, 0x80010\ns_cmp_lt_u32 s{sNeed}, {OPT['rs4']}\ns_cbranch_scc1 {l}")
        restore4(); A(f"{l}:")
    g4()
A("L_g4chk:")
for r in range(4): A(f"v_xor_b32 v{vQ+r}, s{sTgV}, v{vQ+r}")
orred(vS+1, range(vQ, vQ+4))
A(f"v_and_b32 v{vS}, 0x3f8, v{vS+1}")
retry_tail("g4", g4retry, 0x10000, False)
if OPT["loc4"]:
    A(f"v_and_b32 v{vS}, 7, v{vS+1}\nv_cmp_ne_u32 vcc, 0, v{vS}\ns_cbranch_vccz L_alllocal")
    restore4()
    A("L_alllocal:")
stamp("m_g4ok")
vH = vQ
allred([vH, vH+1, vH+2, vH+3], "v_add_f32", ["p16", "p32"], [vH+4, vH+5, vH+6, vH+7])
A(f"v_cvt_pk_bf16_f32 v{vH+4}, v{vH}, v{vH+1}\nv_cvt_pk_bf16_f32 v{vH+5}, v{vH+2}, v{vH+3}")
unpack(vH, vH+1, vH+4); unpack(vH+2, vH+3, vH+5)
pk("add", vH, vH, vU+8); pk("add", vH+2, vH+2, vU+10)
A(f"v_cvt_pk_bf16_f32 v{vH+4}, v{vH}, v{vH+1}\nv_cvt_pk_bf16_f32 v{vH+5}, v{vH+2}, v{vH+3}")
unpack(vH, vH+1, vH+4); unpack(vH+2, vH+3, vH+5)
pk("mul", vH+4, vH, vH); pk("mul", vH+6, vH+2, vH+2)
for r in range(4): A(f"v_mul_f32 v{vH+4+r}, 0xbdd2d3e8, v{vH+4+r}")
for r in range(4): A(f"v_add_f32 v{vH+4+r}, 0xc0135761, v{vH+4+r}")
pk("mul", vH+4, vH+4, vH); pk("mul", vH+6, vH+6, vH+2)
for r in range(4): A(f"v_exp_f32 v{vH+4+r}, v{vH+4+r}")
for r in range(4): A(f"v_add_f32 v{vH+4+r}, 1.0, v{vH+4+r}")
for r in range(4): A(f"v_rcp_f32 v{vH+4+r}, v{vH+4+r}")
pk("mul", vH, vH, vH+4); pk("mul", vH+2, vH+2, vH+6)
A(f"v_cvt_pk_bf16_f32 v{vH}, v{vH}, v{vH+1}\nv_cvt_pk_bf16_f32 v{vH+1}, v{vH+2}, v{vH+3}")
A(f"ds_write_b64 v{aHW}, {vr(vH,2)}")
signal(1)
stamp("m_h")
waitLC(OPT["g2"])
stamp("m_g2i")
g2()
signal(2)
A("s_waitcnt vmcnt(0)")
stamp("m_g2a")
A("L_g2chk:")
for t in range(4):
    for k in range(4): A(f"v_xor_b32 v{vG+4*t+k}, v{vE+k}, v{vG+4*t+k}")
for t in range(4): A(f"v_xor_b32 v{vZ+2*t+1}, s{sT32}, v{vZ+2*t+1}")
orred(vS, range(vG, vG+16))
A(f"v_or3_b32 v{vS+1}, v{vZ+1}, v{vZ+3}, v{vZ+5}\nv_and_b32 v{vS}, 1, v{vS}\nv_or3_b32 v{vS}, v{vS}, v{vS+1}, v{vZ+7}")
retry_tail("g2", g2, 0x100, False)
stamp("m_g2ok")
ls = lambda t: vZ + 2*t
A(f"v_max3_f32 v{vM}, v{ls(0)}, v{ls(1)}, v{ls(2)}\nv_max_f32 v{vM}, v{vM}, v{ls(3)}")
up = [(vU + 8*t + 2*k, vG + 4*t + k) for t in range(4) for k in range(4)]
def ups(n):
    for _ in range(n):
        d, s_ = up.pop(0); unpack(d, d+1, s_)
ups(1); allred(vM, "v_max_f32", ["r8"], None)
A(f"v_mov_b32 v{vS+2}, v{vM}"); ups(1); A(f"v_permlane16_swap_b32 v{vM}, v{vS+2}\nv_max_f32 v{vM}, v{vM}, v{vS+2}")
A(f"v_mov_b32 v{vS+2}, v{vM}"); ups(1); A(f"v_permlane32_swap_b32 v{vM}, v{vS+2}\nv_max_f32 v{vM}, v{vM}, v{vS+2}")
for t in range(4): A(f"v_sub_f32 v{ls(t)}, v{ls(t)}, v{vM}")
for t in range(4): A(f"v_exp_f32 v{ls(t)}, v{ls(t)}")
ups(13)
A(f"v_add_f32 v{vL}, v{ls(0)}, v{ls(1)}\nv_add_f32 v{vS+2}, v{ls(2)}, v{ls(3)}\nv_add_f32 v{vL}, v{vL}, v{vS+2}")
for h in (0, 2, 4, 6): pk("mul", vU+h, vU+h, ls(0), None, BC)
allred(vL, "v_add_f32", ["r8"], None)
for h in (0, 2, 4, 6): pk("fma", vU+h, vU+8+h, ls(1), vU+h, BC3)
A(f"v_mov_b32 v{vS+2}, v{vL}")
for h in (0, 2, 4, 6): pk("fma", vU+h, vU+16+h, ls(2), vU+h, BC3)
A(f"v_permlane16_swap_b32 v{vL}, v{vS+2}\nv_add_f32 v{vL}, v{vL}, v{vS+2}\nv_mov_b32 v{vS+2}, v{vL}")
for h in (0, 2, 4, 6): pk("fma", vU+h, vU+24+h, ls(3), vU+h, BC3)
A(f"v_permlane32_swap_b32 v{vL}, v{vS+2}\nv_add_f32 v{vL}, v{vL}, v{vS+2}")
for k in range(4): A(f"v_permlane32_swap_b32 v{vU+k}, v{vU+4+k}")
A(f"v_rcp_f32 v{vL}, v{vL}")
pk("add", vU, vU, vU+4); pk("add", vU+2, vU+2, vU+6)
A(f"s_mov_b32 vcc_lo, 0xff00ff00\ns_mov_b32 vcc_hi, vcc_lo")
A(f"v_permlane16_swap_b32 v{vU}, v{vU+2}\nv_permlane16_swap_b32 v{vU+1}, v{vU+3}")
pk("add", vU, vU, vU+2)
A(f"v_cndmask_b32 v{vU+2}, v{vU}, v{vU+1}, vcc\nv_cndmask_b32 v{vU+3}, v{vU+1}, v{vU}, vcc")
A(f"v_add_f32_dpp v{vU+2}, v{vU+3}, v{vU+2} row_ror:8 row_mask:0xf bank_mask:0xf")
A(f"v_mul_f32 v{vU+2}, v{vU+2}, v{vL}\nv_cvt_pk_bf16_f32 v{vU+2}, v{vU+2}, v{vU+2}\nds_write_b16 v{aOLW}, v{vU+2}")
signal(3)
if OPT["dry"]: A("s_cbranch_execz L_mreal")
stamp("m_o")
if DUMP:
    A(f"s_cmp_lg_u32 s{sWave}, 4\ns_cbranch_scc1 L_end"); dump_stamps(lambda n: n.startswith("m_"), 8*31+4)
if "probe" in OPT and STN[0].startswith("m_"): probe_pad()
A("s_endpgm")
nst[0] = mlp_first
sec("attn")
A("L_attn:")
signal(1)
A(f"s_waitcnt lgkmcnt(0)\ns_add_u32 s{sT32}, s{sT32}, 9\ns_and_b32 s{sT6}, s{sT32}, 63")
A("L_attn2:")
A(f"s_lshl_b32 s{sS}, s{sx8}, 5\ns_add_u32 s{sS}, s{sS}, s{si32}\ns_lshl_b32 s{sW8}, s{sWave}, 3\ns_add_u32 s{sW8}, s{sW8}, 8")
A(f"s_bfe_u32 s{sR4}, s{si32}, 0x10004\ns_lshl_b32 s{sT}, s{sR4}, 14")
A(f"v_and_b32 v{t0}, 7, v{r_}\nv_lshlrev_b32 v{t2}, 2, v{j}\nv_xor_b32 v{t1}, v{t0}, v{t2}\nv_lshl_add_u32 v{aW}, v{r_}, 9, v{c4}\nv_lshl_add_u32 v{aW}, v{t1}, 5, v{aW}\nv_add_u32 v{aW}, s{sT}, v{aW}")
for ct in (1, 2, 3): A(f"v_xor_b32 v{aW+ct}, {32*ct}, v{aW}")
A(f"v_lshlrev_b32 v{t2}, 1, v{j}\nv_xor_b32 v{t1}, v{t0}, v{t2}\nv_lshl_add_u32 v{aV}, v{r_}, 8, v{c4}\nv_lshl_add_u32 v{aV}, v{t1}, 5, v{aV}\nv_add_u32 v{aV}, {S2}, v{aV}\nv_xor_b32 v{aV+1}, 32, v{aV}")
A(f"v_xor_b32 v{t1}, v{vG4}, v{vN16}\nv_lshlrev_b32 v{t1}, 4, v{t1}\nv_lshl_add_u32 v{t1}, v{vN16}, 8, v{t1}\nv_lshl_add_u32 v{t1}, v{j}, 13, v{t1}\nv_add_u32 v{aK}, {S1}, v{t1}")
for s_ in (1, 2, 3): A(f"v_xor_b32 v{aK+s_}, {64*s_}, v{aK}")
A(f"v_and_b32 v{t1}, 7, v{vN16}\nv_mul_u32_u24 v{aQ}, 272, v{t1}\nv_lshl_add_u32 v{aQ}, v{vG4}, 4, v{aQ}\nv_add_u32 v{aQ}, {QL}, v{aQ}")
A(f"v_lshlrev_b32 v{vS2l}, 3, v{t1}\nv_add_u32 v{aMLR}, {ML}, v{vS2l}\nv_lshl_add_u32 v{aMLW}, v{j}, 6, v{aMLR}")
A(f"v_lshlrev_b32 v{vS2o}, 6, v{t1}\nv_lshl_add_u32 v{vS2o}, v{j}, 9, v{vS2o}\nv_lshl_add_u32 v{vS2o}, v{vG4}, 4, v{vS2o}")
A(f"v_lshlrev_b32 v{vG1}, 4, v0\nv_add_u32 v{aPXW}, {PX}, v{vG1}\nv_lshlrev_b32 v{aPXR}, 4, v{vLane}\nv_add_u32 v{aPXR}, {PX}, v{aPXR}")
A(f"v_lshrrev_b32 v{t1}, 5, v0\nv_and_b32 v{t2}, 31, v0\nv_mul_u32_u24 v{aQW}, 272, v{t1}\nv_lshl_add_u32 v{aQW}, v{t2}, 3, v{aQW}\nv_add_u32 v{aQW}, {QL}, v{aQW}")
A(f"v_and_b32 v{t1}, 1, v{vLane}\nv_lshlrev_b32 v{aOLR}, 4, v{vG4}\nv_lshl_add_u32 v{aOLR}, v{t1}, 7, v{aOLR}\ns_lshl_b32 s{sT}, s{sR4}, 6\ns_add_u32 s{sT}, s{sT}, {OL}\nv_add_u32 v{aOLR}, s{sT}, v{aOLR}")
A(f"v_lshlrev_b32 v{vP3}, 10, v{t1}\nv_lshl_add_u32 v{vP3}, v{j}, 8, v{vP3}\nv_lshl_add_u32 v{vP3}, v{vG4}, 4, v{vP3}\nv_bfe_u32 v{t2}, v{vLane}, 1, 2\nv_lshl_add_u32 v{vP3}, v{t2}, 6, v{vP3}")
for i, mk in enumerate((0x0c0c0c0c, 0x30303030, 0xc0c0c0c0)):
    A(f"s_mov_b32 s{sMk+2*i}, {mk:#x}\ns_mov_b32 s{sMk+2*i+1}, s{sMk+2*i}")
A(f"v_and_b32 v{t0}, 1, v{vLane}\nv_lshl_add_u32 v{t0}, v{t0}, 2, v{vG4}\nv_xor_b32 v{t0}, s{sT32}, v{t0}")
for k in range(4): A(f"v_bfe_u32 v{vE+k}, v{t0}, {k}, 1")
if OPT["pr1"]:
    A(f"s_cmp_lg_u32 s{sWave}, 0\ns_cbranch_scc1 L_nopr\ns_lshl_b32 s{sT}, s{sS}, 9\ns_add_u32 s{sT}, s{sT}, {P1:#x}\nv_lshlrev_b32 v{t0}, 6, v{vLane}\ns_mov_b64 exec, 0xff")
    A(f"buffer_load_dword v{vU+3}, v{t0}, {srd(sWS)}, s{sT} offen sc1\ns_mov_b64 exec, -1\nL_nopr:")
if OPT["dry"]:
    A(f"s_cmp_ge_u32 s{sWave}, 2\ns_cbranch_scc1 L_partA")
    dry_on()
    A(f"s_cmp_eq_u32 s{sWave}, 1\ns_cbranch_scc1 L_partB\ns_branch L_partA\nL_areal:")
    dry_off()
A("L_partA:")
A(f"s_lshl_b32 s{sT}, s{sx8}, 14\ns_add_u32 s{sT}, s{sT}, {P1:#x}\ns_add_u32 s{sT2}, s{sT}, 4096\ns_add_u32 s{sT3}, s{sT}, 8192\ns_add_u32 s{sT4}, s{sT}, 12288")
def g1():
  if ABL != 6: vm("\n".join(f"buffer_load_dwordx4 {vr(vG+4*k,4)}, v{vG1}, {srd(sWS)}, s{so} offen sc1" for k, so in enumerate((sT, sT2, sT3, sT4))))
def kfrags():
    waitLC(pK, sW8)
    for T in range(2):
        for s_ in range(4): A(f"ds_read_b128 {vr(vKF+16*T+4*s_,4)}, v{aK+s_} offset:{4096*T}")
waitLC(OPT["g1"])
stamp("g1i")
g1()
signal(2)
A(f"v_mov_b32 v{vS+4}, 0x3db504f3\nv_mov_b32 v{vS+6}, 0x3fb8aa3b")
A("s_waitcnt vmcnt(0)")
stamp("g1a")
chk6(vG, 16, "g1", g1, 1)
stamp("g1ok")
pk("add", vG, vG, vG+4); pk("add", vG+8, vG+8, vG+12); pk("add", vG+2, vG+2, vG+6); pk("add", vG+10, vG+10, vG+14)
pk("add", vG, vG, vG+8); pk("add", vG+2, vG+2, vG+10)
A(f"v_cvt_pk_bf16_f32 v{vG}, v{vG}, v{vG+1}\nv_cvt_pk_bf16_f32 v{vG+1}, v{vG+2}, v{vG+3}\nds_write_b64 v{aQW}, {vr(vG,2)}")
signal(2)
kfrags()
LB(4)
stamp("lb3")
for s_ in range(4): A(f"ds_read_b128 {vr(vQ+4*s_,4)}, v{aQ} offset:{64*s_}")
for s_ in range(4):
    A(f"s_waitcnt lgkmcnt({3-s_})")
    for T in range(2):
        c = "0" if s_ == 0 else vr(vU+4*T, 4)
        A(f"v_mfma_f32_16x16x32_bf16 {vr(vU+4*T,4)}, {vr(vKF+16*T+4*s_,4)}, {vr(vQ+4*s_,4)}, {c}")
vM, vL = vS, vS+1
for p in range(4): A(f"v_cvt_pk_bf16_f32 v{vU+8+p}, v{vU+2*p}, v{vU+2*p+1}")
for p in range(4): unpack(vU+2*p, vU+2*p+1, vU+8+p)
for p in range(4): pk("mul", vU+2*p, vU+2*p, vS+4, None, BC)
for p in range(4): A(f"v_cvt_pk_bf16_f32 v{vU+8+p}, v{vU+2*p}, v{vU+2*p+1}")
for p in range(4): unpack(vU+2*p, vU+2*p+1, vU+8+p)
A(f"v_max3_f32 v{vM}, v{vU}, v{vU+1}, v{vU+2}\nv_max3_f32 v{vS+2}, v{vU+3}, v{vU+4}, v{vU+5}\nv_max3_f32 v{vM}, v{vM}, v{vU+6}, v{vU+7}\nv_max_f32 v{vM}, v{vM}, v{vS+2}")
allred(vM, "v_max_f32", ["p16", "p32"], vS+2)
A(f"v_mul_f32 v{vM}, v{vM}, v{vS+6}")
for p in range(4): pk("fma", vU+2*p, vU+2*p, vS+6, vM, "op_sel_hi:[1,0,0] neg_lo:[0,0,1] neg_hi:[0,0,1]")
for r in range(8): A(f"v_exp_f32 v{vU+r}, v{vU+r}")
for p in range(4): A(f"v_cvt_pk_bf16_f32 v{vU+8+p}, v{vU+2*p}, v{vU+2*p+1}")
A(f"ds_write_b128 v{aPXW}, {vr(vU+8,4)}")
pk("add", vU, vU, vU+2); pk("add", vU+4, vU+4, vU+6); pk("add", vU, vU, vU+4)
A(f"v_add_f32 v{vL}, v{vU}, v{vU+1}")
allred(vL, "v_add_f32", ["p16", "p32"], vS+2)
A(f"ds_write_b64 v{aMLW}, {vr(vM,2)}")
signal(5)
stamp("sm")
waitLC(pWO)
for w in range(4):
    for d in range(2):
        f = vF + 8*w + 4*d
        A(f"ds_read_b64_tr_b16 {vr(f,2)}, v{aV+d} offset:{8192*w}\nds_read_b64_tr_b16 {vr(f+2,2)}, v{aV+d} offset:{8192*w + 4096}")
A(f"s_lshl_b32 s{sT}, s{sS}, 11\ns_add_u32 s{sT}, s{sT}, {P2:#x}\ns_lshl_b32 s{sT2}, s{sS}, 7\ns_add_u32 s{sT2}, s{sT2}, {P2L:#x}\ns_mov_b32 s{sT3}, 0xfffe0000\ns_mov_b32 s{sT4}, 0x10000")
waitPW(5)
stamp("lb4")
for w in range(4): A(f"ds_read_b128 {vr(vQ+4*w,4)}, v{aPXR} offset:{1024*w}")
for w in range(4): A(f"ds_read_b64 {vr(vU+16+2*w,2)}, v{aMLR} offset:{64*w}")
for w in range(4):
    A(f"s_waitcnt lgkmcnt({7-w})")
    for d in range(2): A(f"v_mfma_f32_16x16x32_bf16 {vr(vAcc+8*w+4*d,4)}, {vr(vF+8*w+4*d,4)}, {vr(vQ+4*w,4)}, 0")
A("s_waitcnt lgkmcnt(0)")
m = lambda w: vU + 16 + 2*w
A(f"v_max3_f32 v{vM}, v{m(0)}, v{m(1)}, v{m(2)}\nv_max_f32 v{vM}, v{vM}, v{m(3)}")
for w in range(4): A(f"v_sub_f32 v{m(w)}, v{m(w)}, v{vM}")
for w in range(4): A(f"v_exp_f32 v{m(w)}, v{m(w)}")
A(f"v_mul_f32 v{vL}, v{m(0)}, v{m(0)+1}")
for w in range(1, 4): A(f"v_fmac_f32 v{vL}, v{m(w)}, v{m(w)+1}")
A(f"v_rcp_f32 v{vS+2}, v{vL}\nv_log_f32 v{vS+3}, v{vL}")
for w in range(4): A(f"v_mul_f32 v{m(w)}, v{m(w)}, v{vS+2}")
for h in (0, 2, 4, 6): pk("mul", vAcc+h, vAcc+h, m(0), None, BC)
for w in range(1, 4):
    for h in (0, 2, 4, 6): pk("fma", vAcc+h, vAcc+8*w+h, m(w), vAcc+h, BC3)
for k in range(4): A(f"v_add_u32 v{vAcc+2*k}, s{sT4}, v{vAcc+2*k}")
for k in range(4): A(f"v_and_b32 v{vAcc+2*k}, s{sT3}, v{vAcc+2*k}")
for k in range(4): A(f"v_cvt_pk_bf16_f32 v{vU+k}, v{vAcc+2*k}, v{vAcc+2*k+1}")
for k in range(4): A(f"v_or_b32 v{vU+k}, v{vE+k}, v{vU+k}")
A(f"v_add_f32 v{vU+4}, v{vM}, v{vS+3}\nv_mov_b32 v{vU+5}, s{sT32}")
setexec(0x00ff00ff00ff00ff)
vm(f"buffer_store_dwordx4 {vr(vU,4)}, v{vS2o}, {srd(sWS)}, s{sT} offen sc1")
A(f"s_cmp_lg_u32 s{sWave}, 0\ns_cbranch_scc1 L_nolse")
setexec(0xff)
vm(f"buffer_store_dwordx2 {vr(vU+4,2)}, v{vS2l}, {srd(sWS)}, s{sT2} offen sc1")
A("L_nolse:")
fullexec()
if OPT["dry"]: A("s_cbranch_execz L_areal")
stamp("S2")
A("L_partB:")
def frag_reads(fb, base, k):
    for ct in range(4):
        f = fb + 16*k + 4*ct
        A(f"ds_read_b64_tr_b16 {vr(f,2)}, v{aW+ct} offset:{base}\nds_read_b64_tr_b16 {vr(f+2,2)}, v{aW+ct} offset:{base + 8192}")
def flipW():
    for ct in range(4): A(f"v_xor_b32 v{aW+ct}, 0x4000, v{aW+ct}")
def mfmas(fb, xb, first, wait=None):
    for ct in range(4):
        if wait is not None: A(f"s_waitcnt lgkmcnt({wait + 6 - 2*ct})")
        c = "0" if first else vr(vAcc+4*ct, 4)
        A(f"v_mfma_f32_16x16x32_bf16 {vr(vAcc+4*ct,4)}, {vr(fb+4*ct,4)}, {vr(xb,4)}, {c}")
waitLC(pW2)
frag_reads(vF, S0, 0); flipW(); frag_reads(vF, S0, 1); flipW()
A(f"s_and_b32 s{sT}, s{sS}, 3\ns_lshl_b32 s{sT}, s{sT}, 17\ns_lshr_b32 s{sT2}, s{sS}, 2\ns_lshl_b32 s{sT2}, s{sT2}, 11\ns_add_u32 s{sT}, s{sT}, s{sT2}\ns_add_u32 s{sT}, s{sT}, {P3:#x}")
A(f"s_movk_i32 s{sC63}, 0xfff\ns_and_b32 s{sT2}, s{sT32}, s{sC63}\nv_mov_b32 v{vS}, s{sT2}\nv_xor_b32 v{vS+1}, 64, v{aOLR}")
waitLC(pW2 + 16)
frag_reads(vXB, S1, 0); flipW()
waitMW(1)
A(f"ds_read_b128 {vr(vQ+8,4)}, v{aOLR} offset:256\nds_read_b128 {vr(vQ+12,4)}, v{vS+1} offset:256")
stamp("h")
A("s_waitcnt lgkmcnt(1)"); mfmas(vXB, vQ+8, True)
def opart():
    A(f"ds_read_b128 {vr(vQ,4)}, v{aOLR}\nds_read_b128 {vr(vQ+4,4)}, v{vS+1}")
    A("s_waitcnt lgkmcnt(1)"); mfmas(vF, vQ, False)
    A("s_waitcnt lgkmcnt(0)"); mfmas(vF+16, vQ+4, False)
def wpart():
    frag_reads(vXB, S1, 1)
    mfmas(vXB+16, vQ+12, False, 0)
A(f"s_movk_i32 s{sNeed}, {pEND}\nL_race:\nds_read_b128 {vr(vFl,4)}, v{aFL} offset:16\ns_waitcnt lgkmcnt(0)")
A(f"v_cmp_gt_i32 vcc, s{sNeed}, v{vFl+2}\ns_cbranch_vccz L_wfirst\nv_min_i32 v{vFl}, v{vFl}, v{vFl+1}\nv_cmp_gt_i32 vcc, 3, v{vFl}\ns_cbranch_vccnz L_race")
A("L_ofirst:")
opart(); waitLC(pEND); wpart()
A("s_branch L_accdone\nL_wfirst:")
wpart(); waitMW(3); opart()
if OPT["dry"]: A("s_cbranch_execz L_ofirst")
A("L_accdone:")
stamp("fin")
for ct in range(1, 4):
    for r in range(4): A(f"v_cndmask_b32 v{vAcc+r}, v{vAcc+r}, v{vAcc+4*ct+r}, s[{sMk+2*ct-2}:{sMk+2*ct-1}]")
for r in range(4): A(f"v_bfi_b32 v{vAcc+r}, s{sC63}, v{vS}, v{vAcc+r}")
setexec(0x00ff00ff00ff00ff)
if OPT["dry"]: A("s_cbranch_execz L_areal")
A(f"buffer_store_dwordx4 {vr(vAcc,4)}, v{vP3}, {srd(sWS)}, s{sT} offen sc1")
if OPT.get("g3w"): signal(8)
A("L_ablend:")
if "probe" in OPT:
    stamp("end")
    if STN[0][:2] not in ("l_", "m_"):
        A(f"s_cmp_lg_u32 s{sWave}, {OPT['swave']}\ns_cbranch_scc1 L_end"); probe_pad()
elif DUMP:
    stamp("end")
    l3 = ("x", "ln1", "S1", "c_set")
    A(f"s_cmp_lg_u32 s{sWave}, 3\ns_cbranch_scc1 L_d0")
    dump_stamps(lambda n: n in l3, None)
    A(f"s_endpgm\nL_d0:\ns_cmp_lg_u32 s{sWave}, {OPT['swave']}\ns_cbranch_scc1 L_end")
    dump_stamps(lambda n: n not in l3 and n[:2] not in ("l_", "m_"), 8*31)
A("s_endpgm")
A(f"L_bail:\ns_mov_b64 exec, -1\nv_mov_b32 v{vFl}, 0x7fffffff\nds_write_b32 v{aPW}, v{vFl}\ns_waitcnt lgkmcnt(0)\ns_endpgm")
sec("proj")
A("L_proj:")
A(f"ds_write_b128 v{aXW}, {vr(vP,4)}")
for k in range(8): A(f"ds_read2_b64 {vr(vXB+4*k,4)}, v{aXB} offset0:{8*k} offset1:{8*k+4}")
A(f"v_mov_b32 v{vS}, s{sTgV}")
def pj_batch(ks):
    waitLC(4*(ks[-1]+1), sPB)
    for i, k in enumerate(ks):
        for c in range(2):
            f = vF + 8*i + 4*c
            A(f"ds_read_b64_tr_b16 {vr(f,2)}, v{aPj+c} offset:{4096*k}\nds_read_b64_tr_b16 {vr(f+2,2)}, v{aPj+c} offset:{4096*k + 2048}")
    if ks[-1] == 7: A(f"ds_write_b32 v{aPW}, v{vSig}")
    n = 4*len(ks) + (1 if ks[-1] == 7 else 0)
    for i, k in enumerate(ks):
        for c in range(2):
            n -= 2
            cc = "0" if k == 0 else vr(vAcc+4*c, 4)
            A(f"s_waitcnt lgkmcnt({n})\nv_mfma_f32_16x16x32_bf16 {vr(vAcc+4*c,4)}, {vr(vF+8*i+4*c,4)}, {vr(vXB+4*k,4)}, {cc}")
pj_batch([0, 1, 2, 3]); pj_batch([4, 5, 6]); pj_batch([7])
for r in range(4): A(f"v_cndmask_b32 v{vAcc+r}, v{vAcc+r}, v{vAcc+4+r}, s[{sMk}:{sMk+1}]")
for r in range(4): A(f"v_add_u32 v{vAcc+r}, s{sTgR}, v{vAcc+r}")
for r in range(4): A(f"v_bfi_b32 v{vAcc+r}, s{sTgM}, v{vS}, v{vAcc+r}")
setexec(0x000f000f000f000f)
if OPT["loc4"]:
    A(f"s_cbranch_execz L_pjdone\ns_cmp_lt_u32 s{sWave}, 4\ns_cbranch_scc0 L_pjloc")
    A(f"buffer_store_dwordx4 {vr(vAcc,4)}, v{vPub}, {srd(sWS)}, s{sT3} offen sc1\ns_branch L_pjdone")
    A(f"L_pjloc:\nbuffer_store_dwordx4 {vr(vAcc,4)}, v{vPub}, {srd(sWS)}, s{sT3} offen\nL_pjdone:")
else: vm(f"buffer_store_dwordx4 {vr(vAcc,4)}, v{vPub}, {srd(sWS)}, s{sT3} offen sc1")
fullexec()
A(f"s_setpc_b64 s[{sRA}:{sRA+1}]")
sec("ln")
A("L_ln:")
for i in range(16): unpack(vU+2*i, vU+2*i+1, vP+i)
a0, a1, mean = vS, vS+2, vS+6
pk("add", a0, vU, vU+2); pk("add", a1, vU+4, vU+6)
for i in range(4, 16, 2): pk("add", a0, a0, vU+2*i); pk("add", a1, a1, vU+2*i+2)
pk("add", a0, a0, a1); A(f"v_add_f32 v{a0}, v{a0}, v{a0+1}")
allred(a0, "v_add_f32", ["q1", "q2", "hm", "m", "p16"], a1)
A(f"v_mul_f32 v{mean}, 0x3a800000, v{a0}")
for i in range(16):
    acc = a0 if i % 2 == 0 else a1
    dd = vF + 2*(i % 4)
    pk("add", dd, vU+2*i, mean, None, NEG)
    if i < 2: pk("mul", acc, dd, dd)
    else: pk("fma", acc, dd, dd, acc)
pk("add", a0, a0, a1); A(f"v_add_f32 v{a0}, v{a0}, v{a0+1}")
allred(a0, "v_add_f32", ["q1", "q2", "hm", "m", "p16"], a1)
A(f"v_mul_f32 v{a0}, 0x3a800000, v{a0}\nv_cvt_pk_bf16_f32 v{a0}, v{a0}, v{mean}")
A(f"v_and_b32 v{mean}, s{sHI}, v{a0}\nv_lshlrev_b32 v{a0}, 16, v{a0}\nv_add_f32 v{a0}, 0x3727c5ac, v{a0}")
A(f"v_cvt_pk_bf16_f32 v{a0}, v{a0}, v{a0}\nv_lshlrev_b32 v{a0}, 16, v{a0}\nv_sqrt_f32 v{a0}, v{a0}")
A(f"v_cvt_pk_bf16_f32 v{a0}, v{a0}, v{a0}\nv_lshlrev_b32 v{a0}, 16, v{a0}\nv_rcp_f32 v{a0}, v{a0}")
norm(0)
A(f"s_setpc_b64 s[{sRA}:{sRA+1}]")

order = {0: "top common ln proj ld2 attn mlp", 1: "top common ld2 ln proj attn mlp"}[OPT["lay"]].split()
ALL = [x for n in order for x in SEC[n]] + ["L_codeend:"]
body, nadd = hz.pad("\n".join(ALL))
if STN: body += "\n; STAMPS start," + ",".join(STN) + ",end"
hdr = open(os.path.join(os.path.dirname(__file__), "header.txt")).read()
out = f"""{hdr}; @launch grid=(256,1,1) block=(448,1,1) lds={LDS_END}
.amdgcn_target "amdgcn-amd-amdhsa--gfx950"
.text
.globl {NAME}_kernel
.p2align 8
.type {NAME}_kernel,@function
{NAME}_kernel:
{body}
.section .rodata,"a"
.p2align 6
.amdhsa_kernel {NAME}_kernel
  .amdhsa_next_free_vgpr {NV}
  .amdhsa_next_free_sgpr 102
  .amdhsa_accum_offset {NV}
  .amdhsa_group_segment_fixed_size 0
  .amdhsa_kernarg_size 104
  .amdhsa_user_sgpr_count 2
  .amdhsa_user_sgpr_kernarg_segment_ptr 1
  .amdhsa_system_sgpr_workgroup_id_x 1
  .amdhsa_float_denorm_mode_32 3
.end_amdhsa_kernel
"""
open(sys.argv[1], "w").write(out)
print("NV", NV, "LDS", LDS_END, "nops added", nadd, file=sys.stderr)
```

```python
import sys, os
sys.path.insert(0, os.path.dirname(__file__))
import hz
NAME = "parallel_sum__sliding_block_cached__mixer_channel_mlp__decode"
OPT = dict(stamps=0, nt=1, spin=1 << 16, swave=0, Wk=20, Wv=20, Wkb=0, W1=20, Wo=20, W2=24, W2x=0,
           g1=80, g2=172, g4=108, cpf=1, dry=1, qmap=3, lay=0, loc4=1, pr4=1, rs4=2, pr1=0, pr2=0)
STN = None
for a in sys.argv[2:]:
    k, v = a.split("=")
    if k == "st": STN = v.split(","); OPT["stamps"] = 1
    elif k == "W":
        for kk in ("Wk", "Wv", "W1", "Wo", "W2"): OPT[kk] = int(v)
    else: OPT[k] = int(v)
NT = " nt" if OPT["nt"] else ""
SEC = {}; L = []
def sec(name):
    global L
    L = SEC.setdefault(name, [])
def A(s):
    for x in s.split("\n"): L.append("    " + x.strip() if not x.strip().endswith(":") else x.strip())
class Alloc:
    def __init__(s, start): s.n = start
    def __call__(s, cnt=1, al=1):
        s.n = (s.n + al - 1) // al * al
        r = s.n; s.n += cnt; return r
VA = Alloc(1)
def vr(r, n): return f"v[{r}:{r+n-1}]"
def srd(r): return f"s[{r}:{r+3}]"
sLive = 6
sX, sWQ, sK, sV, sW1, sWO, sW2 = range(8, 36, 4)
sB1, sWS = sWQ, sW1
(sx8, si32, sS, sCG2, sWave, sT, sT2, sT3, sT4, sT5, sT32, sT6, sHI, sSpin, sC63, sRetry, sW8, sGi, sNeed, sPB, sCnt, sM, sG, sR4) = range(36, 60)
sPub = sW8
sRA = 60; sMk = 62; sTgM, sTgR, sTgV, sRes = 32, 33, 34, 35
STB = 68
P1, P4, P2L, P2, P3, WSSZ = 0x10000, 0x40000, 0x60000, 0x100000, 0x200000, 0x400000
S0, S1, S2, S3, M = 0, 32768, 65536, 98304, 131072
XR, PX, XN, YN, QL = M, M + 4096, M + 8192, M + 9216, M + 10240
ML = QL + 2304; OL = ML + 256; HL = OL + 256; FLG = HL + 256
LDS_END = FLG + 256
LCO = 24
pX, pWQ, pW1, pK, pV, pWO, pW2, pEND = 0, 4, 36, 68, 100, 132, 164, 196
if OPT.get("bal"): pEND = 188
vLane, vG4, vN16, vJ, vTmp2, vTmp3 = [VA() for _ in range(6)]
aFL = VA(); aPW = VA()
aW = VA(4); aK = VA(4); aV = VA(2); aQ = VA(); aXB = VA(); aXW = VA(); aPj = VA(2)
vPub = VA(); vG1 = VA(); aQW = VA(); aPXW = VA(); aPXR = VA(); aMLW = VA(); aMLR = VA(); vS2o = VA(); vS2l = VA()
vG2 = VA(); vG2l = VA(); vP3 = VA(); aOLW = VA(); aOLR = VA(); vSig = VA(); vE = VA(4)
vP = VA(16, 4); vU = VA(32, 4); vS = VA(8, 4); vXB = VA(32, 4); vF = VA(32, 4); vAcc = VA(32, 4)
vQ = VA(16, 4); vG = VA(16, 4); vSm = VA(8, 2); vFl = VA(4, 2)
vKF = vXB
NV = (VA.n + 7) // 8 * 8
assert NV <= 256, NV
t0, t1, t2 = vS, vS+1, vS+2
nst = [0]; slots = {}
def stamp(name):
    if OPT["stamps"] and (name in STN or name in ("start", "end")):
        i = nst[0]; nst[0] += 1
        slots[name] = (i, 0 if name == "start" else (len(STN) + 1 if name == "end" else STN.index(name) + 1))
        assert STB + 2*i + 1 <= 101
        A(f"s_memrealtime s[{STB+2*i}:{STB+2*i+1}]")
lab = [0]
def newlab(p):
    lab[0] += 1; return f"L_{p}{lab[0]}"
DPP = dict(q1="quad_perm:[1,0,3,2]", q2="quad_perm:[2,3,0,1]", hm="row_half_mirror", m="row_mirror",
           r2="row_ror:2", r4="row_ror:4", r8="row_ror:8")
def allred(reg, op, steps, tmp):
    regs_ = reg if isinstance(reg, list) else [reg]
    tmps = tmp if isinstance(tmp, list) else [tmp]
    for st in steps:
        if st in DPP:
            for r in regs_: A(f"{op}_dpp v{r}, v{r}, v{r} {DPP[st]} row_mask:0xf bank_mask:0xf")
        else:
            ins = "v_permlane16_swap_b32" if st == "p16" else "v_permlane32_swap_b32"
            for r, t in zip(regs_, tmps): A(f"v_mov_b32 v{t}, v{r}")
            for r, t in zip(regs_, tmps): A(f"{ins} v{r}, v{t}")
            for r, t in zip(regs_, tmps): A(f"{op} v{r}, v{r}, v{t}")
def unpack(dlo, dhi, src): A(f"v_lshlrev_b32 v{dlo}, 16, v{src}\nv_and_b32 v{dhi}, s{sHI}, v{src}")
def pk(op, d, a, b, c=None, mods=""):
    A(f"v_pk_{op}_f32 {vr(d,2)}, {vr(a,2)}, {vr(b,2)}" + (f", {vr(c,2)}" if c is not None else "") + (" " + mods if mods else ""))
BC = "op_sel_hi:[1,0]"; BC3 = "op_sel_hi:[1,0,1]"; NEG = "op_sel_hi:[1,0] neg_lo:[0,1] neg_hi:[0,1]"
def setexec(m):
    lo, hi = m & 0xffffffff, (m >> 32) & 0xffffffff
    if lo == hi: A(f"s_and_b32 exec_lo, s{sLive}, {lo:#x}\ns_mov_b32 exec_hi, exec_lo")
    else: A(f"s_and_b32 exec_lo, s{sLive}, {lo:#x}\ns_and_b32 exec_hi, s{sLive}, {hi:#x}")
def fullexec(): A(f"s_mov_b64 exec, s[{sLive}:{sLive+1}]")
ABL = OPT.get("abl", 0)
def vm(s_):
    if ABL in (2, 3, 4) and "load" in s_: return
    if ABL == 7 and ("v{}".format(vG2) + "," in s_ or "v{}".format(vS2o) + "," in s_ or "v{}".format(vS2l) + "," in s_): return
    if ABL == 8 and "v{}".format(vG2) + "," in s_: return
    if ABL == 3 and "store" in s_: return
    if ABL == 4: s_ = s_.replace(" sc1", "")
    if ABL == 10 and ("v{}".format(vS2o) + "," in s_ or "v{}".format(vS2l) + "," in s_): s_ = s_.replace(" sc1", "")
    l = newlab("vm"); A(f"s_cbranch_execz {l}"); A(s_); A(f"{l}:")
def dry_on(): A(f"s_mov_b64 s[{sLive}:{sLive+1}], 0\ns_mov_b64 exec, 0")
def dry_off(): A(f"s_mov_b64 s[{sLive}:{sLive+1}], -1\ns_mov_b64 exec, -1")
def waitLC(base, sreg=None):
    l = newlab("lc")
    if sreg is None: A(f"s_movk_i32 s{sNeed}, {base}")
    else: A(f"s_add_u32 s{sNeed}, s{sreg}, {base}")
    A(f"{l}:\nds_read_b32 v{vFl}, v{aFL} offset:{LCO}\ns_waitcnt lgkmcnt(0)\nv_cmp_gt_i32 vcc, s{sNeed}, v{vFl}\ns_cbranch_vccnz {l}")
def signal(stage): A(f"v_mov_b32 v{vFl}, {stage}\nds_write_b32 v{aPW}, v{vFl}")
def pwtest(stage): A(f"v_min3_i32 v{vFl}, v{vFl}, v{vFl+1}, v{vFl+2}\nv_min_i32 v{vFl}, v{vFl}, v{vFl+3}\nv_cmp_gt_i32 vcc, {stage}, v{vFl}")
def waitPW(stage):
    l = newlab("pw")
    A(f"{l}:\nds_read_b128 {vr(vFl,4)}, v{aFL}\ns_waitcnt lgkmcnt(0)"); pwtest(stage); A(f"s_cbranch_vccnz {l}")
def waitMW(stage):
    l = newlab("mw")
    A(f"{l}:\nds_read_b64 {vr(vFl,2)}, v{aFL} offset:16\ns_waitcnt lgkmcnt(0)\nv_min_i32 v{vFl}, v{vFl}, v{vFl+1}\nv_cmp_gt_i32 vcc, {stage}, v{vFl}\ns_cbranch_vccnz {l}")
def LB(stage): signal(stage); waitPW(stage)
def orred(dst, regs_):
    regs_ = list(regs_)
    A(f"v_or3_b32 v{dst}, v{regs_[0]}, v{regs_[1]}, v{regs_[2]}"); r = 3
    while r + 1 < len(regs_):
        A(f"v_or3_b32 v{dst}, v{dst}, v{regs_[r]}, v{regs_[r+1]}"); r += 2
    if r < len(regs_): A(f"v_or_b32 v{dst}, v{dst}, v{regs_[r]}")
def retry_tail(name, reissue, inc, masked):
    A(f"v_cmp_ne_u32 vcc, 0, v{vS}\n" + ("s_branch" if ABL else "s_cbranch_vccz") + f" L_{name}ok")
    A(f"s_add_u32 s{sRetry}, s{sRetry}, {inc}\ns_sub_u32 s{sSpin}, s{sSpin}, 1\ns_cbranch_scc1 L_bail")
    if masked: A("s_mov_b64 exec, vcc")
    reissue()
    A(f"s_waitcnt vmcnt(0)\ns_branch L_{name}chk\nL_{name}ok:")
    if masked: fullexec()
def chk6(base, n, name, reissue, inc):
    A(f"L_{name}chk:")
    for r in range(n): A(f"v_xor_b32 v{base+r}, s{sT6}, v{base+r}")
    orred(vS, range(base, base + n))
    A(f"v_and_b32 v{vS}, 63, v{vS}")
    retry_tail(name, reissue, inc, False)
DUMP = OPT["stamps"] and "probe" not in OPT
def dump_stamps(pred, retry_slot):
    A("s_mov_b64 exec, 1\ns_load_dwordx2 s[4:5], s[0:1], 96")
    A(f"s_waitcnt lgkmcnt(0)\ns_lshl_b32 s{sT}, s2, 8\ns_add_u32 s4, s4, s{sT}\ns_addc_u32 s5, s5, 0\ns_add_u32 s4, s4, 0x8000000\ns_addc_u32 s5, s5, 0\nv_mov_b32 v{vS+2}, 0")
    for nm, (i, sl) in slots.items():
        if pred(nm):
            A(f"v_mov_b32 v{vS}, s{STB+2*i}\nv_mov_b32 v{vS+1}, s{STB+2*i+1}\nglobal_store_dwordx2 v{vS+2}, {vr(vS,2)}, s[4:5] offset:{8*sl}\ns_nop 1")
    if retry_slot is not None:
        A(f"v_mov_b32 v{vS}, s{sRetry}\nglobal_store_dword v{vS+2}, v{vS}, s[4:5] offset:{retry_slot}")
def probe_pad():
    k = slots[STN[0]][0]; l = newlab("pad")
    A(f"s_waitcnt lgkmcnt(0)\ns_sub_u32 s{sT}, s{STB+2*k}, s{STB}\ns_lshl_b32 s{sT}, s{sT}, 2\ns_add_u32 s{sT}, s{sT}, 2000")
    A(f"{l}:\ns_memrealtime s[4:5]\ns_waitcnt lgkmcnt(0)\ns_sub_u32 s4, s4, s{STB}\ns_cmp_lt_u32 s4, s{sT}\ns_cbranch_scc1 {l}")
def qidx(cg, ks, tmp):
    if OPT["qmap"] == 3:
        A(f"s_cmp_ge_u32 s{si32}, 14\ns_cselect_b32 s{ks}, 1, 0\ns_cselect_b32 s{tmp}, 14, 0\ns_sub_u32 s{cg}, s{si32}, s{tmp}")
        A(f"s_cmp_ge_u32 s{cg}, 10\ns_addc_u32 s{tmp}, s{cg}, 0\ns_cmp_ge_u32 s{cg}, 3\ns_addc_u32 s{cg}, s{tmp}, 0")
        A(f"s_and_b32 s{tmp}, s{si32}, 1\ns_lshl_b32 s{tmp}, s{tmp}, 3\ns_add_u32 s{tmp}, s{tmp}, 3\ns_bfe_u32 s{sCG2}, s{si32}, 0x10001")
        A(f"s_cmp_ge_u32 s{si32}, 28\ns_cselect_b32 s{cg}, s{tmp}, s{cg}\ns_cselect_b32 s{ks}, s{sCG2}, s{ks}")
    else:
        A(f"s_and_b32 s{cg}, s{si32}, 15\ns_lshr_b32 s{ks}, s{si32}, 4")
    A(f"s_lshr_b32 s{tmp}, s{sx8}, 1\ns_lshl_b32 s{tmp}, s{tmp}, 4\ns_add_u32 s{cg}, s{cg}, s{tmp}\ns_and_b32 s{tmp}, s{sx8}, 1\ns_lshl_b32 s{tmp}, s{tmp}, 1\ns_add_u32 s{ks}, s{ks}, s{tmp}")
def midx(cg, ks, tmp):
    A(f"s_mul_i32 s{cg}, s{sx8}, 7\ns_lshr_b32 s{tmp}, s{si32}, 2\ns_add_u32 s{cg}, s{cg}, s{tmp}\ns_add_u32 s{tmp}, s{sx8}, 56\ns_cmp_lt_u32 s{si32}, 28\ns_cselect_b32 s{cg}, s{cg}, s{tmp}\ns_and_b32 s{ks}, s{si32}, 3")

sec("top")
stamp("start")
A(f"s_load_dwordx2 s[{sX}:{sX+1}], s[0:1], 0\ns_load_dwordx2 s[{sWQ}:{sWQ+1}], s[0:1], 24\ns_load_dwordx2 s[{sMk}:{sMk+1}], s[0:1], 96")
A("s_cmp_ge_u32 s2, 256\ns_cbranch_scc1 L_end")
A(f"v_readfirstlane_b32 s{sWave}, v0\nv_and_b32 v{vLane}, 63, v0\nv_subrev_u32 v0, 64, v0")
if OPT["cpf"]:
    A(f"s_getpc_b64 s[4:5]\nL_pc:\nv_lshlrev_b32 v{vU}, 7, v0\nv_cmp_gt_u32 vcc, (L_codeend-L_pc)/128, v0\ns_and_saveexec_b64 s[{sLive}:{sLive+1}], vcc\ns_cbranch_execz L_nocpf")
    A(f"global_load_dword v{vU+1}, v{vU}, s[4:5]\nL_nocpf:")
dry_off()
A(f"s_and_b32 s{sx8}, s2, 7\ns_lshr_b32 s{si32}, s2, 3")
A(f"s_cmp_lg_u32 s{sWave}, 0\ns_cbranch_scc1 L_notloader")
lX, lT8, lT7, lK, lV, lC = vP, vP+1, vP+2, vP+4, vP+8, vP+10
A(f"s_movk_i32 s{sX+2}, 4096\ns_mov_b32 s{sX+3}, 0x20000\nv_lshlrev_b32 v{lX}, 4, v{vLane}")
A(f"v_lshrrev_b32 v{vTmp2}, 3, v{vLane}\nv_and_b32 v{vS}, 6, v{vTmp2}\nv_and_b32 v{vTmp3}, 7, v{vLane}\nv_xor_b32 v{vTmp3}, v{vTmp3}, v{vS}\nv_lshlrev_b32 v{vTmp3}, 4, v{vTmp3}")
A(f"v_lshl_add_u32 v{lT8}, v{vTmp2}, 13, v{vTmp3}")
A(f"s_mov_b32 s{sWQ+2}, {1<<23:#x}\ns_mov_b32 s{sWQ+3}, s{sX+3}")
qidx(sG, sT3, sT)
A(f"s_lshl_b32 s{sG}, s{sG}, 7\ns_lshl_b32 s{sT}, s{sT3}, 16\ns_add_u32 s{sG}, s{sG}, s{sT}")
A(f"s_mov_b32 m0, {XR}\ns_waitcnt lgkmcnt(0)")
stamp("l_karg")
for q in range(4): A(f"buffer_load_dwordx4 v{lX}, {srd(sX)}, 0 offen offset:{1024*q} lds")
curW = [36]
sThr = 3
def thr():
    if not OPT.get("thr") or curW[0] < OPT["thrW"]: return
    l = newlab("th")
    A(f"s_cmp_ge_i32 s{sCnt}, s{sThr}\ns_cbranch_scc1 {l}\ns_waitcnt vmcnt({OPT['thrW']-4})\ns_add_u32 s{sNeed}, s{sCnt}, {curW[0] - OPT['thrW'] + 4}\ns_max_i32 s{sPub}, s{sPub}, s{sNeed}\n{l}:")
def pub(): A(f"s_add_u32 s{sCnt}, s{sCnt}, 4\ns_max_i32 s{sPub}, s{sPub}, s{sCnt}\nv_mov_b32 v{lC}, s{sPub}\nds_write_b32 v{aFL}, v{lC} offset:{LCO}")
def trans(Wn):
    Wo = curW[0]; assert Wn % 4 == 0
    if Wn < Wo:
        for k in range(Wo - 4, Wn - 1, -4): A(f"s_waitcnt vmcnt({k})"); pub()
    elif Wn > Wo: A(f"s_sub_u32 s{sCnt}, s{sCnt}, {Wn - Wo}")
    curW[0] = Wn
def loop(n_end, body):
    l = newlab("ld"); A(f"{l}:"); body()
    A(f"s_cmp_lg_u32 s{sCnt}, {(n_end - curW[0]) & 0xffffffff}\ns_cbranch_scc1 {l}")
def aloop(n_end, body, Wb, stage):
    Wa = curW[0]
    if Wb <= Wa: loop(n_end, body); return
    la, ld = newlab("aa"), newlab("ad")
    if stage > 0: A(f"{la}:\nds_read_b128 {vr(vFl,4)}, v{aFL}")
    else: A(f"{la}:\nds_read_b64 {vr(vFl,2)}, v{aFL} offset:16")
    body()
    A(f"s_cmp_eq_u32 s{sCnt}, {(n_end - Wa) & 0xffffffff}\ns_cbranch_scc1 {ld}\ns_waitcnt lgkmcnt(1)")
    if stage > 0: pwtest(stage)
    else: A(f"v_min_i32 v{vFl}, v{vFl}, v{vFl+1}\nv_cmp_gt_i32 vcc, {-stage}, v{vFl}")
    A(f"s_cbranch_vccnz {la}")
    trans(Wb); loop(n_end, body); trans(Wa)
    A(f"{ld}:")
A(f"s_mov_b32 m0, {S0}\ns_mov_b32 s{sCnt}, 8\nL_pre:")
for q in range(4):
    A(f"buffer_load_dwordx4 v{lT8}, {srd(sWQ)}, s{sG} offen{NT} lds\ns_add_u32 m0, m0, 1024\ns_add_u32 s{sG}, s{sG}, {32*8192}")
A(f"s_sub_u32 s{sCnt}, s{sCnt}, 1\ns_cmp_lg_u32 s{sCnt}, 0\ns_cbranch_scc1 L_pre")
for r, off in ((sK, 8), (sV, 16), (sW1, 48), (sWO, 32), (sW2, 64)):
    A(f"s_load_dwordx2 s[{r}:{r+1}], s[0:1], {off}")
A(f"s_mov_b32 s{sPub}, 0\ns_mov_b32 s{sRetry}, 0\nv_mov_b32 v{aFL}, {FLG}\ns_setprio 3\ns_barrier")
trans(32)
stamp("l_x")
A("s_branch L_loader2")
sec("ld2")
A("L_loader2:")
A(f"v_lshrrev_b32 v{vG4}, 4, v{vLane}\nv_and_b32 v{vN16}, 15, v{vLane}")
A(f"v_mul_u32_u24 v{lT7}, 7168, v{vTmp2}\nv_add_u32 v{lT7}, v{lT7}, v{vTmp3}")
A(f"v_lshlrev_b32 v{vTmp2}, 8, v{vG4}\nv_xor_b32 v{vTmp3}, v{vN16}, v{vG4}\nv_lshl_add_u32 v{lK}, v{vTmp3}, 4, v{vTmp2}")
for q in (1, 2, 3): A(f"v_xor_b32 v{lK+q}, {64*q}, v{lK}")
A(f"v_xor_b32 v{vTmp3}, v{vN16}, v{vS}\nv_lshl_add_u32 v{lV}, v{vTmp3}, 4, v{vTmp2}\nv_xor_b32 v{lV+1}, 128, v{lV}")
A(f"s_mov_b32 s{sK+2}, {1<<25:#x}\ns_mov_b32 s{sV+2}, s{sK+2}\ns_mov_b32 s{sWO+2}, s{sWQ+2}")
for r in (sK, sV, sW1, sWO, sW2): A(f"s_mov_b32 s{r+3}, 0x20000")
A(f"s_cmp_lt_u32 s{si32}, 28\ns_cselect_b32 s{sW1+2}, {1024*7168}, {1024*7168 if OPT.get('bal') else 0}\ns_mov_b32 s{sW2+2}, s{sW1+2}")
sKV = sT4
A(f"s_and_b32 s{sKV}, s{sx8}, 1\ns_lshl_b32 s{sKV}, s{sKV}, 2\ns_lshr_b32 s{sT}, s{sx8}, 1\ns_add_u32 s{sKV}, s{sKV}, s{sT}\ns_lshl_b32 s{sKV}, s{sKV}, 22\ns_add_u32 s{sKV}, s{sKV}, 0x300000")
A(f"s_waitcnt lgkmcnt(0)\ns_load_dword s{sT32}, s[{sMk}:{sMk+1}], 0")
def kv_group(s_, voff, nreg):
    thr()
    A(f"s_and_b32 s{sM}, s{sM}, 0x1ffff\ns_add_u32 s{sG}, s{sT2}, s{sM}\ns_add_u32 s{sM}, s{sM}, {5*4096}\ns_add_u32 s{sT2}, s{sT2}, 131072")
    for q in range(4):
        A(f"s_waitcnt vmcnt({curW[0]-1})\nbuffer_load_dwordx4 v{voff + q % nreg}, {srd(s_)}, s{sG} offen offset:{1024*q}{NT} lds")
    A(f"s_add_u32 m0, m0, 4096")
    pub()
def w1_group():
    thr()
    for q in range(4):
        A(f"s_waitcnt vmcnt({curW[0]-1})\nbuffer_load_dwordx4 v{lT7}, {srd(sW1)}, s{sG} offen{NT} lds\ns_add_u32 m0, m0, 1024\ns_add_u32 s{sG}, s{sG}, {32*7168}")
    pub()
midx(sCG2, sT3, sT)
A(f"s_lshl_b32 s{sG}, s{sCG2}, 7\ns_mul_i32 s{sT}, s{sT3}, {8*7168}\ns_add_u32 s{sG}, s{sG}, s{sT}\ns_lshl_b32 s{sT3}, s{sT3}, 9\ns_mov_b32 m0, {S3}")
if OPT.get("thr"): A(f"s_lshr_b32 s{sThr}, {OPT['thr']}, s{sx8}\ns_bitcmp1_b32 s{sThr}, 0\ns_cselect_b32 s{sThr}, {OPT['thrN']}, -16")
trans(OPT["W1"])
loop(pK, w1_group)
stamp("l_W1")
trans(OPT["Wk"])
A(f"s_mov_b32 s{sT2}, s{sKV}\ns_lshl_b32 s{sM}, s{si32}, 12\ns_mov_b32 m0, {S1}")
aloop(pV, lambda: kv_group(sK, lK, 4), OPT["Wkb"], 2)
stamp("l_K")
A("s_waitcnt lgkmcnt(0)")
trans(OPT["Wv"])
A(f"s_mov_b32 s{sT2}, s{sKV}\ns_lshl_b32 s{sM}, s{si32}, 12")
loop(pWO, lambda: kv_group(sV, lV, 2))
stamp("l_V")
lF = lK
A(f"v_lshrrev_b32 v{vTmp2}, 5, v{vLane}\nv_and_b32 v{vTmp3}, 31, v{vLane}\nv_lshlrev_b32 v{lF}, 1, v{vTmp2}\nv_xor_b32 v{vTmp3}, v{vTmp3}, v{lF}\nv_lshlrev_b32 v{vTmp3}, 4, v{vTmp3}\nv_lshl_add_u32 v{lF}, v{vTmp2}, 11, v{vTmp3}")
for q in (1, 2, 3): A(f"v_xor_b32 v{lF+q}, {64*q}, v{lF}")
A(f"s_lshl_b32 s{sS}, s{sx8}, 5\ns_add_u32 s{sS}, s{sS}, s{si32}\ns_lshr_b32 s{sR4}, s{si32}, 2")
def fin_group(s_, slot, kshift):
    thr()
    A(f"s_add_u32 s{sM}, s{sGi}, s{sR4}\ns_and_b32 s{sM}, s{sM}, 3\ns_xor_b32 s{sT2}, s{sGi}, s{sR4}\ns_bfe_u32 s{sT2}, s{sT2}, 0x10002")
    A(f"s_lshl_b32 s{sG}, s{sT2}, {kshift}\ns_add_u32 s{sG}, s{sG}, s{sT}\ns_lshl_b32 s{sT5}, s{sM}, 14\ns_add_u32 s{sG}, s{sG}, s{sT5}")
    A(f"s_lshl_b32 s{sT2}, s{sT2}, 2\ns_add_u32 s{sM}, s{sM}, s{sT2}\ns_lshl_b32 s{sM}, s{sM}, 12\ns_add_u32 m0, s{sM}, {slot}\ns_add_u32 s{sGi}, s{sGi}, 1")
    for q in range(4):
        A(f"s_waitcnt vmcnt({curW[0]-1})\nbuffer_load_dwordx4 v{lF+q}, {srd(s_)}, s{sG} offen{NT} lds")
        if q < 3: A(f"s_add_u32 m0, m0, 1024\ns_add_u32 s{sG}, s{sG}, 4096")
    pub()
trans(OPT["Wo"])
waitPW(1)
A(f"s_lshr_b32 s{sT}, s{sS}, 4\ns_lshl_b32 s{sT}, s{sT}, 19\ns_and_b32 s{sT2}, s{sR4}, 3\ns_lshl_b32 s{sT2}, s{sT2}, 16\ns_add_u32 s{sT}, s{sT}, s{sT2}\ns_add_u32 s{sT}, s{sT}, s{sT3}\ns_mov_b32 s{sGi}, 0")
loop(pW2, lambda: fin_group(sWO, S0, 18))
stamp("l_WO")
trans(OPT["W2"])
waitPW(3)
if OPT.get("bal"): A(f"s_min_u32 s{sCG2}, s{sCG2}, 55")
A(f"s_lshl_b32 s{sT}, s{sCG2}, 17\ns_add_u32 s{sT}, s{sT}, s{sT3}\ns_mov_b32 s{sGi}, 0")
aloop(pEND, lambda: fin_group(sW2, S1, 16), OPT["W2x"], -2)
stamp("l_W2")
fWS, fB2, fOUT = sWQ, sK, sV
vOo, vG3 = vP+12, vP+13
A(f"s_load_dwordx2 s[{fB2}:{fB2+1}], s[0:1], 72\ns_load_dwordx2 s[{fOUT}:{fOUT+1}], s[0:1], 80")
A(f"s_mov_b32 s{fWS}, s{sMk}\ns_mov_b32 s{fWS+1}, s{sMk+1}\ns_mov_b32 s{fWS+2}, {WSSZ:#x}\ns_movk_i32 s{fB2+2}, 2048\ns_movk_i32 s{fOUT+2}, 4096")
A(f"v_and_b32 v{vTmp2}, 1, v{vLane}\nv_lshlrev_b32 v{vOo}, 3, v{vTmp2}\nv_lshrrev_b32 v{vTmp3}, 1, v{vLane}\nv_lshlrev_b32 v{vG3}, 4, v{vTmp2}\nv_lshl_add_u32 v{vG3}, v{vTmp3}, 11, v{vG3}")
sOo = sM
A(f"s_lshr_b32 s{sT}, s{sS}, 6\ns_lshl_b32 s{sT3}, s{sT}, 9\ns_and_b32 s{sT2}, s{sS}, 31\ns_lshl_b32 s{sT2}, s{sT2}, 4\ns_add_u32 s{sT3}, s{sT3}, s{sT2}")
A(f"s_bfe_u32 s{sT2}, s{sS}, 0x10005\ns_lshl_b32 s{sT2}, s{sT2}, 11\ns_add_u32 s{sOo}, s{sT3}, s{sT2}")
A(f"s_lshl_b32 s{sT}, s{sT}, 17\ns_and_b32 s{sT2}, s{sS}, 63\ns_lshl_b32 s{sT2}, s{sT2}, 5\ns_add_u32 s{sT}, s{sT}, s{sT2}\ns_add_u32 s{sT}, s{sT}, {P3:#x}\ns_add_u32 s{sT2}, s{sT}, 65536")
A(f"s_add_u32 s{sT32}, s{sT32}, 9\ns_and_b32 s{sT6}, s{sT32}, 0xfff\ns_mov_b32 s{sHI}, 0xffff0000\ns_mov_b32 s{sSpin}, {OPT['spin']}")
trans(0)
stamp("l_end")
if OPT.get("abl") and OPT["abl"] < 10: A("s_branch L_lend")
A("s_waitcnt lgkmcnt(0)")
A(f"buffer_load_dwordx2 {vr(vSm,2)}, v{vOo}, {srd(sX)}, s{sOo} offen\nbuffer_load_dwordx2 {vr(vSm+2,2)}, v{vOo}, {srd(fB2)}, s{sT3} offen")
if OPT.get("g3w"): waitPW(8)
if OPT.get("g3s"): A(f"s_sleep {OPT['g3s']}")
A("L_g3:")
for k, so in enumerate((sT, sT2)): A(f"buffer_load_dwordx4 {vr(vG+4*k,4)}, v{vG3}, {srd(fWS)}, s{so} offen sc1")
A(f"s_add_u32 s{sRetry}, s{sRetry}, 0x1000000\ns_sub_u32 s{sSpin}, s{sSpin}, 1\ns_cbranch_scc1 L_end\ns_waitcnt vmcnt(0)")
for r in range(8): A(f"v_xor_b32 v{vG+r}, s{sT6}, v{vG+r}")
orred(vS, range(vG, vG+8))
A(f"v_and_b32 v{vS}, 0xfff, v{vS}\nv_cmp_ne_u32 vcc, 0, v{vS}\ns_and_b64 exec, exec, vcc\ns_cbranch_scc1 L_g3\ns_mov_b64 exec, -1")
stamp("l_g3ok")
vH = vQ
pk("add", vG, vG, vG+4); pk("add", vG+2, vG+2, vG+6)
unpack(vH, vH+1, vSm); unpack(vH+2, vH+3, vSm+1)
A(f"v_permlane32_swap_b32 v{vG}, v{vG+2}\nv_permlane32_swap_b32 v{vG+1}, v{vG+3}")
unpack(vH+4, vH+5, vSm+2)
pk("add", vG, vG, vG+2)
unpack(vH+6, vH+7, vSm+3)
A(f"v_permlane16_swap_b32 v{vG}, v{vG+1}")
pk("add", vH, vH, vH+4)
A(f"v_add_f32 v{vG}, v{vG}, v{vG+1}")
pk("add", vH+2, vH+2, vH+6)
A(f"s_mov_b32 vcc_lo, 0xffff0000\ns_mov_b32 vcc_hi, 0xffff0000")
allred(vG, "v_add_f32", ["r2"], None)
A(f"v_cndmask_b32 v{vH}, v{vH}, v{vH+1}, vcc\nv_cndmask_b32 v{vH+2}, v{vH+2}, v{vH+3}, vcc")
allred(vG, "v_add_f32", ["r4"], None)
A(f"s_mov_b32 vcc_lo, 0\ns_mov_b32 vcc_hi, -1\nv_cndmask_b32 v{vH}, v{vH}, v{vH+2}, vcc")
allred(vG, "v_add_f32", ["r8"], None)
A(f"v_lshrrev_b32 v{vTmp2}, 4, v{vLane}\nv_lshl_add_u32 v{vOo}, v{vTmp2}, 1, v{vOo}")
A(f"v_add_f32 v{vH}, v{vH}, v{vG}\nv_cvt_pk_bf16_f32 v{vH}, v{vH}, v{vH}")
A("s_mov_b32 exec_lo, 0x00030003\ns_mov_b32 exec_hi, 0x00030003")
A(f"buffer_store_short v{vH}, v{vOo}, {srd(fOUT)}, s{sOo} offen" + (" sc1" if OPT.get("osc") else ""))
A(f"s_cmp_lg_u32 s2, 0\ns_cbranch_scc1 L_lend")
A(f"v_mov_b32 v{vS}, s{sT32}\nv_mov_b32 v{vS+1}, 0\ns_mov_b64 exec, 1\nbuffer_store_dword v{vS}, v{vS+1}, {srd(fWS)}, 0 offen" + (" sc1" if OPT.get("esc") else ""))
A("L_lend:")
stamp("l_fin")
if DUMP: dump_stamps(lambda n: n.startswith("l_") or (OPT.get("mini") and n == "start"), 8*30)
if "probe" in OPT and STN[0].startswith("l_"): probe_pad()
A("L_end:\ns_endpgm")
nst[0] = 1 if OPT["stamps"] else 0
sec("common")
A("L_notloader:")
j = vJ
A(f"v_mov_b32 v{aFL}, {FLG}\nv_mov_b32 v{vFl}, 0\nv_lshl_add_u32 v{aPW}, v{vLane}, 2, v{aFL}\nds_write_b32 v{aPW}, v{vFl}")
A(f"s_lshr_b32 s{sWave}, s{sWave}, 6\ns_sub_u32 s{sWave}, s{sWave}, 1\nv_lshrrev_b32 v{vJ}, 6, v0\nv_lshrrev_b32 v{vG4}, 4, v{vLane}")
A(f"s_waitcnt lgkmcnt(0)\ns_load_dword s{sT32}, s[{sMk}:{sMk+1}], 0\ns_mov_b32 s{sWS}, s{sMk}\ns_mov_b32 s{sWS+1}, s{sMk+1}\ns_barrier")
A(f"v_lshl_add_u32 v{aPW}, v{j}, 2, v{aFL}\nv_and_b32 v{vN16}, 15, v{vLane}")
A(f"s_mov_b32 s{sWS+2}, {WSSZ:#x}\ns_mov_b32 s{sWS+3}, 0x20000\ns_mov_b32 s{sHI}, 0xffff0000")
if OPT["dry"]:
    A(f"s_cmp_lt_u32 s{sWave}, 4\ns_cbranch_scc1 L_nodry1")
    dry_on()
    A(f"s_cmp_eq_u32 s{sWave}, 4\ns_cbranch_scc1 L_dry4\ns_call_b64 s[{sRA}:{sRA+1}], L_proj\ns_branch L_dry5\nL_dry4:\ns_call_b64 s[{sRA}:{sRA+1}], L_ln\nL_dry5:")
    dry_off()
    A("L_nodry1:")
if OPT.get("abl") == 1:
    A(f"v_mov_b32 v{vFl}, 100\nds_write_b32 v{aPW}, v{vFl}\ns_cmp_eq_u32 s{sWave}, 0\ns_cbranch_scc1 L_ablend\ns_endpgm")
A(f"s_mov_b32 s{sRetry}, 0\ns_mov_b32 s{sSpin}, {OPT['spin']}")
r_, c4 = vTmp2, vTmp3
A(f"v_lshrrev_b32 v{r_}, 2, v{vN16}\nv_and_b32 v{c4}, 3, v{vN16}\nv_lshlrev_b32 v{c4}, 3, v{c4}\nv_lshl_add_u32 v{r_}, v{vG4}, 2, v{r_}")
A(f"s_cmp_lt_u32 s{sWave}, 2\ns_cbranch_scc1 L_attn")
sCGp, sKSp = sCnt, sG
qidx(sCGp, sKSp, sT)
A(f"s_cmp_lt_u32 s{sWave}, 4\ns_cbranch_scc1 L_isq")
midx(sCGp, sKSp, sT)
A("L_isq:")
A(f"v_lshrrev_b32 v{t1}, 5, v{vLane}\nv_and_b32 v{t2}, 31, v{vLane}\nv_lshlrev_b32 v{t0}, 6, v{t2}\nv_lshl_add_u32 v{t0}, v{t1}, 11, v{t0}\nv_add_u32 v{t0}, {XR}, v{t0}\ns_lshl_b32 s{sT}, s{sKSp}, 4")
for t in range(4):
    A(f"v_add_u32 v{vXB+t}, s{sT}, v{t0}")
    if t < 3: A(f"s_add_u32 s{sT}, s{sT}, 16\ns_and_b32 s{sT}, s{sT}, 63")
A(f"s_cmp_lt_u32 s{sWave}, 4\ns_cselect_b32 s{sT2}, {S0}, {S3}\ns_cselect_b32 s{sPB}, {pWQ}, {pW1}\ns_cselect_b32 s{sT3}, 0, {YN-XN}\ns_cselect_b32 s{sT4}, 1, 0\ns_cselect_b32 s{sT5}, 14, 8\ns_add_u32 s{sT3}, s{sT3}, {XN}")
A(f"v_lshlrev_b32 v{aXW}, 4, v{t2}\nv_lshl_add_u32 v{aXW}, v{t1}, 9, v{aXW}\nv_add_u32 v{aXW}, s{sT3}, v{aXW}")
stamp("c_set")
waitLC(pX + 4)
for t in range(4): A(f"ds_read_b128 {vr(vP+4*t,4)}, v{vXB+t}")
stamp("x")
A(f"s_and_b32 s{sT}, s{sWave}, 1\ns_lshl_b32 s{sT}, s{sT}, 1\nv_bfe_u32 v{t1}, v{r_}, 1, 2\nv_xor_b32 v{t1}, s{sT}, v{t1}\nv_lshl_add_u32 v{aPj}, v{r_}, 7, v{c4}\nv_lshl_add_u32 v{aPj}, v{t1}, 5, v{aPj}")
A(f"v_add_u32 v{aPj}, s{sT2}, v{aPj}\nv_xor_b32 v{aPj+1}, 32, v{aPj}\nv_mov_b32 v{vSig}, s{sT4}")
A(f"v_and_b32 v{t0}, 1, v{vN16}\nv_lshlrev_b32 v{t1}, 3, v{vG4}\nv_lshl_add_u32 v{aXB}, v{t0}, 9, v{t1}\nv_add_u32 v{aXB}, s{sT3}, v{aXB}")
A(f"v_lshlrev_b32 v{vPub}, s{sT5}, v{t0}\nv_lshl_add_u32 v{vPub}, v{t1}, 1, v{vPub}\nv_bfe_u32 v{t0}, v{vN16}, 1, 1\nv_lshl_add_u32 v{vPub}, v{t0}, 6, v{vPub}\ns_lshl_b32 s{sT}, s{sT}, 6\nv_add_u32 v{vPub}, s{sT}, v{vPub}")
A(f"s_mov_b32 s{sMk}, 0x0c0c0c0c\ns_mov_b32 s{sMk+1}, s{sMk}")
A(f"s_waitcnt lgkmcnt(0)\ns_add_u32 s{sT32}, s{sT32}, 9\ns_and_b32 s{sT6}, s{sT32}, 63")
A(f"s_call_b64 s[{sRA}:{sRA+1}], L_ln")
A(f"s_cmp_lt_u32 s{sWave}, 4\ns_cbranch_scc0 L_mlp")
A(f"s_lshr_b32 s{sT3}, s{sCGp}, 4\ns_lshl_b32 s{sT3}, s{sT3}, 15\ns_and_b32 s{sT}, s{sCGp}, 15\ns_lshl_b32 s{sT}, s{sT}, 8\ns_add_u32 s{sT3}, s{sT3}, s{sT}")
A(f"s_lshl_b32 s{sT}, s{sKSp}, 12\ns_add_u32 s{sT3}, s{sT3}, s{sT}\ns_add_u32 s{sT3}, s{sT3}, {P1:#x}")
A(f"s_mov_b32 s{sTgM}, 63\ns_mov_b32 s{sTgR}, 32\ns_mov_b32 s{sTgV}, s{sT6}")
stamp("ln1")
A(f"s_call_b64 s[{sRA}:{sRA+1}], L_proj")
stamp("S1")
A("s_branch L_attn2")
sec("mlp")
A("L_mlp:")
mlp_first = nst[0]
def norm(q):
    a0, mean = vS, vS+6
    for i in range(4*q, 4*q+4): pk("add", vU+2*i, vU+2*i, mean, None, NEG)
    for i in range(4*q, 4*q+4): A(f"v_cvt_pk_bf16_f32 v{vP+i}, v{vU+2*i}, v{vU+2*i+1}")
    for i in range(4*q, 4*q+4): unpack(vU+2*i, vU+2*i+1, vP+i)
    for i in range(4*q, 4*q+4): pk("mul", vU+2*i, vU+2*i, a0, None, BC)
    for i in range(4*q, 4*q+4): A(f"v_cvt_pk_bf16_f32 v{vP+i}, v{vU+2*i}, v{vU+2*i+1}")
A(f"s_load_dwordx2 s[{sB1}:{sB1+1}], s[0:1], 56")
A(f"s_cmp_lt_u32 s{si32}, 28\ns_cselect_b32 s{sB1+2}, 7168, 0\ns_mov_b32 s{sB1+3}, 0x20000")
for q in (1, 2, 3): norm(q)
A(f"s_call_b64 s[{sRA}:{sRA+1}], L_ln")
A(f"s_lshl_b32 s{sM}, s{sCGp}, 11\ns_add_u32 s{sM}, s{sM}, {P4:#x}")
A(f"s_getreg_b32 s{sTgV}, hwreg(HW_REG_XCC_ID, 0, 3)\ns_and_b32 s{sT}, s{sT32}, 0x3f8\ns_or_b32 s{sTgV}, s{sTgV}, s{sT}\ns_movk_i32 s{sTgM}, 1023\ns_movk_i32 s{sTgR}, 512\ns_mov_b32 s{sRes}, 0")
stamp("m_ln2")
A(f"s_lshl_b32 s{sT}, s{sKSp}, 9\ns_add_u32 s{sT3}, s{sM}, s{sT}\ns_mov_b32 s{sGi}, s{sT3}")
A(f"s_call_b64 s[{sRA}:{sRA+1}], L_proj")
stamp("m_S4")
vG4o, vB1o, aHW = vG1, aQW, aPXW
sG4 = sPB + 0
A(f"s_and_b32 s{sT}, s{sWave}, 1\ns_lshl_b32 s{sT2}, s{sT}, 8\nv_lshlrev_b32 v{vB1o}, 3, v{vN16}\nv_lshlrev_b32 v{vG4o}, 9, v{vG4}\nv_lshl_add_u32 v{vG4o}, v{vN16}, 4, v{vG4o}\nv_add_u32 v{vG4o}, s{sT2}, v{vG4o}")
A(f"s_lshl_b32 s{sT}, s{sT}, 7\ns_add_u32 s{sT}, s{sT}, {HL}\nv_and_b32 v{t0}, 3, v{vN16}\nv_lshlrev_b32 v{t0}, 4, v{t0}\nv_bfe_u32 v{t1}, v{vN16}, 2, 1\nv_lshl_add_u32 v{t0}, v{t1}, 3, v{t0}\nv_lshrrev_b32 v{t1}, 3, v{vN16}\nv_lshl_add_u32 v{t0}, v{t1}, 6, v{t0}\nv_add_u32 v{aHW}, s{sT}, v{t0}")
A(f"s_lshl_b32 s{sT}, s{sCGp}, 7\ns_waitcnt lgkmcnt(0)\nbuffer_load_dwordx2 {vr(vSm,2)}, v{vB1o}, {srd(sB1)}, s{sT} offen")
A(f"v_lshrrev_b32 v{t0}, 3, v{vLane}\nv_and_b32 v{t1}, 7, v{vLane}\nv_lshlrev_b32 v{t2}, 4, v{t1}\nv_lshl_add_u32 v{vG2}, v{t0}, 11, v{t2}")
A(f"v_lshrrev_b32 v{t1}, 2, v{t1}\nv_lshlrev_b32 v{t1}, 3, v{t1}\nv_lshl_add_u32 v{vG2l}, v{t0}, 7, v{t1}")
A(f"v_lshl_add_u32 v{aOLW}, v{t0}, 1, v{t2}\ns_and_b32 s{sT}, s{sWave}, 1\ns_lshl_b32 s{sT}, s{sT}, 7\ns_add_u32 s{sT}, s{sT}, {OL}\nv_add_u32 v{aOLW}, s{sT}, v{aOLW}")
A(f"v_and_b32 v{t0}, 7, v{vLane}\nv_xor_b32 v{t0}, s{sT32}, v{t0}")
for k in range(4): A(f"v_bfe_u32 v{vE+k}, v{t0}, {k}, 1")
A(f"s_lshl_b32 s{sS}, s{sx8}, 5\ns_add_u32 s{sS}, s{sS}, s{si32}")
if OPT["dry"]:
    dry_on(); A("s_branch L_mtail\nL_mreal:"); dry_off()
A("L_mtail:")
vM, vL = vS, vS+1
vZ = vSm
def g2():
    vm("\n".join(f"buffer_load_dwordx4 {vr(vG+4*k,4)}, v{vG2}, {srd(sWS)}, s{so} offen sc1" for k, so in enumerate((sT, sT2, sT3, sT4))) + "\n" +
       "\n".join(f"buffer_load_dwordx2 {vr(vZ+2*k,2)}, v{vG2l}, {srd(sWS)}, s{sT5} offen offset:{1024*k} sc1" for k in range(4)))
A(f"s_and_b32 s{sT5}, s{sx8}, 6\ns_and_b32 s{sT}, s{sWave}, 1\ns_add_u32 s{sT5}, s{sT5}, s{sT}\ns_lshl_b32 s{sT}, s{sT5}, 16\ns_lshl_b32 s{sT5}, s{sT5}, 12")
A(f"s_bfe_u32 s{sT2}, s{sS}, 0x20002\ns_lshl_b32 s{sT2}, s{sT2}, 9\ns_add_u32 s{sT}, s{sT}, s{sT2}\ns_bfe_u32 s{sT2}, s{sS}, 0x20004\ns_lshl_b32 s{sT3}, s{sT2}, 7\ns_add_u32 s{sT}, s{sT}, s{sT3}\ns_add_u32 s{sT}, s{sT}, {P2:#x}")
A(f"s_lshl_b32 s{sT2}, s{sT2}, 4\ns_add_u32 s{sT5}, s{sT5}, s{sT2}\ns_add_u32 s{sT5}, s{sT5}, {P2L:#x}")
A(f"s_add_u32 s{sT2}, s{sT}, 16384\ns_add_u32 s{sT3}, s{sT}, 32768\ns_add_u32 s{sT4}, s{sT}, 49152")
waitLC(OPT["g4"])

stamp("m_g4i")
def g4(): vm(f"buffer_load_dwordx4 {vr(vQ,4)}, v{vG4o}, {srd(sWS)}, s{sM} offen sc1")
g4()
vm("s_waitcnt vmcnt(0)")
unpack(vU+8, vU+9, vSm); unpack(vU+10, vU+11, vSm+1)
def restore4():
    l = newlab("rs")
    A(f"s_cmp_lg_u32 s{sRes}, 0\ns_cbranch_scc1 {l}\ns_mov_b32 s{sRes}, 1")
    setexec(0x000f000f000f000f)
    vm(f"buffer_store_dwordx4 {vr(vAcc,4)}, v{vPub}, {srd(sWS)}, s{sGi} offen sc1")
    fullexec()
    A(f"{l}:")
def g4retry():
    if OPT["loc4"]:
        l = newlab("nr")
        A(f"s_bfe_u32 s{sNeed}, s{sRetry}, 0x80010\ns_cmp_lt_u32 s{sNeed}, {OPT['rs4']}\ns_cbranch_scc1 {l}")
        restore4(); A(f"{l}:")
    g4()
A("L_g4chk:")
for r in range(4): A(f"v_xor_b32 v{vQ+r}, s{sTgV}, v{vQ+r}")
orred(vS+1, range(vQ, vQ+4))
A(f"v_and_b32 v{vS}, 0x3f8, v{vS+1}")
retry_tail("g4", g4retry, 0x10000, False)
if OPT["loc4"]:
    A(f"v_and_b32 v{vS}, 7, v{vS+1}\nv_cmp_ne_u32 vcc, 0, v{vS}\ns_cbranch_vccz L_alllocal")
    restore4()
    A("L_alllocal:")
stamp("m_g4ok")
vH = vQ
allred([vH, vH+1, vH+2, vH+3], "v_add_f32", ["p16", "p32"], [vH+4, vH+5, vH+6, vH+7])
A(f"v_cvt_pk_bf16_f32 v{vH+4}, v{vH}, v{vH+1}\nv_cvt_pk_bf16_f32 v{vH+5}, v{vH+2}, v{vH+3}")
unpack(vH, vH+1, vH+4); unpack(vH+2, vH+3, vH+5)
pk("add", vH, vH, vU+8); pk("add", vH+2, vH+2, vU+10)
A(f"v_cvt_pk_bf16_f32 v{vH+4}, v{vH}, v{vH+1}\nv_cvt_pk_bf16_f32 v{vH+5}, v{vH+2}, v{vH+3}")
unpack(vH, vH+1, vH+4); unpack(vH+2, vH+3, vH+5)
pk("mul", vH+4, vH, vH); pk("mul", vH+6, vH+2, vH+2)
for r in range(4): A(f"v_mul_f32 v{vH+4+r}, 0xbdd2d3e8, v{vH+4+r}")
for r in range(4): A(f"v_add_f32 v{vH+4+r}, 0xc0135761, v{vH+4+r}")
pk("mul", vH+4, vH+4, vH); pk("mul", vH+6, vH+6, vH+2)
for r in range(4): A(f"v_exp_f32 v{vH+4+r}, v{vH+4+r}")
for r in range(4): A(f"v_add_f32 v{vH+4+r}, 1.0, v{vH+4+r}")
for r in range(4): A(f"v_rcp_f32 v{vH+4+r}, v{vH+4+r}")
pk("mul", vH, vH, vH+4); pk("mul", vH+2, vH+2, vH+6)
A(f"v_cvt_pk_bf16_f32 v{vH}, v{vH}, v{vH+1}\nv_cvt_pk_bf16_f32 v{vH+1}, v{vH+2}, v{vH+3}")
A(f"ds_write_b64 v{aHW}, {vr(vH,2)}")
signal(1)
stamp("m_h")
waitLC(OPT["g2"])
stamp("m_g2i")
g2()
signal(2)
A("s_waitcnt vmcnt(0)")
stamp("m_g2a")
A("L_g2chk:")
for t in range(4):
    for k in range(4): A(f"v_xor_b32 v{vG+4*t+k}, v{vE+k}, v{vG+4*t+k}")
for t in range(4): A(f"v_xor_b32 v{vZ+2*t+1}, s{sT32}, v{vZ+2*t+1}")
orred(vS, range(vG, vG+16))
A(f"v_or3_b32 v{vS+1}, v{vZ+1}, v{vZ+3}, v{vZ+5}\nv_and_b32 v{vS}, 1, v{vS}\nv_or3_b32 v{vS}, v{vS}, v{vS+1}, v{vZ+7}")
retry_tail("g2", g2, 0x100, False)
stamp("m_g2ok")
ls = lambda t: vZ + 2*t
A(f"v_max3_f32 v{vM}, v{ls(0)}, v{ls(1)}, v{ls(2)}\nv_max_f32 v{vM}, v{vM}, v{ls(3)}")
up = [(vU + 8*t + 2*k, vG + 4*t + k) for t in range(4) for k in range(4)]
def ups(n):
    for _ in range(n):
        d, s_ = up.pop(0); unpack(d, d+1, s_)
ups(1); allred(vM, "v_max_f32", ["r8"], None)
A(f"v_mov_b32 v{vS+2}, v{vM}"); ups(1); A(f"v_permlane16_swap_b32 v{vM}, v{vS+2}\nv_max_f32 v{vM}, v{vM}, v{vS+2}")
A(f"v_mov_b32 v{vS+2}, v{vM}"); ups(1); A(f"v_permlane32_swap_b32 v{vM}, v{vS+2}\nv_max_f32 v{vM}, v{vM}, v{vS+2}")
for t in range(4): A(f"v_sub_f32 v{ls(t)}, v{ls(t)}, v{vM}")
for t in range(4): A(f"v_exp_f32 v{ls(t)}, v{ls(t)}")
ups(13)
A(f"v_add_f32 v{vL}, v{ls(0)}, v{ls(1)}\nv_add_f32 v{vS+2}, v{ls(2)}, v{ls(3)}\nv_add_f32 v{vL}, v{vL}, v{vS+2}")
for h in (0, 2, 4, 6): pk("mul", vU+h, vU+h, ls(0), None, BC)
allred(vL, "v_add_f32", ["r8"], None)
for h in (0, 2, 4, 6): pk("fma", vU+h, vU+8+h, ls(1), vU+h, BC3)
A(f"v_mov_b32 v{vS+2}, v{vL}")
for h in (0, 2, 4, 6): pk("fma", vU+h, vU+16+h, ls(2), vU+h, BC3)
A(f"v_permlane16_swap_b32 v{vL}, v{vS+2}\nv_add_f32 v{vL}, v{vL}, v{vS+2}\nv_mov_b32 v{vS+2}, v{vL}")
for h in (0, 2, 4, 6): pk("fma", vU+h, vU+24+h, ls(3), vU+h, BC3)
A(f"v_permlane32_swap_b32 v{vL}, v{vS+2}\nv_add_f32 v{vL}, v{vL}, v{vS+2}")
for k in range(4): A(f"v_permlane32_swap_b32 v{vU+k}, v{vU+4+k}")
A(f"v_rcp_f32 v{vL}, v{vL}")
pk("add", vU, vU, vU+4); pk("add", vU+2, vU+2, vU+6)
A(f"s_mov_b32 vcc_lo, 0xff00ff00\ns_mov_b32 vcc_hi, vcc_lo")
A(f"v_permlane16_swap_b32 v{vU}, v{vU+2}\nv_permlane16_swap_b32 v{vU+1}, v{vU+3}")
pk("add", vU, vU, vU+2)
A(f"v_cndmask_b32 v{vU+2}, v{vU}, v{vU+1}, vcc\nv_cndmask_b32 v{vU+3}, v{vU+1}, v{vU}, vcc")
A(f"v_add_f32_dpp v{vU+2}, v{vU+3}, v{vU+2} row_ror:8 row_mask:0xf bank_mask:0xf")
A(f"v_mul_f32 v{vU+2}, v{vU+2}, v{vL}\nv_cvt_pk_bf16_f32 v{vU+2}, v{vU+2}, v{vU+2}\nds_write_b16 v{aOLW}, v{vU+2}")
signal(3)
if OPT["dry"]: A("s_cbranch_execz L_mreal")
stamp("m_o")
if DUMP and not OPT.get("mini"):
    A(f"s_cmp_lg_u32 s{sWave}, 4\ns_cbranch_scc1 L_end"); dump_stamps(lambda n: n.startswith("m_"), 8*31+4)
if "probe" in OPT and STN[0].startswith("m_"): probe_pad()
A("s_endpgm")
nst[0] = mlp_first
sec("attn")
A("L_attn:")
signal(1)
A(f"s_waitcnt lgkmcnt(0)\ns_add_u32 s{sT32}, s{sT32}, 9\ns_and_b32 s{sT6}, s{sT32}, 63")
A("L_attn2:")
A(f"s_lshl_b32 s{sS}, s{sx8}, 5\ns_add_u32 s{sS}, s{sS}, s{si32}\ns_lshl_b32 s{sW8}, s{sWave}, 3\ns_add_u32 s{sW8}, s{sW8}, 8")
A(f"s_bfe_u32 s{sR4}, s{si32}, 0x10004\ns_lshl_b32 s{sT}, s{sR4}, 14")
A(f"v_and_b32 v{t0}, 7, v{r_}\nv_lshlrev_b32 v{t2}, 2, v{j}\nv_xor_b32 v{t1}, v{t0}, v{t2}\nv_lshl_add_u32 v{aW}, v{r_}, 9, v{c4}\nv_lshl_add_u32 v{aW}, v{t1}, 5, v{aW}\nv_add_u32 v{aW}, s{sT}, v{aW}")
for ct in (1, 2, 3): A(f"v_xor_b32 v{aW+ct}, {32*ct}, v{aW}")
A(f"v_lshlrev_b32 v{t2}, 1, v{j}\nv_xor_b32 v{t1}, v{t0}, v{t2}\nv_lshl_add_u32 v{aV}, v{r_}, 8, v{c4}\nv_lshl_add_u32 v{aV}, v{t1}, 5, v{aV}\nv_add_u32 v{aV}, {S2}, v{aV}\nv_xor_b32 v{aV+1}, 32, v{aV}")
A(f"v_xor_b32 v{t1}, v{vG4}, v{vN16}\nv_lshlrev_b32 v{t1}, 4, v{t1}\nv_lshl_add_u32 v{t1}, v{vN16}, 8, v{t1}\nv_lshl_add_u32 v{t1}, v{j}, 13, v{t1}\nv_add_u32 v{aK}, {S1}, v{t1}")
for s_ in (1, 2, 3): A(f"v_xor_b32 v{aK+s_}, {64*s_}, v{aK}")
A(f"v_and_b32 v{t1}, 7, v{vN16}\nv_mul_u32_u24 v{aQ}, 272, v{t1}\nv_lshl_add_u32 v{aQ}, v{vG4}, 4, v{aQ}\nv_add_u32 v{aQ}, {QL}, v{aQ}")
A(f"v_lshlrev_b32 v{vS2l}, 3, v{t1}\nv_add_u32 v{aMLR}, {ML}, v{vS2l}\nv_lshl_add_u32 v{aMLW}, v{j}, 6, v{aMLR}")
A(f"v_lshlrev_b32 v{vS2o}, 6, v{t1}\nv_lshl_add_u32 v{vS2o}, v{j}, 9, v{vS2o}\nv_lshl_add_u32 v{vS2o}, v{vG4}, 4, v{vS2o}")
A(f"v_lshlrev_b32 v{vG1}, 4, v0\nv_add_u32 v{aPXW}, {PX}, v{vG1}\nv_lshlrev_b32 v{aPXR}, 4, v{vLane}\nv_add_u32 v{aPXR}, {PX}, v{aPXR}")
A(f"v_lshrrev_b32 v{t1}, 5, v0\nv_and_b32 v{t2}, 31, v0\nv_mul_u32_u24 v{aQW}, 272, v{t1}\nv_lshl_add_u32 v{aQW}, v{t2}, 3, v{aQW}\nv_add_u32 v{aQW}, {QL}, v{aQW}")
A(f"v_and_b32 v{t1}, 1, v{vLane}\nv_lshlrev_b32 v{aOLR}, 4, v{vG4}\nv_lshl_add_u32 v{aOLR}, v{t1}, 7, v{aOLR}\ns_lshl_b32 s{sT}, s{sR4}, 6\ns_add_u32 s{sT}, s{sT}, {OL}\nv_add_u32 v{aOLR}, s{sT}, v{aOLR}")
A(f"v_lshlrev_b32 v{vP3}, 10, v{t1}\nv_lshl_add_u32 v{vP3}, v{j}, 8, v{vP3}\nv_lshl_add_u32 v{vP3}, v{vG4}, 4, v{vP3}\nv_bfe_u32 v{t2}, v{vLane}, 1, 2\nv_lshl_add_u32 v{vP3}, v{t2}, 6, v{vP3}")
for i, mk in enumerate((0x0c0c0c0c, 0x30303030, 0xc0c0c0c0)):
    A(f"s_mov_b32 s{sMk+2*i}, {mk:#x}\ns_mov_b32 s{sMk+2*i+1}, s{sMk+2*i}")
A(f"v_and_b32 v{t0}, 1, v{vLane}\nv_lshl_add_u32 v{t0}, v{t0}, 2, v{vG4}\nv_xor_b32 v{t0}, s{sT32}, v{t0}")
for k in range(4): A(f"v_bfe_u32 v{vE+k}, v{t0}, {k}, 1")
if OPT["pr2"]:
    A(f"s_cmp_lg_u32 s{sWave}, 1\ns_cbranch_scc1 L_nopr2")
    A(f"s_and_b32 s{sT5}, s{sx8}, 6\ns_lshl_b32 s{sT}, s{sT5}, 16\ns_bfe_u32 s{sT2}, s{sS}, 0x20002\ns_lshl_b32 s{sT2}, s{sT2}, 9\ns_add_u32 s{sT}, s{sT}, s{sT2}\ns_bfe_u32 s{sT2}, s{sS}, 0x20004\ns_lshl_b32 s{sT2}, s{sT2}, 7\ns_add_u32 s{sT}, s{sT}, s{sT2}")
    A(f"s_and_b32 s{sT2}, s{si32}, 3\ns_lshl_b32 s{sT2}, s{sT2}, 15\ns_add_u32 s{sT}, s{sT}, s{sT2}\ns_add_u32 s{sT}, s{sT}, {P2:#x}")
    A(f"s_lshl_b32 s{sT5}, s{sT5}, 12\ns_lshl_b32 s{sT2}, s{si32}, 8\ns_add_u32 s{sT5}, s{sT5}, s{sT2}\ns_add_u32 s{sT5}, s{sT5}, {P2L:#x}")
    A(f"v_lshrrev_b32 v{t0}, 1, v{vLane}\nv_and_b32 v{t1}, 1, v{vLane}\nv_lshlrev_b32 v{t1}, 6, v{t1}\nv_lshl_add_u32 v{t0}, v{t0}, 11, v{t1}\nv_lshlrev_b32 v{t1}, 7, v{vLane}")
    A(f"s_mov_b64 exec, 0xffffffff\nbuffer_load_dword v{vU+3}, v{t0}, {srd(sWS)}, s{sT} offen sc1\ns_mov_b64 exec, 3\nbuffer_load_dword v{vU+4}, v{t1}, {srd(sWS)}, s{sT5} offen sc1\ns_mov_b64 exec, -1\nL_nopr2:")
if OPT["pr1"]:
    A(f"s_cmp_lg_u32 s{sWave}, 0\ns_cbranch_scc1 L_nopr\ns_lshl_b32 s{sT}, s{sS}, 9\ns_add_u32 s{sT}, s{sT}, {P1:#x}\nv_lshlrev_b32 v{t0}, 6, v{vLane}\ns_mov_b64 exec, 0xff")
    A(f"buffer_load_dword v{vU+3}, v{t0}, {srd(sWS)}, s{sT} offen sc1\ns_mov_b64 exec, -1\nL_nopr:")
if OPT["dry"]:
    A(f"s_cmp_ge_u32 s{sWave}, 2\ns_cbranch_scc1 L_partA")
    dry_on()
    A(f"s_cmp_eq_u32 s{sWave}, 1\ns_cbranch_scc1 L_partB\ns_branch L_partA\nL_areal:")
    dry_off()
A("L_partA:")
A(f"s_lshl_b32 s{sT}, s{sx8}, 14\ns_add_u32 s{sT}, s{sT}, {P1:#x}\ns_add_u32 s{sT2}, s{sT}, 4096\ns_add_u32 s{sT3}, s{sT}, 8192\ns_add_u32 s{sT4}, s{sT}, 12288")
def g1():
  if ABL != 6: vm("\n".join(f"buffer_load_dwordx4 {vr(vG+4*k,4)}, v{vG1}, {srd(sWS)}, s{so} offen sc1" for k, so in enumerate((sT, sT2, sT3, sT4))))
def kfrags():
    waitLC(pK, sW8)
    for T in range(2):
        for s_ in range(4): A(f"ds_read_b128 {vr(vKF+16*T+4*s_,4)}, v{aK+s_} offset:{4096*T}")
waitLC(OPT["g1"])
stamp("g1i")
g1()
signal(2)
A(f"v_mov_b32 v{vS+4}, 0x3db504f3\nv_mov_b32 v{vS+6}, 0x3fb8aa3b")
A("s_waitcnt vmcnt(0)")
stamp("g1a")
chk6(vG, 16, "g1", g1, 1)
stamp("g1ok")
pk("add", vG, vG, vG+4); pk("add", vG+8, vG+8, vG+12); pk("add", vG+2, vG+2, vG+6); pk("add", vG+10, vG+10, vG+14)
pk("add", vG, vG, vG+8); pk("add", vG+2, vG+2, vG+10)
A(f"v_cvt_pk_bf16_f32 v{vG}, v{vG}, v{vG+1}\nv_cvt_pk_bf16_f32 v{vG+1}, v{vG+2}, v{vG+3}\nds_write_b64 v{aQW}, {vr(vG,2)}")
signal(2)
kfrags()
LB(4)
stamp("lb3")
for s_ in range(4): A(f"ds_read_b128 {vr(vQ+4*s_,4)}, v{aQ} offset:{64*s_}")
for s_ in range(4):
    A(f"s_waitcnt lgkmcnt({3-s_})")
    for T in range(2):
        c = "0" if s_ == 0 else vr(vU+4*T, 4)
        A(f"v_mfma_f32_16x16x32_bf16 {vr(vU+4*T,4)}, {vr(vKF+16*T+4*s_,4)}, {vr(vQ+4*s_,4)}, {c}")
vM, vL = vS, vS+1
for p in range(4): A(f"v_cvt_pk_bf16_f32 v{vU+8+p}, v{vU+2*p}, v{vU+2*p+1}")
for p in range(4): unpack(vU+2*p, vU+2*p+1, vU+8+p)
for p in range(4): pk("mul", vU+2*p, vU+2*p, vS+4, None, BC)
for p in range(4): A(f"v_cvt_pk_bf16_f32 v{vU+8+p}, v{vU+2*p}, v{vU+2*p+1}")
for p in range(4): unpack(vU+2*p, vU+2*p+1, vU+8+p)
A(f"v_max3_f32 v{vM}, v{vU}, v{vU+1}, v{vU+2}\nv_max3_f32 v{vS+2}, v{vU+3}, v{vU+4}, v{vU+5}\nv_max3_f32 v{vM}, v{vM}, v{vU+6}, v{vU+7}\nv_max_f32 v{vM}, v{vM}, v{vS+2}")
allred(vM, "v_max_f32", ["p16", "p32"], vS+2)
A(f"v_mul_f32 v{vM}, v{vM}, v{vS+6}")
for p in range(4): pk("fma", vU+2*p, vU+2*p, vS+6, vM, "op_sel_hi:[1,0,0] neg_lo:[0,0,1] neg_hi:[0,0,1]")
for r in range(8): A(f"v_exp_f32 v{vU+r}, v{vU+r}")
for p in range(4): A(f"v_cvt_pk_bf16_f32 v{vU+8+p}, v{vU+2*p}, v{vU+2*p+1}")
A(f"ds_write_b128 v{aPXW}, {vr(vU+8,4)}")
pk("add", vU, vU, vU+2); pk("add", vU+4, vU+4, vU+6); pk("add", vU, vU, vU+4)
A(f"v_add_f32 v{vL}, v{vU}, v{vU+1}")
allred(vL, "v_add_f32", ["p16", "p32"], vS+2)
A(f"ds_write_b64 v{aMLW}, {vr(vM,2)}")
signal(5)
stamp("sm")
waitLC(pWO)
for w in range(4):
    for d in range(2):
        f = vF + 8*w + 4*d
        A(f"ds_read_b64_tr_b16 {vr(f,2)}, v{aV+d} offset:{8192*w}\nds_read_b64_tr_b16 {vr(f+2,2)}, v{aV+d} offset:{8192*w + 4096}")
A(f"s_lshl_b32 s{sT}, s{sS}, 11\ns_add_u32 s{sT}, s{sT}, {P2:#x}\ns_lshl_b32 s{sT2}, s{sS}, 7\ns_add_u32 s{sT2}, s{sT2}, {P2L:#x}\ns_mov_b32 s{sT3}, 0xfffe0000\ns_mov_b32 s{sT4}, 0x10000")
waitPW(5)
stamp("lb4")
for w in range(4): A(f"ds_read_b128 {vr(vQ+4*w,4)}, v{aPXR} offset:{1024*w}")
for w in range(4): A(f"ds_read_b64 {vr(vU+16+2*w,2)}, v{aMLR} offset:{64*w}")
for w in range(4):
    A(f"s_waitcnt lgkmcnt({7-w})")
    for d in range(2): A(f"v_mfma_f32_16x16x32_bf16 {vr(vAcc+8*w+4*d,4)}, {vr(vF+8*w+4*d,4)}, {vr(vQ+4*w,4)}, 0")
A("s_waitcnt lgkmcnt(0)")
m = lambda w: vU + 16 + 2*w
A(f"v_max3_f32 v{vM}, v{m(0)}, v{m(1)}, v{m(2)}\nv_max_f32 v{vM}, v{vM}, v{m(3)}")
for w in range(4): A(f"v_sub_f32 v{m(w)}, v{m(w)}, v{vM}")
for w in range(4): A(f"v_exp_f32 v{m(w)}, v{m(w)}")
A(f"v_mul_f32 v{vL}, v{m(0)}, v{m(0)+1}")
for w in range(1, 4): A(f"v_fmac_f32 v{vL}, v{m(w)}, v{m(w)+1}")
A(f"v_rcp_f32 v{vS+2}, v{vL}\nv_log_f32 v{vS+3}, v{vL}")
for w in range(4): A(f"v_mul_f32 v{m(w)}, v{m(w)}, v{vS+2}")
for h in (0, 2, 4, 6): pk("mul", vAcc+h, vAcc+h, m(0), None, BC)
for w in range(1, 4):
    for h in (0, 2, 4, 6): pk("fma", vAcc+h, vAcc+8*w+h, m(w), vAcc+h, BC3)
for k in range(4): A(f"v_add_u32 v{vAcc+2*k}, s{sT4}, v{vAcc+2*k}")
for k in range(4): A(f"v_and_b32 v{vAcc+2*k}, s{sT3}, v{vAcc+2*k}")
for k in range(4): A(f"v_cvt_pk_bf16_f32 v{vU+k}, v{vAcc+2*k}, v{vAcc+2*k+1}")
for k in range(4): A(f"v_or_b32 v{vU+k}, v{vE+k}, v{vU+k}")
A(f"v_add_f32 v{vU+4}, v{vM}, v{vS+3}\nv_mov_b32 v{vU+5}, s{sT32}")
setexec(0x00ff00ff00ff00ff)
vm(f"buffer_store_dwordx4 {vr(vU,4)}, v{vS2o}, {srd(sWS)}, s{sT} offen sc1")
A(f"s_cmp_lg_u32 s{sWave}, 0\ns_cbranch_scc1 L_nolse")
setexec(0xff)
vm(f"buffer_store_dwordx2 {vr(vU+4,2)}, v{vS2l}, {srd(sWS)}, s{sT2} offen sc1")
A("L_nolse:")
fullexec()
if OPT["dry"]: A("s_cbranch_execz L_areal")
stamp("S2")
A("L_partB:")
def frag_reads(fb, base, k):
    for ct in range(4):
        f = fb + 16*k + 4*ct
        A(f"ds_read_b64_tr_b16 {vr(f,2)}, v{aW+ct} offset:{base}\nds_read_b64_tr_b16 {vr(f+2,2)}, v{aW+ct} offset:{base + 8192}")
def flipW():
    for ct in range(4): A(f"v_xor_b32 v{aW+ct}, 0x4000, v{aW+ct}")
def mfmas(fb, xb, first, wait=None):
    for ct in range(4):
        if wait is not None: A(f"s_waitcnt lgkmcnt({wait + 6 - 2*ct})")
        c = "0" if first else vr(vAcc+4*ct, 4)
        A(f"v_mfma_f32_16x16x32_bf16 {vr(vAcc+4*ct,4)}, {vr(fb+4*ct,4)}, {vr(xb,4)}, {c}")
waitLC(pW2)
frag_reads(vF, S0, 0); flipW(); frag_reads(vF, S0, 1); flipW()
A(f"s_and_b32 s{sT}, s{sS}, 3\ns_lshl_b32 s{sT}, s{sT}, 17\ns_lshr_b32 s{sT2}, s{sS}, 2\ns_lshl_b32 s{sT2}, s{sT2}, 11\ns_add_u32 s{sT}, s{sT}, s{sT2}\ns_add_u32 s{sT}, s{sT}, {P3:#x}")
A(f"s_movk_i32 s{sC63}, 0xfff\ns_and_b32 s{sT2}, s{sT32}, s{sC63}\nv_mov_b32 v{vS}, s{sT2}\nv_xor_b32 v{vS+1}, 64, v{aOLR}")
waitLC(pW2 + 16)
frag_reads(vXB, S1, 0); flipW()
waitMW(1)
A(f"ds_read_b128 {vr(vQ+8,4)}, v{aOLR} offset:256\nds_read_b128 {vr(vQ+12,4)}, v{vS+1} offset:256")
stamp("h")
A("s_waitcnt lgkmcnt(1)"); mfmas(vXB, vQ+8, True)
def opart():
    A(f"ds_read_b128 {vr(vQ,4)}, v{aOLR}\nds_read_b128 {vr(vQ+4,4)}, v{vS+1}")
    A("s_waitcnt lgkmcnt(1)"); mfmas(vF, vQ, False)
    A("s_waitcnt lgkmcnt(0)"); mfmas(vF+16, vQ+4, False)
def wpart():
    frag_reads(vXB, S1, 1)
    mfmas(vXB+16, vQ+12, False, 0)
A(f"s_movk_i32 s{sNeed}, {pEND}\nL_race:\nds_read_b128 {vr(vFl,4)}, v{aFL} offset:16\ns_waitcnt lgkmcnt(0)")
A(f"v_cmp_gt_i32 vcc, s{sNeed}, v{vFl+2}\ns_cbranch_vccz L_wfirst\nv_min_i32 v{vFl}, v{vFl}, v{vFl+1}\nv_cmp_gt_i32 vcc, 3, v{vFl}\ns_cbranch_vccnz L_race")
A("L_ofirst:")
opart(); waitLC(pEND); wpart()
A("s_branch L_accdone\nL_wfirst:")
wpart(); waitMW(3); opart()
if OPT["dry"]: A("s_cbranch_execz L_ofirst")
A("L_accdone:")
stamp("fin")
for ct in range(1, 4):
    for r in range(4): A(f"v_cndmask_b32 v{vAcc+r}, v{vAcc+r}, v{vAcc+4*ct+r}, s[{sMk+2*ct-2}:{sMk+2*ct-1}]")
for r in range(4): A(f"v_bfi_b32 v{vAcc+r}, s{sC63}, v{vS}, v{vAcc+r}")
setexec(0x00ff00ff00ff00ff)
if OPT["dry"]: A("s_cbranch_execz L_areal")
A(f"buffer_store_dwordx4 {vr(vAcc,4)}, v{vP3}, {srd(sWS)}, s{sT} offen sc1")
if OPT.get("g3w"): signal(8)
A("L_ablend:")
if "probe" in OPT:
    stamp("end")
    if STN[0][:2] not in ("l_", "m_"):
        A(f"s_cmp_lg_u32 s{sWave}, {OPT['swave']}\ns_cbranch_scc1 L_end"); probe_pad()
elif DUMP and not OPT.get("mini"):
    stamp("end")
    l3 = ("x", "ln1", "S1", "c_set")
    A(f"s_cmp_lg_u32 s{sWave}, 3\ns_cbranch_scc1 L_d0")
    dump_stamps(lambda n: n in l3, None)
    A(f"s_endpgm\nL_d0:\ns_cmp_lg_u32 s{sWave}, {OPT['swave']}\ns_cbranch_scc1 L_end")
    dump_stamps(lambda n: n not in l3 and n[:2] not in ("l_", "m_"), 8*31)
A("s_endpgm")
A(f"L_bail:\ns_mov_b64 exec, -1\nv_mov_b32 v{vFl}, 0x7fffffff\nds_write_b32 v{aPW}, v{vFl}\ns_waitcnt lgkmcnt(0)\ns_endpgm")
sec("proj")
A("L_proj:")
A(f"ds_write_b128 v{aXW}, {vr(vP,4)}")
for k in range(8): A(f"ds_read2_b64 {vr(vXB+4*k,4)}, v{aXB} offset0:{8*k} offset1:{8*k+4}")
A(f"v_mov_b32 v{vS}, s{sTgV}")
def pj_batch(ks):
    waitLC(4*(ks[-1]+1), sPB)
    for i, k in enumerate(ks):
        for c in range(2):
            f = vF + 8*i + 4*c
            A(f"ds_read_b64_tr_b16 {vr(f,2)}, v{aPj+c} offset:{4096*k}\nds_read_b64_tr_b16 {vr(f+2,2)}, v{aPj+c} offset:{4096*k + 2048}")
    if ks[-1] == 7: A(f"ds_write_b32 v{aPW}, v{vSig}")
    n = 4*len(ks) + (1 if ks[-1] == 7 else 0)
    for i, k in enumerate(ks):
        for c in range(2):
            n -= 2
            cc = "0" if k == 0 else vr(vAcc+4*c, 4)
            A(f"s_waitcnt lgkmcnt({n})\nv_mfma_f32_16x16x32_bf16 {vr(vAcc+4*c,4)}, {vr(vF+8*i+4*c,4)}, {vr(vXB+4*k,4)}, {cc}")
pj_batch([0, 1, 2, 3]); pj_batch([4, 5, 6]); pj_batch([7])
for r in range(4): A(f"v_cndmask_b32 v{vAcc+r}, v{vAcc+r}, v{vAcc+4+r}, s[{sMk}:{sMk+1}]")
for r in range(4): A(f"v_add_u32 v{vAcc+r}, s{sTgR}, v{vAcc+r}")
for r in range(4): A(f"v_bfi_b32 v{vAcc+r}, s{sTgM}, v{vS}, v{vAcc+r}")
setexec(0x000f000f000f000f)
if OPT["loc4"]:
    A(f"s_cbranch_execz L_pjdone\ns_cmp_lt_u32 s{sWave}, 4\ns_cbranch_scc0 L_pjloc")
    A(f"buffer_store_dwordx4 {vr(vAcc,4)}, v{vPub}, {srd(sWS)}, s{sT3} offen sc1\ns_branch L_pjdone")
    A(f"L_pjloc:\nbuffer_store_dwordx4 {vr(vAcc,4)}, v{vPub}, {srd(sWS)}, s{sT3} offen\nL_pjdone:")
else: vm(f"buffer_store_dwordx4 {vr(vAcc,4)}, v{vPub}, {srd(sWS)}, s{sT3} offen sc1")
fullexec()
A(f"s_setpc_b64 s[{sRA}:{sRA+1}]")
sec("ln")
A("L_ln:")
for i in range(16): unpack(vU+2*i, vU+2*i+1, vP+i)
a0, a1, mean = vS, vS+2, vS+6
pk("add", a0, vU, vU+2); pk("add", a1, vU+4, vU+6)
for i in range(4, 16, 2): pk("add", a0, a0, vU+2*i); pk("add", a1, a1, vU+2*i+2)
pk("add", a0, a0, a1); A(f"v_add_f32 v{a0}, v{a0}, v{a0+1}")
allred(a0, "v_add_f32", ["q1", "q2", "hm", "m", "p16"], a1)
A(f"v_mul_f32 v{mean}, 0x3a800000, v{a0}")
for i in range(16):
    acc = a0 if i % 2 == 0 else a1
    dd = vF + 2*(i % 4)
    pk("add", dd, vU+2*i, mean, None, NEG)
    if i < 2: pk("mul", acc, dd, dd)
    else: pk("fma", acc, dd, dd, acc)
pk("add", a0, a0, a1); A(f"v_add_f32 v{a0}, v{a0}, v{a0+1}")
allred(a0, "v_add_f32", ["q1", "q2", "hm", "m", "p16"], a1)
A(f"v_mul_f32 v{a0}, 0x3a800000, v{a0}\nv_cvt_pk_bf16_f32 v{a0}, v{a0}, v{mean}")
A(f"v_and_b32 v{mean}, s{sHI}, v{a0}\nv_lshlrev_b32 v{a0}, 16, v{a0}\nv_add_f32 v{a0}, 0x3727c5ac, v{a0}")
A(f"v_cvt_pk_bf16_f32 v{a0}, v{a0}, v{a0}\nv_lshlrev_b32 v{a0}, 16, v{a0}\nv_sqrt_f32 v{a0}, v{a0}")
A(f"v_cvt_pk_bf16_f32 v{a0}, v{a0}, v{a0}\nv_lshlrev_b32 v{a0}, 16, v{a0}\nv_rcp_f32 v{a0}, v{a0}")
norm(0)
A(f"s_setpc_b64 s[{sRA}:{sRA+1}]")

order = {0: "top common ln proj ld2 attn mlp", 1: "top common ld2 ln proj attn mlp"}[OPT["lay"]].split()
ALL = [x for n in order for x in SEC[n]] + ["L_codeend:"]
body, nadd = hz.pad("\n".join(ALL))
if STN: body += "\n; STAMPS start," + ",".join(STN) + ",end"
hdr = open(os.path.join(os.path.dirname(__file__), "header.txt")).read()
out = f"""{hdr}; @launch grid=(256,1,1) block=(448,1,1) lds={LDS_END}
.amdgcn_target "amdgcn-amd-amdhsa--gfx950"
.text
.globl {NAME}_kernel
.p2align 8
.type {NAME}_kernel,@function
{NAME}_kernel:
{body}
.section .rodata,"a"
.p2align 6
.amdhsa_kernel {NAME}_kernel
  .amdhsa_next_free_vgpr {NV}
  .amdhsa_next_free_sgpr 102
  .amdhsa_accum_offset {NV}
  .amdhsa_group_segment_fixed_size 0
  .amdhsa_kernarg_size 104
  .amdhsa_user_sgpr_count 2
  .amdhsa_user_sgpr_kernarg_segment_ptr 1
  .amdhsa_system_sgpr_workgroup_id_x 1
  .amdhsa_float_denorm_mode_32 3
.end_amdhsa_kernel
"""
open(sys.argv[1], "w").write(out)
print("NV", NV, "LDS", LDS_END, "nops added", nadd, file=sys.stderr)
```

```python
import sys, os
sys.path.insert(0, os.path.dirname(__file__))
import hz
NAME = "parallel_sum__sliding_block_cached__mixer_channel_mlp__decode"
OPT = dict(stamps=0, nt=1, spin=1 << 16, swave=1, Wk=20, Wv=20, Wkb=0, W1=20, Wo=20, W2=20, W2x=40,
           g1=72, g2=148, g2r=156, g4=144, rs2=3, Wvb=32, cpf=1, dry=1, qmap=3, lay=0, loc4=1, pr4=1, rs4=4, pr1=0, pr2=0)
STN = None
for a in sys.argv[2:]:
    k, v = a.split("=")
    if k == "st": STN = v.split(","); OPT["stamps"] = 1
    elif k == "W":
        for kk in ("Wk", "Wv", "W1", "Wo", "W2"): OPT[kk] = int(v)
    else: OPT[k] = int(v)
NT = " nt" if OPT["nt"] else ""
SEC = {}; L = []
def sec(name):
    global L
    L = SEC.setdefault(name, [])
def A(s):
    for x in s.split("\n"): L.append("    " + x.strip() if not x.strip().endswith(":") else x.strip())
class Alloc:
    def __init__(s, start): s.n = start
    def __call__(s, cnt=1, al=1):
        s.n = (s.n + al - 1) // al * al
        r = s.n; s.n += cnt; return r
VA = Alloc(1)
def vr(r, n): return f"v[{r}:{r+n-1}]"
def srd(r): return f"s[{r}:{r+3}]"
sLive = 6
sX, sWQ, sK, sV, sW1, sWO, sW2 = range(8, 36, 4)
sB1, sWS = sWQ, sW1
(sx8, si32, sS, sCG2, sWave, sT, sT2, sT3, sT4, sT5, sT32, sT6, sHI, sSpin, sC63, sRetry, sW8, sGi, sNeed, sPB, sCnt, sM, sG, sR4) = range(36, 60)
sPub = sW8
sRA = 60; sMk = 62; sTgM, sTgR, sTgV, sRes = 32, 33, 34, 35
STB = 68
P1, P4, P5, P2L, P2, P3, WSSZ = 0x10000, 0x40000, 0x60000, 0x80000, 0x100000, 0x200000, 0x400000
S0, S1, S2, S3, M = 0, 32768, 65536, 98304, 131072
XR, PX, XN, YN, QL = M, M + 4096, M + 8192, M + 9216, M + 10240
ML = QL + 2304; OL = ML + 256; HL = OL + 256; FLG = HL + 256
S2C = FLG + 256
LDS_END = S2C + 2048 + 64
LCO = 24
pX, pWQ, pK, pV, pW1, pWO, pW2, pEND = 0, 4, 36, 68, 100, 132, 164, 196
if OPT.get("bal"): pEND = 188
vLane, vG4, vN16, vJ, vTmp2, vTmp3 = [VA() for _ in range(6)]
aFL = VA(); aPW = VA()
aW = VA(4); aK = VA(4); aV = VA(2); aQ = VA(); aXB = VA(); aXW = VA(); aPj = VA(2)
vPub = VA(); vG1 = VA(); aQW = VA(); aPXW = VA(); aPXR = VA(); aMLW = VA(); aMLR = VA(); vS2o = VA(); vS2l = VA()
vG2 = VA(); vG2l = VA(); vP3 = VA(); aOLW = VA(); aOLR = VA(); vSig = VA(); vE = VA(4); vE2 = VA(4)
vP = VA(16, 4); vU = VA(32, 4); vS = VA(8, 4); vXB = VA(32, 4); vF = VA(32, 4); vAcc = VA(32, 4)
vQ = VA(16, 4); vG = VA(16, 4); vSm = VA(8, 2); vFl = VA(4, 2)
vKF = vXB
NV = (VA.n + 7) // 8 * 8
assert NV <= 256, NV
t0, t1, t2 = vS, vS+1, vS+2
nst = [0]; slots = {}
def stamp(name):
    if OPT["stamps"] and (name in STN or name in ("start", "end")):
        i = nst[0]; nst[0] += 1
        slots[name] = (i, 0 if name == "start" else (len(STN) + 1 if name == "end" else STN.index(name) + 1))
        assert STB + 2*i + 1 <= 101
        A(f"s_memrealtime s[{STB+2*i}:{STB+2*i+1}]")
lab = [0]
def newlab(p):
    lab[0] += 1; return f"L_{p}{lab[0]}"
DPP = dict(q1="quad_perm:[1,0,3,2]", q2="quad_perm:[2,3,0,1]", hm="row_half_mirror", m="row_mirror",
           r2="row_ror:2", r4="row_ror:4", r8="row_ror:8")
def allred(reg, op, steps, tmp):
    regs_ = reg if isinstance(reg, list) else [reg]
    tmps = tmp if isinstance(tmp, list) else [tmp]
    for st in steps:
        if st in DPP:
            for r in regs_: A(f"{op}_dpp v{r}, v{r}, v{r} {DPP[st]} row_mask:0xf bank_mask:0xf")
        else:
            ins = "v_permlane16_swap_b32" if st == "p16" else "v_permlane32_swap_b32"
            for r, t in zip(regs_, tmps): A(f"v_mov_b32 v{t}, v{r}")
            for r, t in zip(regs_, tmps): A(f"{ins} v{r}, v{t}")
            for r, t in zip(regs_, tmps): A(f"{op} v{r}, v{r}, v{t}")
def unpack(dlo, dhi, src): A(f"v_lshlrev_b32 v{dlo}, 16, v{src}\nv_and_b32 v{dhi}, s{sHI}, v{src}")
def pk(op, d, a, b, c=None, mods=""):
    A(f"v_pk_{op}_f32 {vr(d,2)}, {vr(a,2)}, {vr(b,2)}" + (f", {vr(c,2)}" if c is not None else "") + (" " + mods if mods else ""))
BC = "op_sel_hi:[1,0]"; BC3 = "op_sel_hi:[1,0,1]"; NEG = "op_sel_hi:[1,0] neg_lo:[0,1] neg_hi:[0,1]"
def setexec(m):
    lo, hi = m & 0xffffffff, (m >> 32) & 0xffffffff
    if lo == hi: A(f"s_and_b32 exec_lo, s{sLive}, {lo:#x}\ns_mov_b32 exec_hi, exec_lo")
    else: A(f"s_and_b32 exec_lo, s{sLive}, {lo:#x}\ns_and_b32 exec_hi, s{sLive}, {hi:#x}")
def fullexec(): A(f"s_mov_b64 exec, s[{sLive}:{sLive+1}]")
ABL = OPT.get("abl", 0)
def vm(s_):
    if ABL in (2, 3, 4) and "load" in s_: return
    if ABL == 7 and ("v{}".format(vG2) + "," in s_ or "v{}".format(vS2o) + "," in s_ or "v{}".format(vS2l) + "," in s_): return
    if ABL == 8 and "v{}".format(vG2) + "," in s_: return
    if ABL == 3 and "store" in s_: return
    if ABL == 4: s_ = s_.replace(" sc1", "")
    if ABL == 10 and ("v{}".format(vS2o) + "," in s_ or "v{}".format(vS2l) + "," in s_): s_ = s_.replace(" sc1", "")
    l = newlab("vm"); A(f"s_cbranch_execz {l}"); A(s_); A(f"{l}:")
def dry_on(): A(f"s_mov_b64 s[{sLive}:{sLive+1}], 0\ns_mov_b64 exec, 0")
def dry_off(): A(f"s_mov_b64 s[{sLive}:{sLive+1}], -1\ns_mov_b64 exec, -1")
def waitLC(base, sreg=None):
    l = newlab("lc")
    if sreg is None: A(f"s_movk_i32 s{sNeed}, {base}")
    else: A(f"s_add_u32 s{sNeed}, s{sreg}, {base}")
    A(f"{l}:\nds_read_b32 v{vFl}, v{aFL} offset:{LCO}\ns_waitcnt lgkmcnt(0)\nv_cmp_gt_i32 vcc, s{sNeed}, v{vFl}\ns_cbranch_vccnz {l}")
def signal(stage): A(f"v_mov_b32 v{vFl}, {stage}\nds_write_b32 v{aPW}, v{vFl}")
def pwtest(stage): A(f"v_min3_i32 v{vFl}, v{vFl}, v{vFl+1}, v{vFl+2}\nv_min_i32 v{vFl}, v{vFl}, v{vFl+3}\nv_cmp_gt_i32 vcc, {stage}, v{vFl}")
def waitPW(stage):
    l = newlab("pw")
    A(f"{l}:\nds_read_b128 {vr(vFl,4)}, v{aFL}\ns_waitcnt lgkmcnt(0)"); pwtest(stage); A(f"s_cbranch_vccnz {l}")
def waitMW(stage):
    l = newlab("mw")
    A(f"{l}:\nds_read_b64 {vr(vFl,2)}, v{aFL} offset:16\ns_waitcnt lgkmcnt(0)\nv_min_i32 v{vFl}, v{vFl}, v{vFl+1}\nv_cmp_gt_i32 vcc, {stage}, v{vFl}\ns_cbranch_vccnz {l}")
def LB(stage): signal(stage); waitPW(stage)
def orred(dst, regs_):
    regs_ = list(regs_)
    A(f"v_or3_b32 v{dst}, v{regs_[0]}, v{regs_[1]}, v{regs_[2]}"); r = 3
    while r + 1 < len(regs_):
        A(f"v_or3_b32 v{dst}, v{dst}, v{regs_[r]}, v{regs_[r+1]}"); r += 2
    if r < len(regs_): A(f"v_or_b32 v{dst}, v{dst}, v{regs_[r]}")
def retry_tail(name, reissue, inc, masked):
    A(f"v_cmp_ne_u32 vcc, 0, v{vS}\n" + ("s_branch" if ABL else "s_cbranch_vccz") + f" L_{name}ok")
    A(f"s_add_u32 s{sRetry}, s{sRetry}, {inc}\ns_sub_u32 s{sSpin}, s{sSpin}, 1\ns_cbranch_scc1 L_bail")
    if masked: A("s_mov_b64 exec, vcc")
    reissue()
    A(f"s_waitcnt vmcnt(0)\ns_branch L_{name}chk\nL_{name}ok:")
    if masked: fullexec()
def chk6(base, n, name, reissue, inc):
    A(f"L_{name}chk:")
    for r in range(n): A(f"v_xor_b32 v{base+r}, s{sT6}, v{base+r}")
    orred(vS, range(base, base + n))
    A(f"v_and_b32 v{vS}, 63, v{vS}")
    retry_tail(name, reissue, inc, False)
DUMP = OPT["stamps"] and "probe" not in OPT
def dump_stamps(pred, retry_slot):
    A("s_mov_b64 exec, 1\ns_load_dwordx2 s[4:5], s[0:1], 96")
    A(f"s_waitcnt lgkmcnt(0)\ns_lshl_b32 s{sT}, s2, 8\ns_add_u32 s4, s4, s{sT}\ns_addc_u32 s5, s5, 0\ns_add_u32 s4, s4, 0x8000000\ns_addc_u32 s5, s5, 0\nv_mov_b32 v{vS+2}, 0")
    for nm, (i, sl) in slots.items():
        if pred(nm):
            A(f"v_mov_b32 v{vS}, s{STB+2*i}\nv_mov_b32 v{vS+1}, s{STB+2*i+1}\nglobal_store_dwordx2 v{vS+2}, {vr(vS,2)}, s[4:5] offset:{8*sl}\ns_nop 1")
    if retry_slot is not None:
        A(f"v_mov_b32 v{vS}, s{sRetry}\nglobal_store_dword v{vS+2}, v{vS}, s[4:5] offset:{retry_slot}")
def probe_pad():
    k = slots[STN[0]][0]; l = newlab("pad")
    A(f"s_waitcnt lgkmcnt(0)\ns_sub_u32 s{sT}, s{STB+2*k}, s{STB}\ns_lshl_b32 s{sT}, s{sT}, 2\ns_add_u32 s{sT}, s{sT}, 2000")
    A(f"{l}:\ns_memrealtime s[4:5]\ns_waitcnt lgkmcnt(0)\ns_sub_u32 s4, s4, s{STB}\ns_cmp_lt_u32 s4, s{sT}\ns_cbranch_scc1 {l}")
def qidx(cg, ks, tmp):
    if OPT["qmap"] == 3:
        A(f"s_cmp_ge_u32 s{si32}, 14\ns_cselect_b32 s{ks}, 1, 0\ns_cselect_b32 s{tmp}, 14, 0\ns_sub_u32 s{cg}, s{si32}, s{tmp}")
        A(f"s_cmp_ge_u32 s{cg}, 10\ns_addc_u32 s{tmp}, s{cg}, 0\ns_cmp_ge_u32 s{cg}, 3\ns_addc_u32 s{cg}, s{tmp}, 0")
        A(f"s_and_b32 s{tmp}, s{si32}, 1\ns_lshl_b32 s{tmp}, s{tmp}, 3\ns_add_u32 s{tmp}, s{tmp}, 3\ns_bfe_u32 s{sCG2}, s{si32}, 0x10001")
        A(f"s_cmp_ge_u32 s{si32}, 28\ns_cselect_b32 s{cg}, s{tmp}, s{cg}\ns_cselect_b32 s{ks}, s{sCG2}, s{ks}")
    else:
        A(f"s_and_b32 s{cg}, s{si32}, 15\ns_lshr_b32 s{ks}, s{si32}, 4")
    A(f"s_lshr_b32 s{tmp}, s{sx8}, 1\ns_lshl_b32 s{tmp}, s{tmp}, 4\ns_add_u32 s{cg}, s{cg}, s{tmp}\ns_and_b32 s{tmp}, s{sx8}, 1\ns_lshl_b32 s{tmp}, s{tmp}, 1\ns_add_u32 s{ks}, s{ks}, s{tmp}")
def midx(cg, ks, tmp):
    A(f"s_mul_i32 s{cg}, s{sx8}, 7\ns_lshr_b32 s{tmp}, s{si32}, 2\ns_add_u32 s{cg}, s{cg}, s{tmp}\ns_add_u32 s{tmp}, s{sx8}, 56\ns_cmp_lt_u32 s{si32}, 28\ns_cselect_b32 s{cg}, s{cg}, s{tmp}\ns_and_b32 s{ks}, s{si32}, 3")

sec("top")
stamp("start")
A(f"s_load_dwordx2 s[{sX}:{sX+1}], s[0:1], 0\ns_load_dwordx2 s[{sWQ}:{sWQ+1}], s[0:1], 24\ns_load_dwordx2 s[{sMk}:{sMk+1}], s[0:1], 96")
A("s_cmp_ge_u32 s2, 256\ns_cbranch_scc1 L_end")
A(f"v_readfirstlane_b32 s{sWave}, v0\nv_and_b32 v{vLane}, 63, v0\nv_subrev_u32 v0, 64, v0")
if OPT["cpf"]:
    A(f"s_getpc_b64 s[4:5]\nL_pc:\nv_lshlrev_b32 v{vU}, 7, v0\nv_cmp_gt_u32 vcc, (L_codeend-L_pc)/128, v0\ns_and_saveexec_b64 s[{sLive}:{sLive+1}], vcc\ns_cbranch_execz L_nocpf")
    A(f"global_load_dword v{vU+1}, v{vU}, s[4:5]\nL_nocpf:")
dry_off()
A(f"s_and_b32 s{sx8}, s2, 7\ns_lshr_b32 s{si32}, s2, 3")
A(f"s_cmp_lg_u32 s{sWave}, 0\ns_cbranch_scc1 L_notloader")
lX, lT8, lT7, lK, lV, lC = vP, vP+1, vP+2, vP+4, vP+8, vP+10
A(f"s_movk_i32 s{sX+2}, 4096\ns_mov_b32 s{sX+3}, 0x20000\nv_lshlrev_b32 v{lX}, 4, v{vLane}")
A(f"v_lshrrev_b32 v{vTmp2}, 3, v{vLane}\nv_and_b32 v{vS}, 6, v{vTmp2}\nv_and_b32 v{vTmp3}, 7, v{vLane}\nv_xor_b32 v{vTmp3}, v{vTmp3}, v{vS}\nv_lshlrev_b32 v{vTmp3}, 4, v{vTmp3}")
A(f"v_lshl_add_u32 v{lT8}, v{vTmp2}, 13, v{vTmp3}")
A(f"s_mov_b32 s{sWQ+2}, {1<<23:#x}\ns_mov_b32 s{sWQ+3}, s{sX+3}")
qidx(sG, sT3, sT)
A(f"s_lshl_b32 s{sG}, s{sG}, 7\ns_lshl_b32 s{sT}, s{sT3}, 16\ns_add_u32 s{sG}, s{sG}, s{sT}")
A(f"s_mov_b32 m0, {XR}\ns_waitcnt lgkmcnt(0)")
stamp("l_karg")
for q in range(4): A(f"buffer_load_dwordx4 v{lX}, {srd(sX)}, 0 offen offset:{1024*q} lds")
curW = [36]
sThr = 3
def thr():
    if not OPT.get("thr") or curW[0] < OPT["thrW"]: return
    l = newlab("th")
    A(f"s_cmp_ge_i32 s{sCnt}, s{sThr}\ns_cbranch_scc1 {l}\ns_waitcnt vmcnt({OPT['thrW']-4})\ns_add_u32 s{sNeed}, s{sCnt}, {curW[0] - OPT['thrW'] + 4}\ns_max_i32 s{sPub}, s{sPub}, s{sNeed}\n{l}:")
def pub(): A(f"s_add_u32 s{sCnt}, s{sCnt}, 4\ns_max_i32 s{sPub}, s{sPub}, s{sCnt}\nv_mov_b32 v{lC}, s{sPub}\nds_write_b32 v{aFL}, v{lC} offset:{LCO}")
def trans(Wn):
    Wo = curW[0]; assert Wn % 4 == 0
    if Wn < Wo:
        for k in range(Wo - 4, Wn - 1, -4): A(f"s_waitcnt vmcnt({k})"); pub()
    elif Wn > Wo: A(f"s_sub_u32 s{sCnt}, s{sCnt}, {Wn - Wo}")
    curW[0] = Wn
def loop(n_end, body):
    l = newlab("ld"); A(f"{l}:"); body()
    A(f"s_cmp_lg_u32 s{sCnt}, {(n_end - curW[0]) & 0xffffffff}\ns_cbranch_scc1 {l}")
def aloop(n_end, body, Wb, stage):
    Wa = curW[0]
    if Wb <= Wa: loop(n_end, body); return
    la, ld = newlab("aa"), newlab("ad")
    if stage > 0: A(f"{la}:\nds_read_b128 {vr(vFl,4)}, v{aFL}")
    else: A(f"{la}:\nds_read_b64 {vr(vFl,2)}, v{aFL} offset:16")
    body()
    A(f"s_cmp_eq_u32 s{sCnt}, {(n_end - Wa) & 0xffffffff}\ns_cbranch_scc1 {ld}\ns_waitcnt lgkmcnt(1)")
    if stage > 0: pwtest(stage)
    else: A(f"v_min_i32 v{vFl}, v{vFl}, v{vFl+1}\nv_cmp_gt_i32 vcc, {-stage}, v{vFl}")
    A(f"s_cbranch_vccnz {la}")
    trans(Wb); loop(n_end, body); trans(Wa)
    A(f"{ld}:")
A(f"s_mov_b32 m0, {S0}\ns_mov_b32 s{sCnt}, 8\nL_pre:")
for q in range(4):
    A(f"buffer_load_dwordx4 v{lT8}, {srd(sWQ)}, s{sG} offen{NT} lds\ns_add_u32 m0, m0, 1024\ns_add_u32 s{sG}, s{sG}, {32*8192}")
A(f"s_sub_u32 s{sCnt}, s{sCnt}, 1\ns_cmp_lg_u32 s{sCnt}, 0\ns_cbranch_scc1 L_pre")
for r, off in ((sK, 8), (sV, 16), (sW1, 48), (sWO, 32), (sW2, 64)):
    A(f"s_load_dwordx2 s[{r}:{r+1}], s[0:1], {off}")
A(f"s_mov_b32 s{sPub}, 0\ns_mov_b32 s{sRetry}, 0\nv_mov_b32 v{aFL}, {FLG}\ns_setprio 3\ns_barrier")
trans(32)
stamp("l_x")
A("s_branch L_loader2")
sec("ld2")
A("L_loader2:")
A(f"v_lshrrev_b32 v{vG4}, 4, v{vLane}\nv_and_b32 v{vN16}, 15, v{vLane}")
A(f"v_mul_u32_u24 v{lT7}, 7168, v{vTmp2}\nv_add_u32 v{lT7}, v{lT7}, v{vTmp3}")
A(f"v_lshlrev_b32 v{vTmp2}, 8, v{vG4}\nv_xor_b32 v{vTmp3}, v{vN16}, v{vG4}\nv_lshl_add_u32 v{lK}, v{vTmp3}, 4, v{vTmp2}")
for q in (1, 2, 3): A(f"v_xor_b32 v{lK+q}, {64*q}, v{lK}")
A(f"v_xor_b32 v{vTmp3}, v{vN16}, v{vS}\nv_lshl_add_u32 v{lV}, v{vTmp3}, 4, v{vTmp2}\nv_xor_b32 v{lV+1}, 128, v{lV}")
A(f"s_mov_b32 s{sK+2}, {1<<25:#x}\ns_mov_b32 s{sV+2}, s{sK+2}\ns_mov_b32 s{sWO+2}, s{sWQ+2}")
for r in (sK, sV, sW1, sWO, sW2): A(f"s_mov_b32 s{r+3}, 0x20000")
A(f"s_cmp_lt_u32 s{si32}, 28\ns_cselect_b32 s{sW1+2}, {1024*7168}, {1024*7168 if OPT.get('bal') else 0}\ns_mov_b32 s{sW2+2}, s{sW1+2}")
sKV = sT4
A(f"s_and_b32 s{sKV}, s{sx8}, 1\ns_lshl_b32 s{sKV}, s{sKV}, 2\ns_lshr_b32 s{sT}, s{sx8}, 1\ns_add_u32 s{sKV}, s{sKV}, s{sT}\ns_lshl_b32 s{sKV}, s{sKV}, 22\ns_add_u32 s{sKV}, s{sKV}, 0x300000")
A(f"s_waitcnt lgkmcnt(0)\ns_load_dword s{sT32}, s[{sMk}:{sMk+1}], 0")
def kv_group(s_, voff, nreg):
    thr()
    A(f"s_and_b32 s{sM}, s{sM}, 0x1ffff\ns_add_u32 s{sG}, s{sT2}, s{sM}\ns_add_u32 s{sM}, s{sM}, {5*4096}\ns_add_u32 s{sT2}, s{sT2}, 131072")
    for q in range(4):
        A(f"s_waitcnt vmcnt({curW[0]-1})\nbuffer_load_dwordx4 v{voff + q % nreg}, {srd(s_)}, s{sG} offen offset:{1024*q}{NT} lds")
    A(f"s_add_u32 m0, m0, 4096")
    pub()
def w1_group():
    thr()
    for q in range(4):
        A(f"s_waitcnt vmcnt({curW[0]-1})\nbuffer_load_dwordx4 v{lT7}, {srd(sW1)}, s{sG} offen{NT} lds\ns_add_u32 m0, m0, 1024\ns_add_u32 s{sG}, s{sG}, {32*7168}")
    pub()
if OPT.get("thr") == 256: A(f"s_cmp_lt_u32 s{si32}, 28\ns_cselect_b32 s{sThr}, {OPT['thrN']}, -16")
trans(OPT["Wk"])
A(f"s_mov_b32 s{sT2}, s{sKV}\ns_lshl_b32 s{sM}, s{si32}, 12")
loop(pV, lambda: kv_group(sK, lK, 4))
stamp("l_K")
A("s_waitcnt lgkmcnt(0)")
trans(OPT["Wv"])
A(f"s_mov_b32 s{sT2}, s{sKV}\ns_lshl_b32 s{sM}, s{si32}, 12")
aloop(pW1, lambda: kv_group(sV, lV, 2), OPT["Wvb"], 3)
stamp("l_V")
midx(sCG2, sT3, sT)
A(f"s_lshl_b32 s{sG}, s{sCG2}, 7\ns_mul_i32 s{sT}, s{sT3}, {8*7168}\ns_add_u32 s{sG}, s{sG}, s{sT}\ns_lshl_b32 s{sT3}, s{sT3}, 9")
trans(OPT["W1"])
loop(pWO, w1_group)
stamp("l_W1")
lF = lK
A(f"v_lshrrev_b32 v{vTmp2}, 5, v{vLane}\nv_and_b32 v{vTmp3}, 31, v{vLane}\nv_lshlrev_b32 v{lF}, 1, v{vTmp2}\nv_xor_b32 v{vTmp3}, v{vTmp3}, v{lF}\nv_lshlrev_b32 v{vTmp3}, 4, v{vTmp3}\nv_lshl_add_u32 v{lF}, v{vTmp2}, 11, v{vTmp3}")
for q in (1, 2, 3): A(f"v_xor_b32 v{lF+q}, {64*q}, v{lF}")
A(f"s_lshl_b32 s{sS}, s{sx8}, 5\ns_add_u32 s{sS}, s{sS}, s{si32}\ns_lshr_b32 s{sR4}, s{si32}, 2")
def fin_group(s_, slot, kshift):
    thr()
    A(f"s_add_u32 s{sM}, s{sGi}, s{sR4}\ns_and_b32 s{sM}, s{sM}, 3\ns_xor_b32 s{sT2}, s{sGi}, s{sR4}\ns_bfe_u32 s{sT2}, s{sT2}, 0x10002")
    A(f"s_lshl_b32 s{sG}, s{sT2}, {kshift}\ns_add_u32 s{sG}, s{sG}, s{sT}\ns_lshl_b32 s{sT5}, s{sM}, 14\ns_add_u32 s{sG}, s{sG}, s{sT5}")
    A(f"s_lshl_b32 s{sT2}, s{sT2}, 2\ns_add_u32 s{sM}, s{sM}, s{sT2}\ns_lshl_b32 s{sM}, s{sM}, 12\ns_add_u32 m0, s{sM}, {slot}\ns_add_u32 s{sGi}, s{sGi}, 1")
    for q in range(4):
        A(f"s_waitcnt vmcnt({curW[0]-1})\nbuffer_load_dwordx4 v{lF+q}, {srd(s_)}, s{sG} offen{NT} lds")
        if q < 3: A(f"s_add_u32 m0, m0, 1024\ns_add_u32 s{sG}, s{sG}, 4096")
    pub()
trans(OPT["Wo"])
waitPW(1)
A(f"s_lshr_b32 s{sT}, s{sS}, 4\ns_lshl_b32 s{sT}, s{sT}, 19\ns_and_b32 s{sT2}, s{sR4}, 3\ns_lshl_b32 s{sT2}, s{sT2}, 16\ns_add_u32 s{sT}, s{sT}, s{sT2}\ns_add_u32 s{sT}, s{sT}, s{sT3}\ns_mov_b32 s{sGi}, 0")
loop(pW2, lambda: fin_group(sWO, S0, 18))
stamp("l_WO")
trans(OPT["W2"])
waitPW(3)
if OPT.get("bal"): A(f"s_min_u32 s{sCG2}, s{sCG2}, 55")
A(f"s_lshl_b32 s{sT}, s{sCG2}, 17\ns_add_u32 s{sT}, s{sT}, s{sT3}\ns_mov_b32 s{sGi}, 0")
aloop(pEND, lambda: fin_group(sW2, S1, 16), OPT["W2x"], 7)
stamp("l_W2")
fWS, fB2, fOUT = sWQ, sK, sV
vOo, vG3 = vP+12, vP+13
A(f"s_load_dwordx2 s[{fB2}:{fB2+1}], s[0:1], 72\ns_load_dwordx2 s[{fOUT}:{fOUT+1}], s[0:1], 80")
A(f"s_mov_b32 s{fWS}, s{sMk}\ns_mov_b32 s{fWS+1}, s{sMk+1}\ns_mov_b32 s{fWS+2}, {WSSZ:#x}\ns_movk_i32 s{fB2+2}, 2048\ns_movk_i32 s{fOUT+2}, 4096")
A(f"v_and_b32 v{vTmp2}, 1, v{vLane}\nv_lshlrev_b32 v{vOo}, 3, v{vTmp2}\nv_lshrrev_b32 v{vTmp3}, 1, v{vLane}\nv_lshlrev_b32 v{vG3}, 4, v{vTmp2}\nv_lshl_add_u32 v{vG3}, v{vTmp3}, 11, v{vG3}")
sOo = sM
A(f"s_lshr_b32 s{sT}, s{sS}, 6\ns_lshl_b32 s{sT3}, s{sT}, 9\ns_and_b32 s{sT2}, s{sS}, 31\ns_lshl_b32 s{sT2}, s{sT2}, 4\ns_add_u32 s{sT3}, s{sT3}, s{sT2}")
A(f"s_bfe_u32 s{sT2}, s{sS}, 0x10005\ns_lshl_b32 s{sT2}, s{sT2}, 11\ns_add_u32 s{sOo}, s{sT3}, s{sT2}")
A(f"s_lshl_b32 s{sT}, s{sT}, 17\ns_and_b32 s{sT2}, s{sS}, 63\ns_lshl_b32 s{sT2}, s{sT2}, 5\ns_add_u32 s{sT}, s{sT}, s{sT2}\ns_add_u32 s{sT}, s{sT}, {P3:#x}\ns_add_u32 s{sT2}, s{sT}, 65536")
A(f"s_add_u32 s{sT32}, s{sT32}, 9\ns_and_b32 s{sT6}, s{sT32}, 0xfff\ns_mov_b32 s{sHI}, 0xffff0000\ns_mov_b32 s{sSpin}, {OPT['spin']}")
trans(0)
stamp("l_end")
if OPT.get("abl") and OPT["abl"] < 10: A("s_branch L_lend")
A("s_waitcnt lgkmcnt(0)")
A(f"buffer_load_dwordx2 {vr(vSm,2)}, v{vOo}, {srd(sX)}, s{sOo} offen\nbuffer_load_dwordx2 {vr(vSm+2,2)}, v{vOo}, {srd(fB2)}, s{sT3} offen")
if OPT.get("g3s"): A(f"s_sleep {OPT['g3s']}")
A("L_g3:")
for k, so in enumerate((sT, sT2)): A(f"buffer_load_dwordx4 {vr(vG+4*k,4)}, v{vG3}, {srd(fWS)}, s{so} offen sc1")
A(f"s_add_u32 s{sRetry}, s{sRetry}, 0x1000000\ns_sub_u32 s{sSpin}, s{sSpin}, 1\ns_cbranch_scc1 L_end\ns_waitcnt vmcnt(0)")
for r in range(8): A(f"v_xor_b32 v{vG+r}, s{sT6}, v{vG+r}")
orred(vS, range(vG, vG+8))
A(f"v_and_b32 v{vS}, 0xfff, v{vS}\nv_cmp_ne_u32 vcc, 0, v{vS}\ns_and_b64 exec, exec, vcc\ns_cbranch_scc1 L_g3\ns_mov_b64 exec, -1")
stamp("l_g3ok")
vH = vQ
pk("add", vG, vG, vG+4); pk("add", vG+2, vG+2, vG+6)
unpack(vH, vH+1, vSm); unpack(vH+2, vH+3, vSm+1)
A(f"v_permlane32_swap_b32 v{vG}, v{vG+2}\nv_permlane32_swap_b32 v{vG+1}, v{vG+3}")
unpack(vH+4, vH+5, vSm+2)
pk("add", vG, vG, vG+2)
unpack(vH+6, vH+7, vSm+3)
A(f"v_permlane16_swap_b32 v{vG}, v{vG+1}")
pk("add", vH, vH, vH+4)
A(f"v_add_f32 v{vG}, v{vG}, v{vG+1}")
pk("add", vH+2, vH+2, vH+6)
A(f"s_mov_b32 vcc_lo, 0xffff0000\ns_mov_b32 vcc_hi, 0xffff0000")
allred(vG, "v_add_f32", ["r2"], None)
A(f"v_cndmask_b32 v{vH}, v{vH}, v{vH+1}, vcc\nv_cndmask_b32 v{vH+2}, v{vH+2}, v{vH+3}, vcc")
allred(vG, "v_add_f32", ["r4"], None)
A(f"s_mov_b32 vcc_lo, 0\ns_mov_b32 vcc_hi, -1\nv_cndmask_b32 v{vH}, v{vH}, v{vH+2}, vcc")
allred(vG, "v_add_f32", ["r8"], None)
A(f"v_lshrrev_b32 v{vTmp2}, 4, v{vLane}\nv_lshl_add_u32 v{vOo}, v{vTmp2}, 1, v{vOo}")
A(f"v_add_f32 v{vH}, v{vH}, v{vG}\nv_cvt_pk_bf16_f32 v{vH}, v{vH}, v{vH}")
A("s_mov_b32 exec_lo, 0x00030003\ns_mov_b32 exec_hi, 0x00030003")
A(f"buffer_store_short v{vH}, v{vOo}, {srd(fOUT)}, s{sOo} offen" + (" sc1" if OPT.get("osc") else ""))
A(f"s_cmp_lg_u32 s2, 0\ns_cbranch_scc1 L_lend")
A(f"v_mov_b32 v{vS}, s{sT32}\nv_mov_b32 v{vS+1}, 0\ns_mov_b64 exec, 1\nbuffer_store_dword v{vS}, v{vS+1}, {srd(fWS)}, 0 offen" + (" sc1" if OPT.get("esc") else ""))
A("L_lend:")
stamp("l_fin")
if DUMP: dump_stamps(lambda n: n.startswith("l_") or (OPT.get("mini") and n == "start"), 8*30)
if "probe" in OPT and STN[0].startswith("l_"): probe_pad()
A("L_end:\ns_endpgm")
nst[0] = 1 if OPT["stamps"] else 0
sec("common")
A("L_notloader:")
j = vJ
A(f"v_mov_b32 v{aFL}, {FLG}\nv_mov_b32 v{vFl}, 0\nv_lshl_add_u32 v{aPW}, v{vLane}, 2, v{aFL}\nds_write_b32 v{aPW}, v{vFl}")
A(f"s_lshr_b32 s{sWave}, s{sWave}, 6\ns_sub_u32 s{sWave}, s{sWave}, 1\nv_lshrrev_b32 v{vJ}, 6, v0\nv_lshrrev_b32 v{vG4}, 4, v{vLane}")
A(f"s_waitcnt lgkmcnt(0)\ns_load_dword s{sT32}, s[{sMk}:{sMk+1}], 0\ns_mov_b32 s{sWS}, s{sMk}\ns_mov_b32 s{sWS+1}, s{sMk+1}\ns_barrier")
A(f"v_lshl_add_u32 v{aPW}, v{j}, 2, v{aFL}\nv_and_b32 v{vN16}, 15, v{vLane}")
A(f"s_mov_b32 s{sWS+2}, {WSSZ:#x}\ns_mov_b32 s{sWS+3}, 0x20000\ns_mov_b32 s{sHI}, 0xffff0000")
if OPT["dry"]:
    A(f"s_cmp_lt_u32 s{sWave}, 4\ns_cbranch_scc1 L_nodry1")
    dry_on()
    A(f"s_cmp_eq_u32 s{sWave}, 4\ns_cbranch_scc1 L_dry4\ns_call_b64 s[{sRA}:{sRA+1}], L_proj\ns_branch L_dry5\nL_dry4:\ns_call_b64 s[{sRA}:{sRA+1}], L_ln\nL_dry5:")
    dry_off()
    A("L_nodry1:")
if OPT.get("abl") == 1:
    A(f"v_mov_b32 v{vFl}, 100\nds_write_b32 v{aPW}, v{vFl}\ns_cmp_eq_u32 s{sWave}, 0\ns_cbranch_scc1 L_ablend\ns_endpgm")
A(f"s_mov_b32 s{sRetry}, 0\ns_mov_b32 s{sSpin}, {OPT['spin']}")
r_, c4 = vTmp2, vTmp3
A(f"v_lshrrev_b32 v{r_}, 2, v{vN16}\nv_and_b32 v{c4}, 3, v{vN16}\nv_lshlrev_b32 v{c4}, 3, v{c4}\nv_lshl_add_u32 v{r_}, v{vG4}, 2, v{r_}")
A(f"s_cmp_lt_u32 s{sWave}, 2\ns_cbranch_scc1 L_attn")
sCGp, sKSp = sCnt, sG
qidx(sCGp, sKSp, sT)
A(f"s_cmp_lt_u32 s{sWave}, 4\ns_cbranch_scc1 L_isq")
midx(sCGp, sKSp, sT)
A("L_isq:")
A(f"v_lshrrev_b32 v{t1}, 5, v{vLane}\nv_and_b32 v{t2}, 31, v{vLane}\nv_lshlrev_b32 v{t0}, 6, v{t2}\nv_lshl_add_u32 v{t0}, v{t1}, 11, v{t0}\nv_add_u32 v{t0}, {XR}, v{t0}\ns_lshl_b32 s{sT}, s{sKSp}, 4")
for t in range(4):
    A(f"v_add_u32 v{vXB+t}, s{sT}, v{t0}")
    if t < 3: A(f"s_add_u32 s{sT}, s{sT}, 16\ns_and_b32 s{sT}, s{sT}, 63")
A(f"s_cmp_lt_u32 s{sWave}, 4\ns_cselect_b32 s{sT2}, {S0}, {S3}\ns_cselect_b32 s{sPB}, {pWQ}, {pW1}\ns_cselect_b32 s{sT3}, 0, {YN-XN}\ns_cselect_b32 s{sT4}, 1, 0\ns_cselect_b32 s{sT5}, 14, 8\ns_add_u32 s{sT3}, s{sT3}, {XN}")
A(f"v_lshlrev_b32 v{aXW}, 4, v{t2}\nv_lshl_add_u32 v{aXW}, v{t1}, 9, v{aXW}\nv_add_u32 v{aXW}, s{sT3}, v{aXW}")
stamp("c_set")
waitLC(pX + 4)
for t in range(4): A(f"ds_read_b128 {vr(vP+4*t,4)}, v{vXB+t}")
stamp("x")
A(f"s_and_b32 s{sT}, s{sWave}, 1\ns_lshl_b32 s{sT}, s{sT}, 1\nv_bfe_u32 v{t1}, v{r_}, 1, 2\nv_xor_b32 v{t1}, s{sT}, v{t1}\nv_lshl_add_u32 v{aPj}, v{r_}, 7, v{c4}\nv_lshl_add_u32 v{aPj}, v{t1}, 5, v{aPj}")
A(f"v_add_u32 v{aPj}, s{sT2}, v{aPj}\nv_xor_b32 v{aPj+1}, 32, v{aPj}\nv_mov_b32 v{vSig}, s{sT4}")
A(f"v_and_b32 v{t0}, 1, v{vN16}\nv_lshlrev_b32 v{t1}, 3, v{vG4}\nv_lshl_add_u32 v{aXB}, v{t0}, 9, v{t1}\nv_add_u32 v{aXB}, s{sT3}, v{aXB}")
A(f"v_lshlrev_b32 v{vPub}, s{sT5}, v{t0}\nv_lshl_add_u32 v{vPub}, v{t1}, 1, v{vPub}\nv_bfe_u32 v{t0}, v{vN16}, 1, 1\nv_lshl_add_u32 v{vPub}, v{t0}, 6, v{vPub}\ns_lshl_b32 s{sT}, s{sT}, 6\nv_add_u32 v{vPub}, s{sT}, v{vPub}")
A(f"s_mov_b32 s{sMk}, 0x0c0c0c0c\ns_mov_b32 s{sMk+1}, s{sMk}")
A(f"s_waitcnt lgkmcnt(0)\ns_add_u32 s{sT32}, s{sT32}, 9\ns_and_b32 s{sT6}, s{sT32}, 63")
A(f"s_call_b64 s[{sRA}:{sRA+1}], L_ln")
A(f"s_cmp_lt_u32 s{sWave}, 4\ns_cbranch_scc0 L_mlp")
A(f"s_lshr_b32 s{sT3}, s{sCGp}, 4\ns_lshl_b32 s{sT3}, s{sT3}, 15\ns_and_b32 s{sT}, s{sCGp}, 15\ns_lshl_b32 s{sT}, s{sT}, 8\ns_add_u32 s{sT3}, s{sT3}, s{sT}")
A(f"s_lshl_b32 s{sT}, s{sKSp}, 12\ns_add_u32 s{sT3}, s{sT3}, s{sT}\ns_add_u32 s{sT3}, s{sT3}, {P1:#x}")
A(f"s_mov_b32 s{sTgM}, 63\ns_mov_b32 s{sTgR}, 32\ns_mov_b32 s{sTgV}, s{sT6}")
stamp("ln1")
A(f"s_call_b64 s[{sRA}:{sRA+1}], L_proj")
stamp("S1")
A("s_branch L_attn2")
sec("mlp")
A("L_mlp:")
mlp_first = nst[0]
def norm(q):
    a0, mean = vS, vS+6
    for i in range(4*q, 4*q+4): pk("add", vU+2*i, vU+2*i, mean, None, NEG)
    for i in range(4*q, 4*q+4): A(f"v_cvt_pk_bf16_f32 v{vP+i}, v{vU+2*i}, v{vU+2*i+1}")
    for i in range(4*q, 4*q+4): unpack(vU+2*i, vU+2*i+1, vP+i)
    for i in range(4*q, 4*q+4): pk("mul", vU+2*i, vU+2*i, a0, None, BC)
    for i in range(4*q, 4*q+4): A(f"v_cvt_pk_bf16_f32 v{vP+i}, v{vU+2*i}, v{vU+2*i+1}")
A(f"s_load_dwordx2 s[{sB1}:{sB1+1}], s[0:1], 56")
A(f"s_cmp_lt_u32 s{si32}, 28\ns_cselect_b32 s{sB1+2}, 7168, 0\ns_mov_b32 s{sB1+3}, 0x20000")
for q in (1, 2, 3): norm(q)
A(f"s_call_b64 s[{sRA}:{sRA+1}], L_ln")
A(f"s_lshl_b32 s{sM}, s{sCGp}, 11\ns_add_u32 s{sM}, s{sM}, {P4:#x}")
A(f"s_getreg_b32 s{sTgV}, hwreg(HW_REG_XCC_ID, 0, 3)\ns_and_b32 s{sT}, s{sT32}, 0x3f8\ns_or_b32 s{sTgV}, s{sTgV}, s{sT}\ns_movk_i32 s{sTgM}, 1023\ns_movk_i32 s{sTgR}, 512\ns_mov_b32 s{sRes}, 0")
stamp("m_ln2")
vG4o, vB1o, aHW = vG1, aQW, aPXW
sG4 = sPB + 0
A(f"s_and_b32 s{sT}, s{sWave}, 1\ns_lshl_b32 s{sT2}, s{sT}, 8\nv_lshlrev_b32 v{vB1o}, 3, v{vN16}\nv_lshlrev_b32 v{vG4o}, 9, v{vG4}\nv_lshl_add_u32 v{vG4o}, v{vN16}, 4, v{vG4o}\nv_add_u32 v{vG4o}, s{sT2}, v{vG4o}")
A(f"s_lshl_b32 s{sT}, s{sT}, 7\ns_add_u32 s{sT}, s{sT}, {HL}\nv_and_b32 v{t0}, 3, v{vN16}\nv_lshlrev_b32 v{t0}, 4, v{t0}\nv_bfe_u32 v{t1}, v{vN16}, 2, 1\nv_lshl_add_u32 v{t0}, v{t1}, 3, v{t0}\nv_lshrrev_b32 v{t1}, 3, v{vN16}\nv_lshl_add_u32 v{t0}, v{t1}, 6, v{t0}\nv_add_u32 v{aHW}, s{sT}, v{t0}")
A(f"s_lshl_b32 s{sT}, s{sCGp}, 7\ns_waitcnt lgkmcnt(0)\nbuffer_load_dwordx2 {vr(vSm,2)}, v{vB1o}, {srd(sB1)}, s{sT} offen")
if OPT["pr4"]: A(f"buffer_load_dword v{vQ}, v{vG4o}, {srd(sWS)}, s{sM} offen sc1")
A("s_waitcnt vmcnt(0)")
unpack(vSm+4, vSm+5, vSm); unpack(vSm+6, vSm+7, vSm+1)
if OPT["dry"]:
    dry_on(); A("s_branch L_mtail\nL_mreal:"); dry_off()
A(f"s_lshl_b32 s{sT}, s{sKSp}, 9\ns_add_u32 s{sT3}, s{sM}, s{sT}\ns_mov_b32 s{sGi}, s{sT3}")
A(f"s_call_b64 s[{sRA}:{sRA+1}], L_proj")
stamp("m_S4")
A("L_mtail:")
waitLC(OPT["g4"])
if OPT.get("ackw"): vm("s_waitcnt vmcnt(0)")

stamp("m_g4i")
def g4(): vm(f"buffer_load_dwordx4 {vr(vQ,4)}, v{vG4o}, {srd(sWS)}, s{sM} offen sc1")
g4()
vm("s_waitcnt vmcnt(0)")
def restore4():
    l = newlab("rs")
    A(f"s_cmp_lg_u32 s{sRes}, 0\ns_cbranch_scc1 {l}\ns_mov_b32 s{sRes}, 1")
    setexec(0x000f000f000f000f)
    vm(f"buffer_store_dwordx4 {vr(vAcc,4)}, v{vPub}, {srd(sWS)}, s{sGi} offen sc1")
    fullexec()
    A(f"{l}:")
def g4retry():
    if OPT["loc4"]:
        l = newlab("nr")
        A(f"s_bfe_u32 s{sNeed}, s{sRetry}, 0x80010\ns_cmp_lt_u32 s{sNeed}, {OPT['rs4']}\ns_cbranch_scc1 {l}")
        restore4(); A(f"{l}:")
    g4()
A("L_g4chk:")
for r in range(4): A(f"v_xor_b32 v{vQ+r}, s{sTgV}, v{vQ+r}")
orred(vS+1, range(vQ, vQ+4))
A(f"v_and_b32 v{vS}, 0x3f8, v{vS+1}")
retry_tail("g4", g4retry, 0x10000, False)
if OPT["loc4"]:
    A(f"v_and_b32 v{vS}, 7, v{vS+1}\nv_cmp_ne_u32 vcc, 0, v{vS}\ns_cbranch_vccz L_alllocal")
    restore4()
    for r in range(4): A(f"v_and_b32 v{vQ+r}, -8, v{vQ+r}")
    A("L_alllocal:")
stamp("m_g4ok")
vH = vQ
allred([vH, vH+1, vH+2, vH+3], "v_add_f32", ["p16", "p32"], [vH+4, vH+5, vH+6, vH+7])
A(f"v_cvt_pk_bf16_f32 v{vH+4}, v{vH}, v{vH+1}\nv_cvt_pk_bf16_f32 v{vH+5}, v{vH+2}, v{vH+3}")
unpack(vH, vH+1, vH+4); unpack(vH+2, vH+3, vH+5)
pk("add", vH, vH, vSm+4); pk("add", vH+2, vH+2, vSm+6)
A(f"v_cvt_pk_bf16_f32 v{vH+4}, v{vH}, v{vH+1}\nv_cvt_pk_bf16_f32 v{vH+5}, v{vH+2}, v{vH+3}")
unpack(vH, vH+1, vH+4); unpack(vH+2, vH+3, vH+5)
pk("mul", vH+4, vH, vH); pk("mul", vH+6, vH+2, vH+2)
for r in range(4): A(f"v_mul_f32 v{vH+4+r}, 0xbdd2d3e8, v{vH+4+r}")
for r in range(4): A(f"v_add_f32 v{vH+4+r}, 0xc0135761, v{vH+4+r}")
pk("mul", vH+4, vH+4, vH); pk("mul", vH+6, vH+6, vH+2)
for r in range(4): A(f"v_exp_f32 v{vH+4+r}, v{vH+4+r}")
for r in range(4): A(f"v_add_f32 v{vH+4+r}, 1.0, v{vH+4+r}")
for r in range(4): A(f"v_rcp_f32 v{vH+4+r}, v{vH+4+r}")
pk("mul", vH, vH, vH+4); pk("mul", vH+2, vH+2, vH+6)
A(f"v_cvt_pk_bf16_f32 v{vH}, v{vH}, v{vH+1}\nv_cvt_pk_bf16_f32 v{vH+1}, v{vH+2}, v{vH+3}")
A(f"ds_write_b64 v{aHW}, {vr(vH,2)}")
signal(1)
if OPT["dry"]: A("s_cbranch_execz L_mreal")
stamp("m_h")
if DUMP and not OPT.get("mini"):
    A(f"s_cmp_lg_u32 s{sWave}, 5\ns_cbranch_scc1 L_end"); dump_stamps(lambda n: n.startswith("m_"), 8*31+4)
if "probe" in OPT and STN[0].startswith("m_"): probe_pad()
A("s_endpgm")
nst[0] = mlp_first
sec("attn")
A("L_attn:")
if OPT.get("tlb"):
    A(f"s_cmp_lg_u32 s{sWave}, 1\ns_cbranch_scc1 L_notlb")
    A("s_load_dwordx4 s[8:11], s[0:1], 8\ns_load_dwordx2 s[12:13], s[0:1], 32\ns_load_dwordx2 s[14:15], s[0:1], 48\ns_load_dwordx2 s[16:17], s[0:1], 64")
    A(f"s_and_b32 s{sT}, s{sx8}, 1\ns_lshl_b32 s{sT}, s{sT}, 2\ns_lshr_b32 s{sT2}, s{sx8}, 1\ns_add_u32 s{sT}, s{sT}, s{sT2}\ns_lshl_b32 s{sT}, s{sT}, 22\ns_add_u32 s{sT}, s{sT}, 0x300000\ns_lshl_b32 s{sT2}, s{si32}, 12\ns_add_u32 s{sT}, s{sT}, s{sT2}\nv_mov_b32 v{vU+8}, s{sT}")
    A(f"s_lshl_b32 s{sT}, s{sx8}, 20\ns_lshl_b32 s{sT2}, s{si32}, 15\ns_add_u32 s{sT}, s{sT}, s{sT2}\nv_mov_b32 v{vU+9}, s{sT}")
    A(f"s_mul_i32 s{sT}, s{sx8}, {7*131072}\ns_min_u32 s{sT2}, s{si32}, 27\ns_lshl_b32 s{sT2}, s{sT2}, 15\ns_add_u32 s{sT}, s{sT}, s{sT2}\nv_mov_b32 v{vU+10}, s{sT}")
    A(f"v_lshlrev_b32 v{vU+11}, 21, v{vLane}\ns_lshl_b32 s{sT2}, s2, 8\nv_add_u32 v{vU+11}, s{sT2}, v{vU+11}")
    A(f"s_waitcnt lgkmcnt(0)\ns_mov_b64 exec, 1")
    A(f"global_load_dword v{vU+12}, v{vU+8}, s[8:9]\nglobal_load_dword v{vU+13}, v{vU+8}, s[10:11]\nglobal_load_dword v{vU+14}, v{vU+9}, s[12:13]\nglobal_load_dword v{vU+15}, v{vU+10}, s[16:17]")
    A(f"s_mov_b64 exec, 15\nglobal_load_dword v{vU+16}, v{vU+11}, s[14:15]\ns_mov_b64 exec, -1\nL_notlb:")
signal(1)
A(f"s_waitcnt lgkmcnt(0)\ns_add_u32 s{sT32}, s{sT32}, 9\ns_and_b32 s{sT6}, s{sT32}, 63")
A("L_attn2:")
A(f"s_lshl_b32 s{sS}, s{sx8}, 5\ns_add_u32 s{sS}, s{sS}, s{si32}\ns_lshl_b32 s{sW8}, s{sWave}, 3\ns_add_u32 s{sW8}, s{sW8}, 8")
A(f"s_bfe_u32 s{sR4}, s{si32}, 0x10004\ns_lshl_b32 s{sT}, s{sR4}, 14")
A(f"v_and_b32 v{t0}, 7, v{r_}\nv_lshlrev_b32 v{t2}, 2, v{j}\nv_xor_b32 v{t1}, v{t0}, v{t2}\nv_lshl_add_u32 v{aW}, v{r_}, 9, v{c4}\nv_lshl_add_u32 v{aW}, v{t1}, 5, v{aW}\nv_add_u32 v{aW}, s{sT}, v{aW}")
for ct in (1, 2, 3): A(f"v_xor_b32 v{aW+ct}, {32*ct}, v{aW}")
A(f"v_lshlrev_b32 v{t2}, 1, v{j}\nv_xor_b32 v{t1}, v{t0}, v{t2}\nv_lshl_add_u32 v{aV}, v{r_}, 8, v{c4}\nv_lshl_add_u32 v{aV}, v{t1}, 5, v{aV}\nv_add_u32 v{aV}, {S2}, v{aV}\nv_xor_b32 v{aV+1}, 32, v{aV}")
A(f"v_xor_b32 v{t1}, v{vG4}, v{vN16}\nv_lshlrev_b32 v{t1}, 4, v{t1}\nv_lshl_add_u32 v{t1}, v{vN16}, 8, v{t1}\nv_lshl_add_u32 v{t1}, v{j}, 13, v{t1}\nv_add_u32 v{aK}, {S1}, v{t1}")
for s_ in (1, 2, 3): A(f"v_xor_b32 v{aK+s_}, {64*s_}, v{aK}")
A(f"v_and_b32 v{t1}, 7, v{vN16}\nv_mul_u32_u24 v{aQ}, 272, v{t1}\nv_lshl_add_u32 v{aQ}, v{vG4}, 4, v{aQ}\nv_add_u32 v{aQ}, {QL}, v{aQ}")
A(f"v_lshlrev_b32 v{vS2l}, 3, v{t1}\nv_add_u32 v{aMLR}, {ML}, v{vS2l}\nv_lshl_add_u32 v{aMLW}, v{j}, 6, v{aMLR}")
A(f"v_lshlrev_b32 v{vS2o}, 6, v{t1}\nv_lshl_add_u32 v{vS2o}, v{j}, 9, v{vS2o}\nv_lshl_add_u32 v{vS2o}, v{vG4}, 4, v{vS2o}")
A(f"v_lshlrev_b32 v{vG1}, 4, v0\nv_add_u32 v{aPXW}, {PX}, v{vG1}\nv_lshlrev_b32 v{aPXR}, 4, v{vLane}\nv_add_u32 v{aPXR}, {PX}, v{aPXR}")
A(f"v_lshrrev_b32 v{t1}, 5, v0\nv_and_b32 v{t2}, 31, v0\nv_mul_u32_u24 v{aQW}, 272, v{t1}\nv_lshl_add_u32 v{aQW}, v{t2}, 3, v{aQW}\nv_add_u32 v{aQW}, {QL}, v{aQW}")
A(f"v_lshrrev_b32 v{t0}, 3, v{vLane}\nv_and_b32 v{t1}, 7, v{vLane}\nv_lshlrev_b32 v{t2}, 4, v{t1}\nv_lshl_add_u32 v{vG2}, v{t0}, 11, v{t2}")
A(f"v_lshrrev_b32 v{t1}, 2, v{t1}\nv_lshlrev_b32 v{t1}, 3, v{t1}\nv_lshl_add_u32 v{vG2l}, v{t0}, 8, v{t1}")
A(f"v_lshl_add_u32 v{aOLW}, v{t0}, 1, v{t2}\ns_xor_b32 s{sT}, s{sWave}, s{sx8}\ns_and_b32 s{sT}, s{sT}, 1\ns_lshl_b32 s{sT}, s{sT}, 7\ns_add_u32 s{sT}, s{sT}, {OL}\nv_add_u32 v{aOLW}, s{sT}, v{aOLW}")
A(f"v_and_b32 v{t0}, 7, v{vLane}\nv_xor_b32 v{t0}, s{sT32}, v{t0}")
for k in range(4): A(f"v_bfe_u32 v{vE2+k}, v{t0}, {k}, 1")
A(f"v_and_b32 v{t1}, 1, v{vLane}\nv_lshlrev_b32 v{aOLR}, 4, v{vG4}\nv_lshl_add_u32 v{aOLR}, v{t1}, 7, v{aOLR}\ns_lshl_b32 s{sT}, s{sR4}, 6\ns_add_u32 s{sT}, s{sT}, {OL}\nv_add_u32 v{aOLR}, s{sT}, v{aOLR}")
A(f"v_lshlrev_b32 v{vP3}, 10, v{t1}\nv_lshl_add_u32 v{vP3}, v{j}, 8, v{vP3}\nv_lshl_add_u32 v{vP3}, v{vG4}, 4, v{vP3}\nv_bfe_u32 v{t2}, v{vLane}, 1, 2\nv_lshl_add_u32 v{vP3}, v{t2}, 6, v{vP3}")
for i, mk in enumerate((0x0c0c0c0c, 0x30303030, 0xc0c0c0c0)):
    A(f"s_mov_b32 s{sMk+2*i}, {mk:#x}\ns_mov_b32 s{sMk+2*i+1}, s{sMk+2*i}")
A(f"v_and_b32 v{t0}, 1, v{vLane}\nv_lshl_add_u32 v{t0}, v{t0}, 2, v{vG4}\nv_xor_b32 v{t0}, s{sT32}, v{t0}")
for k in range(4): A(f"v_bfe_u32 v{vE+k}, v{t0}, {k}, 1")
A(f"s_getreg_b32 s{sTgV}, hwreg(HW_REG_XCC_ID, 0, 3)\ns_and_b32 s{sT}, s{sT32}, -8\ns_or_b32 s{sTgV}, s{sTgV}, s{sT}")
if OPT["pr2"]:
    A(f"s_lshl_b32 s{sT}, s{sS}, 11\ns_add_u32 s{sT}, s{sT}, {P2:#x}\ns_lshl_b32 s{sT2}, s{sS}, 7\ns_add_u32 s{sT2}, s{sT2}, {P2L:#x}")
    A(f"s_cmp_lg_u32 s{sWave}, 1\ns_cbranch_scc1 L_nopr2\nv_lshlrev_b32 v{t0}, 6, v{vLane}\ns_mov_b32 exec_hi, 0")
    A(f"buffer_load_dword v{vU+3}, v{t0}, {srd(sWS)}, s{sT} offen sc1\ns_mov_b64 exec, 1\nbuffer_load_dword v{vU+4}, v{t0}, {srd(sWS)}, s{sT2} offen sc1\ns_mov_b64 exec, -1\nL_nopr2:")
if 0:
    A(f"s_cmp_lg_u32 s{sWave}, 1\ns_cbranch_scc1 L_nopr2")
    A(f"s_and_b32 s{sT5}, s{sx8}, 6\ns_lshl_b32 s{sT}, s{sT5}, 16\ns_bfe_u32 s{sT2}, s{sS}, 0x20002\ns_lshl_b32 s{sT2}, s{sT2}, 9\ns_add_u32 s{sT}, s{sT}, s{sT2}\ns_bfe_u32 s{sT2}, s{sS}, 0x20004\ns_lshl_b32 s{sT2}, s{sT2}, 7\ns_add_u32 s{sT}, s{sT}, s{sT2}")
    A(f"s_and_b32 s{sT2}, s{si32}, 3\ns_lshl_b32 s{sT2}, s{sT2}, 15\ns_add_u32 s{sT}, s{sT}, s{sT2}\ns_add_u32 s{sT}, s{sT}, {P2:#x}")
    A(f"s_lshl_b32 s{sT5}, s{sT5}, 12\ns_lshl_b32 s{sT2}, s{si32}, 8\ns_add_u32 s{sT5}, s{sT5}, s{sT2}\ns_add_u32 s{sT5}, s{sT5}, {P2L:#x}")
    A(f"v_lshrrev_b32 v{t0}, 1, v{vLane}\nv_and_b32 v{t1}, 1, v{vLane}\nv_lshlrev_b32 v{t1}, 6, v{t1}\nv_lshl_add_u32 v{t0}, v{t0}, 11, v{t1}\nv_lshlrev_b32 v{t1}, 7, v{vLane}")
    A(f"s_mov_b64 exec, 0xffffffff\nbuffer_load_dword v{vU+3}, v{t0}, {srd(sWS)}, s{sT} offen sc1\ns_mov_b64 exec, 3\nbuffer_load_dword v{vU+4}, v{t1}, {srd(sWS)}, s{sT5} offen sc1\ns_mov_b64 exec, -1\nL_nopr2:")
if OPT["pr1"]:
    A(f"s_cmp_lg_u32 s{sWave}, 0\ns_cbranch_scc1 L_nopr\ns_lshl_b32 s{sT}, s{sS}, 9\ns_add_u32 s{sT}, s{sT}, {P1:#x}\nv_lshlrev_b32 v{t0}, 6, v{vLane}\ns_mov_b64 exec, 0xff")
    A(f"buffer_load_dword v{vU+3}, v{t0}, {srd(sWS)}, s{sT} offen sc1\ns_mov_b64 exec, -1\nL_nopr:")
if OPT["dry"]:
    A(f"s_cmp_ge_u32 s{sWave}, 2\ns_cbranch_scc1 L_partA")
    dry_on()
    A(f"s_cmp_eq_u32 s{sWave}, 1\ns_cbranch_scc1 L_partB\ns_branch L_partA\nL_areal:")
    dry_off()
A("L_partA:")
A(f"s_lshl_b32 s{sT}, s{sx8}, 14\ns_add_u32 s{sT}, s{sT}, {P1:#x}\ns_add_u32 s{sT2}, s{sT}, 4096\ns_add_u32 s{sT3}, s{sT}, 8192\ns_add_u32 s{sT4}, s{sT}, 12288")
def g1():
  if ABL != 6: vm("\n".join(f"buffer_load_dwordx4 {vr(vG+4*k,4)}, v{vG1}, {srd(sWS)}, s{so} offen sc1" for k, so in enumerate((sT, sT2, sT3, sT4))))
def kfrags():
    waitLC(pK, sW8)
    for T in range(2):
        for s_ in range(4): A(f"ds_read_b128 {vr(vKF+16*T+4*s_,4)}, v{aK+s_} offset:{4096*T}")
if OPT["g1"] >= pV: kfrags()
A(f"s_cmp_lt_u32 s{si32}, 28\ns_cselect_b32 s{sM}, 0, {OPT.get('g1x', 0)}")
waitLC(OPT["g1"], sM)
stamp("g1i")
g1()
if OPT["g1"] < pV: kfrags()
signal(3)
A(f"v_mov_b32 v{vS+4}, 0x3db504f3\nv_mov_b32 v{vS+6}, 0x3fb8aa3b")
A("s_waitcnt vmcnt(0)")
stamp("g1a")
chk6(vG, 16, "g1", g1, 1)
stamp("g1ok")
pk("add", vG, vG, vG+4); pk("add", vG+8, vG+8, vG+12); pk("add", vG+2, vG+2, vG+6); pk("add", vG+10, vG+10, vG+14)
pk("add", vG, vG, vG+8); pk("add", vG+2, vG+2, vG+10)
A(f"v_cvt_pk_bf16_f32 v{vG}, v{vG}, v{vG+1}\nv_cvt_pk_bf16_f32 v{vG+1}, v{vG+2}, v{vG+3}\nds_write_b64 v{aQW}, {vr(vG,2)}")
LB(4)
stamp("lb3")
for s_ in range(4): A(f"ds_read_b128 {vr(vQ+4*s_,4)}, v{aQ} offset:{64*s_}")
for s_ in range(4):
    A(f"s_waitcnt lgkmcnt({3-s_})")
    for T in range(2):
        c = "0" if s_ == 0 else vr(vU+4*T, 4)
        A(f"v_mfma_f32_16x16x32_bf16 {vr(vU+4*T,4)}, {vr(vKF+16*T+4*s_,4)}, {vr(vQ+4*s_,4)}, {c}")
vM, vL = vS, vS+1
for p in range(4): A(f"v_cvt_pk_bf16_f32 v{vU+8+p}, v{vU+2*p}, v{vU+2*p+1}")
for p in range(4): unpack(vU+2*p, vU+2*p+1, vU+8+p)
for p in range(4): pk("mul", vU+2*p, vU+2*p, vS+4, None, BC)
for p in range(4): A(f"v_cvt_pk_bf16_f32 v{vU+8+p}, v{vU+2*p}, v{vU+2*p+1}")
for p in range(4): unpack(vU+2*p, vU+2*p+1, vU+8+p)
A(f"v_max3_f32 v{vM}, v{vU}, v{vU+1}, v{vU+2}\nv_max3_f32 v{vS+2}, v{vU+3}, v{vU+4}, v{vU+5}\nv_max3_f32 v{vM}, v{vM}, v{vU+6}, v{vU+7}\nv_max_f32 v{vM}, v{vM}, v{vS+2}")
allred(vM, "v_max_f32", ["p16", "p32"], vS+2)
A(f"v_mul_f32 v{vM}, v{vM}, v{vS+6}")
for p in range(4): pk("fma", vU+2*p, vU+2*p, vS+6, vM, "op_sel_hi:[1,0,0] neg_lo:[0,0,1] neg_hi:[0,0,1]")
for r in range(8): A(f"v_exp_f32 v{vU+r}, v{vU+r}")
for p in range(4): A(f"v_cvt_pk_bf16_f32 v{vU+8+p}, v{vU+2*p}, v{vU+2*p+1}")
A(f"ds_write_b128 v{aPXW}, {vr(vU+8,4)}")
pk("add", vU, vU, vU+2); pk("add", vU+4, vU+4, vU+6); pk("add", vU, vU, vU+4)
A(f"v_add_f32 v{vL}, v{vU}, v{vU+1}")
allred(vL, "v_add_f32", ["p16", "p32"], vS+2)
A(f"ds_write_b64 v{aMLW}, {vr(vM,2)}")
signal(5)
stamp("sm")
waitLC(pW1)
for w in range(4):
    for d in range(2):
        f = vF + 8*w + 4*d
        A(f"ds_read_b64_tr_b16 {vr(f,2)}, v{aV+d} offset:{8192*w}\nds_read_b64_tr_b16 {vr(f+2,2)}, v{aV+d} offset:{8192*w + 4096}")
A(f"s_lshl_b32 s{sT}, s{sS}, 11\ns_add_u32 s{sT}, s{sT}, {P2:#x}\ns_lshl_b32 s{sT2}, s{sS}, 8\ns_add_u32 s{sT2}, s{sT2}, {P2L:#x}\ns_mov_b32 s{sT3}, 0xfffe0000\ns_mov_b32 s{sT4}, 0x10000")
A(f"s_bitcmp1_b32 s{sx8}, 0\ns_mov_b32 s{sT5}, 0x00f000f0\ns_cselect_b32 s{sT5}, 0x000f000f, s{sT5}")
waitPW(5)
stamp("lb4")
for w in range(4): A(f"ds_read_b128 {vr(vQ+4*w,4)}, v{aPXR} offset:{1024*w}")
for w in range(4): A(f"ds_read_b64 {vr(vU+16+2*w,2)}, v{aMLR} offset:{64*w}")
for w in range(4):
    A(f"s_waitcnt lgkmcnt({7-w})")
    for d in range(2): A(f"v_mfma_f32_16x16x32_bf16 {vr(vAcc+8*w+4*d,4)}, {vr(vF+8*w+4*d,4)}, {vr(vQ+4*w,4)}, 0")
A("s_waitcnt lgkmcnt(0)")
m = lambda w: vU + 16 + 2*w
A(f"v_max3_f32 v{vM}, v{m(0)}, v{m(1)}, v{m(2)}\nv_max_f32 v{vM}, v{vM}, v{m(3)}")
for w in range(4): A(f"v_sub_f32 v{m(w)}, v{m(w)}, v{vM}")
for w in range(4): A(f"v_exp_f32 v{m(w)}, v{m(w)}")
A(f"v_mul_f32 v{vL}, v{m(0)}, v{m(0)+1}")
for w in range(1, 4): A(f"v_fmac_f32 v{vL}, v{m(w)}, v{m(w)+1}")
A(f"v_rcp_f32 v{vS+2}, v{vL}\nv_log_f32 v{vS+3}, v{vL}")
for w in range(4): A(f"v_mul_f32 v{m(w)}, v{m(w)}, v{vS+2}")
for h in (0, 2, 4, 6): pk("mul", vAcc+h, vAcc+h, m(0), None, BC)
for w in range(1, 4):
    for h in (0, 2, 4, 6): pk("fma", vAcc+h, vAcc+8*w+h, m(w), vAcc+h, BC3)
for k in range(4): A(f"v_add_u32 v{vAcc+2*k}, s{sT4}, v{vAcc+2*k}")
for k in range(4): A(f"v_and_b32 v{vAcc+2*k}, s{sT3}, v{vAcc+2*k}")
for k in range(4): A(f"v_cvt_pk_bf16_f32 v{vU+k}, v{vAcc+2*k}, v{vAcc+2*k+1}")
for k in range(4): A(f"v_or_b32 v{vU+k}, v{vE+k}, v{vU+k}")
A(f"v_add_f32 v{vU+4}, v{vM}, v{vS+3}\nv_mov_b32 v{vU+5}, s{sTgV}")
A(f"s_and_b32 exec_lo, s{sLive}, s{sT5}\ns_mov_b32 exec_hi, exec_lo")
vm(f"buffer_store_dwordx4 {vr(vU,4)}, v{vS2o}, {srd(sWS)}, s{sT} offen sc1")
A(f"s_xor_b32 s{sT5}, s{sT5}, 0x00ff00ff\ns_and_b32 exec_lo, s{sLive}, s{sT5}\ns_mov_b32 exec_hi, exec_lo")
vm(f"buffer_store_dwordx4 {vr(vU,4)}, v{vS2o}, {srd(sWS)}, s{sT} offen")
setexec(0x00ff00ff00ff00ff)
A(f"s_cmp_lg_u32 s{sWave}, 0\ns_cbranch_scc1 L_nolse")
setexec(0xff)
vm(f"buffer_store_dwordx2 {vr(vU+4,2)}, v{vS2l}, {srd(sWS)}, s{sT2} offen offset:128 sc1\nbuffer_store_dwordx2 {vr(vU+4,2)}, v{vS2l}, {srd(sWS)}, s{sT2} offen")
A(f"v_add_u32 v{vS+4}, {S2C + 2048}, v{vS2l}\nds_write_b64 v{vS+4}, {vr(vU+4,2)}")
setexec(0x00ff00ff00ff00ff)
A("L_nolse:")
A(f"v_add_u32 v{vS+4}, {S2C}, v{vS2o}\nds_write_b128 v{vS+4}, {vr(vU,4)}")
fullexec()
signal(6)
if OPT["dry"]: A("s_cbranch_execz L_areal")
stamp("S2")
A("L_partB:")
def frag_reads(fb, base, k):
    for ct in range(4):
        f = fb + 16*k + 4*ct
        A(f"ds_read_b64_tr_b16 {vr(f,2)}, v{aW+ct} offset:{base}\nds_read_b64_tr_b16 {vr(f+2,2)}, v{aW+ct} offset:{base + 8192}")
def flipW():
    for ct in range(4): A(f"v_xor_b32 v{aW+ct}, 0x4000, v{aW+ct}")
def mfmas(fb, xb, first, wait=None):
    for ct in range(4):
        if wait is not None: A(f"s_waitcnt lgkmcnt({wait + 6 - 2*ct})")
        c = "0" if first else vr(vAcc+4*ct, 4)
        A(f"v_mfma_f32_16x16x32_bf16 {vr(vAcc+4*ct,4)}, {vr(fb+4*ct,4)}, {vr(xb,4)}, {c}")
A(f"s_mov_b32 s{sRes}, 0\ns_cmp_ge_u32 s{sWave}, 2\ns_cbranch_scc1 L_sig7")
vM, vL = vS, vS+1
vZ = vSm
def g2():
    vm("\n".join(f"buffer_load_dwordx4 {vr(vG+4*k,4)}, v{vG2}, {srd(sWS)}, s{so} offen sc1" for k, so in enumerate((sT, sT2, sT3, sT4))) + "\n" +
       "\n".join(f"buffer_load_dwordx2 {vr(vZ+2*k,2)}, v{vG2l}, {srd(sWS)}, s{sT5 if k < 2 else sGi} offen offset:{2048*(k%2)} sc1" for k in range(4)))
A(f"s_xor_b32 s{sT2}, s{sx8}, s{sWave}\ns_lshl_b32 s{sT}, s{sT2}, 16\ns_lshl_b32 s{sT5}, s{sT2}, 13\ns_lshl_b32 s{sT2}, s{sWave}, 7\ns_add_u32 s{sT5}, s{sT5}, s{sT2}")
A(f"s_bfe_u32 s{sT2}, s{sS}, 0x20002\ns_lshl_b32 s{sT2}, s{sT2}, 9\ns_add_u32 s{sT}, s{sT}, s{sT2}\ns_bfe_u32 s{sT2}, s{sS}, 0x20004")
A(f"s_lshl_b32 s{sT3}, s{sT2}, 7\ns_add_u32 s{sT}, s{sT}, s{sT3}\ns_add_u32 s{sT}, s{sT}, {P2:#x}")
A(f"s_lshl_b32 s{sT2}, s{sT2}, 4\ns_add_u32 s{sT5}, s{sT5}, s{sT2}\ns_add_u32 s{sT5}, s{sT5}, {P2L:#x}\ns_add_u32 s{sGi}, s{sT5}, 4096")
A(f"s_add_u32 s{sT2}, s{sT}, 16384\ns_add_u32 s{sT3}, s{sT}, 32768\ns_add_u32 s{sT4}, s{sT}, 49152")
A(f"s_mul_i32 s{sM}, s{sWave}, {OPT['g2r'] - OPT['g2']}")
waitLC(OPT["g2"], sM)
stamp("g2i")
g2()
signal(7)
def wofrags():
    waitLC(pW2)
    frag_reads(vF, S0, 0); flipW(); frag_reads(vF, S0, 1); flipW()
wofrags()
vm("s_waitcnt vmcnt(0)")
stamp("g2a")
A("L_g2chk:")
for t in range(4):
    for k in range(4): A(f"v_xor_b32 v{vG+4*t+k}, v{vE2+k}, v{vG+4*t+k}")
for t in range(4): A(f"v_xor_b32 v{vZ+2*t+1}, s{sTgV}, v{vZ+2*t+1}")
orred(vS, range(vG, vG+16))
A(f"v_or3_b32 v{vS+1}, v{vZ+1}, v{vZ+3}, v{vZ+5}\nv_and_b32 v{vS}, 1, v{vS}\nv_or_b32 v{vS+1}, v{vS+1}, v{vZ+7}\nv_and_or_b32 v{vS}, v{vS+1}, -8, v{vS}")
def restore2():
    l = newlab("rs")
    A(f"s_or_b32 s{sNeed}, s{sRes}, s{sWave}\ns_cbranch_scc1 {l}\ns_mov_b32 s{sRes}, 1")
    waitPW(6)
    A(f"v_lshlrev_b32 v{vP}, 4, v{vLane}\nv_add_u32 v{vP+1}, {S2C}, v{vP}\nv_lshlrev_b32 v{vP+2}, 3, v{vLane}\nv_add_u32 v{vP+3}, {S2C + 2048}, v{vP+2}")
    A(f"ds_read_b128 {vr(vP+4,4)}, v{vP+1}\nds_read_b128 {vr(vP+8,4)}, v{vP+1} offset:1024\nds_read_b64 {vr(vP+12,2)}, v{vP+3}")
    A(f"s_lshl_b32 s{sNeed}, s{sS}, 11\ns_add_u32 s{sNeed}, s{sNeed}, {P2:#x}\ns_waitcnt lgkmcnt(0)\nbuffer_store_dwordx4 {vr(vP+4,4)}, v{vP}, {srd(sWS)}, s{sNeed} offen sc1\nbuffer_store_dwordx4 {vr(vP+8,4)}, v{vP}, {srd(sWS)}, s{sNeed} offen offset:1024 sc1")
    A(f"s_lshl_b32 s{sNeed}, s{sS}, 8\ns_add_u32 s{sNeed}, s{sNeed}, {P2L:#x}\ns_mov_b64 exec, 0xff\nbuffer_store_dwordx2 {vr(vP+12,2)}, v{vP+2}, {srd(sWS)}, s{sNeed} offen sc1\ns_mov_b64 exec, -1\n{l}:")
def g2retry():
    l = newlab("nr")
    A(f"s_bfe_u32 s{sNeed}, s{sRetry}, 0x80008\ns_cmp_lt_u32 s{sNeed}, {OPT['rs2']}\ns_cbranch_scc1 {l}")
    restore2(); A(f"{l}:")
    g2()
retry_tail("g2", g2retry, 0x100, False)
A(f"v_and_b32 v{vS}, 7, v{vS+1}\nv_cmp_ne_u32 vcc, 0, v{vS}\ns_cbranch_vccz L_alllocal2")
restore2()
A("L_alllocal2:")
stamp("g2ok")
ls = lambda t: vZ + 2*t
A(f"v_max3_f32 v{vM}, v{ls(0)}, v{ls(1)}, v{ls(2)}\nv_max_f32 v{vM}, v{vM}, v{ls(3)}")
up = [(vU + 8*t + 2*k, vG + 4*t + k) for t in range(4) for k in range(4)]
def ups(n):
    for _ in range(n):
        d, s_ = up.pop(0); unpack(d, d+1, s_)
ups(1); allred(vM, "v_max_f32", ["r8"], None)
A(f"v_mov_b32 v{vS+2}, v{vM}"); ups(1); A(f"v_permlane16_swap_b32 v{vM}, v{vS+2}\nv_max_f32 v{vM}, v{vM}, v{vS+2}")
A(f"v_mov_b32 v{vS+2}, v{vM}"); ups(1); A(f"v_permlane32_swap_b32 v{vM}, v{vS+2}\nv_max_f32 v{vM}, v{vM}, v{vS+2}")
for t in range(4): A(f"v_sub_f32 v{ls(t)}, v{ls(t)}, v{vM}")
for t in range(4): A(f"v_exp_f32 v{ls(t)}, v{ls(t)}")
ups(13)
A(f"v_add_f32 v{vL}, v{ls(0)}, v{ls(1)}\nv_add_f32 v{vS+2}, v{ls(2)}, v{ls(3)}\nv_add_f32 v{vL}, v{vL}, v{vS+2}")
for h in (0, 2, 4, 6): pk("mul", vU+h, vU+h, ls(0), None, BC)
allred(vL, "v_add_f32", ["r8"], None)
for h in (0, 2, 4, 6): pk("fma", vU+h, vU+8+h, ls(1), vU+h, BC3)
A(f"v_mov_b32 v{vS+2}, v{vL}")
for h in (0, 2, 4, 6): pk("fma", vU+h, vU+16+h, ls(2), vU+h, BC3)
A(f"v_permlane16_swap_b32 v{vL}, v{vS+2}\nv_add_f32 v{vL}, v{vL}, v{vS+2}\nv_mov_b32 v{vS+2}, v{vL}")
for h in (0, 2, 4, 6): pk("fma", vU+h, vU+24+h, ls(3), vU+h, BC3)
A(f"v_permlane32_swap_b32 v{vL}, v{vS+2}\nv_add_f32 v{vL}, v{vL}, v{vS+2}")
for k in range(4): A(f"v_permlane32_swap_b32 v{vU+k}, v{vU+4+k}")
A(f"v_rcp_f32 v{vL}, v{vL}")
pk("add", vU, vU, vU+4); pk("add", vU+2, vU+2, vU+6)
A(f"s_mov_b32 vcc_lo, 0xff00ff00\ns_mov_b32 vcc_hi, vcc_lo")
A(f"v_permlane16_swap_b32 v{vU}, v{vU+2}\nv_permlane16_swap_b32 v{vU+1}, v{vU+3}")
pk("add", vU, vU, vU+2)
A(f"v_cndmask_b32 v{vU+2}, v{vU}, v{vU+1}, vcc\nv_cndmask_b32 v{vU+3}, v{vU+1}, v{vU}, vcc")
A(f"v_add_f32_dpp v{vU+2}, v{vU+3}, v{vU+2} row_ror:8 row_mask:0xf bank_mask:0xf")
A(f"v_mul_f32 v{vU+2}, v{vU+2}, v{vL}\nv_cvt_pk_bf16_f32 v{vU+2}, v{vU+2}, v{vU+2}")
stamp("oc")
A(f"ds_write_b16 v{aOLW}, v{vU+2}")
signal(8)
A("s_branch L_tail\nL_sig7:")
signal(8)
wofrags()
A("L_tail:")
A(f"s_and_b32 s{sT}, s{sS}, 3\ns_lshl_b32 s{sT}, s{sT}, 17\ns_lshr_b32 s{sT2}, s{sS}, 2\ns_lshl_b32 s{sT2}, s{sT2}, 11\ns_add_u32 s{sT}, s{sT}, s{sT2}\ns_add_u32 s{sT}, s{sT}, {P3:#x}")
A(f"s_movk_i32 s{sC63}, 0xfff\ns_and_b32 s{sT2}, s{sT32}, s{sC63}\nv_mov_b32 v{vS}, s{sT2}\nv_xor_b32 v{vS+1}, 64, v{aOLR}")
A(f"s_movk_i32 s{sNeed}, {pW2 + 16}\nL_hw:\nds_read_b128 {vr(vFl,4)}, v{aFL} offset:16\ns_waitcnt lgkmcnt(0)")
A(f"v_min_i32 v{vFl}, v{vFl}, v{vFl+1}\nv_cmp_gt_i32 vcc, s{sNeed}, v{vFl+2}\nv_cmp_gt_i32 s[{sRA}:{sRA+1}], 1, v{vFl}\ns_or_b64 vcc, vcc, s[{sRA}:{sRA+1}]\ns_cbranch_vccnz L_hw")
A(f"ds_read_b128 {vr(vQ+8,4)}, v{aOLR} offset:256\nds_read_b128 {vr(vQ+12,4)}, v{vS+1} offset:256")
frag_reads(vXB, S1, 0); flipW()
stamp("h")
mfmas(vXB, vQ+8, True, 0)
def opart():
    A(f"ds_read_b128 {vr(vQ,4)}, v{aOLR}\nds_read_b128 {vr(vQ+4,4)}, v{vS+1}")
    A("s_waitcnt lgkmcnt(1)"); mfmas(vF, vQ, False)
    A("s_waitcnt lgkmcnt(0)"); mfmas(vF+16, vQ+4, False)
def wpart():
    frag_reads(vXB, S1, 1)
    mfmas(vXB+16, vQ+12, False, 0)
A(f"s_movk_i32 s{sNeed}, {pEND}\nL_race:\nds_read_b32 v{vS+2}, v{aFL} offset:{LCO}\nds_read_b128 {vr(vFl,4)}, v{aFL}\ns_waitcnt lgkmcnt(0)")
A(f"v_cmp_gt_i32 vcc, s{sNeed}, v{vS+2}\ns_cbranch_vccz L_wfirst")
pwtest(8); A("s_cbranch_vccnz L_race")
A("L_ofirst:")
opart(); waitLC(pEND); wpart()
A("s_branch L_accdone\nL_wfirst:")
wpart(); waitPW(8); opart()
if OPT["dry"]: A("s_cbranch_execz L_ofirst")
A("L_accdone:")
stamp("fin")
for ct in range(1, 4):
    for r in range(4): A(f"v_cndmask_b32 v{vAcc+r}, v{vAcc+r}, v{vAcc+4*ct+r}, s[{sMk+2*ct-2}:{sMk+2*ct-1}]")
for r in range(4): A(f"v_bfi_b32 v{vAcc+r}, s{sC63}, v{vS}, v{vAcc+r}")
setexec(0x00ff00ff00ff00ff)
if OPT["dry"]: A("s_cbranch_execz L_areal")
A(f"buffer_store_dwordx4 {vr(vAcc,4)}, v{vP3}, {srd(sWS)}, s{sT} offen sc1")
A("L_ablend:")
if "probe" in OPT:
    stamp("end")
    if STN[0][:2] not in ("l_", "m_"):
        A(f"s_cmp_lg_u32 s{sWave}, {OPT['swave']}\ns_cbranch_scc1 L_end"); probe_pad()
elif DUMP and not OPT.get("mini"):
    stamp("end")
    l3 = ("x", "ln1", "S1", "c_set")
    A(f"s_cmp_lg_u32 s{sWave}, 3\ns_cbranch_scc1 L_d0")
    dump_stamps(lambda n: n in l3, None)
    A(f"s_endpgm\nL_d0:\ns_cmp_lg_u32 s{sWave}, {OPT['swave']}\ns_cbranch_scc1 L_end")
    dump_stamps(lambda n: n not in l3 and n[:2] not in ("l_", "m_"), 8*31)
A("s_endpgm")
A(f"L_bail:\ns_mov_b64 exec, -1\nv_mov_b32 v{vFl}, 0x7fffffff\nds_write_b32 v{aPW}, v{vFl}\ns_waitcnt lgkmcnt(0)\ns_endpgm")
sec("proj")
A("L_proj:")
A(f"ds_write_b128 v{aXW}, {vr(vP,4)}")
for k in range(8): A(f"ds_read2_b64 {vr(vXB+4*k,4)}, v{aXB} offset0:{8*k} offset1:{8*k+4}")
A(f"v_mov_b32 v{vS}, s{sTgV}")
def pj_batch(ks):
    waitLC(4*(ks[-1]+1), sPB)
    for i, k in enumerate(ks):
        for c in range(2):
            f = vF + 8*i + 4*c
            A(f"ds_read_b64_tr_b16 {vr(f,2)}, v{aPj+c} offset:{4096*k}\nds_read_b64_tr_b16 {vr(f+2,2)}, v{aPj+c} offset:{4096*k + 2048}")
    if ks[-1] == 7: A(f"ds_write_b32 v{aPW}, v{vSig}")
    n = 4*len(ks) + (1 if ks[-1] == 7 else 0)
    for i, k in enumerate(ks):
        for c in range(2):
            n -= 2
            cc = "0" if k == 0 else vr(vAcc+4*c, 4)
            A(f"s_waitcnt lgkmcnt({n})\nv_mfma_f32_16x16x32_bf16 {vr(vAcc+4*c,4)}, {vr(vF+8*i+4*c,4)}, {vr(vXB+4*k,4)}, {cc}")
pj_batch([0, 1, 2, 3]); pj_batch([4, 5, 6]); pj_batch([7])
for r in range(4): A(f"v_cndmask_b32 v{vAcc+r}, v{vAcc+r}, v{vAcc+4+r}, s[{sMk}:{sMk+1}]")
for r in range(4): A(f"v_add_u32 v{vAcc+r}, s{sTgR}, v{vAcc+r}")
for r in range(4): A(f"v_bfi_b32 v{vAcc+r}, s{sTgM}, v{vS}, v{vAcc+r}")
setexec(0x000f000f000f000f)
if OPT["loc4"]:
    A(f"s_cbranch_execz L_pjdone\ns_cmp_lt_u32 s{sWave}, 4\ns_cbranch_scc0 L_pjloc")
    A(f"buffer_store_dwordx4 {vr(vAcc,4)}, v{vPub}, {srd(sWS)}, s{sT3} offen sc1\ns_branch L_pjdone")
    A(f"L_pjloc:\nbuffer_store_dwordx4 {vr(vAcc,4)}, v{vPub}, {srd(sWS)}, s{sT3} offen\nL_pjdone:")
else: vm(f"buffer_store_dwordx4 {vr(vAcc,4)}, v{vPub}, {srd(sWS)}, s{sT3} offen sc1")
fullexec()
A(f"s_setpc_b64 s[{sRA}:{sRA+1}]")
sec("ln")
A("L_ln:")
for i in range(16): unpack(vU+2*i, vU+2*i+1, vP+i)
a0, a1, mean = vS, vS+2, vS+6
pk("add", a0, vU, vU+2); pk("add", a1, vU+4, vU+6)
for i in range(4, 16, 2): pk("add", a0, a0, vU+2*i); pk("add", a1, a1, vU+2*i+2)
pk("add", a0, a0, a1); A(f"v_add_f32 v{a0}, v{a0}, v{a0+1}")
allred(a0, "v_add_f32", ["q1", "q2", "hm", "m", "p16"], a1)
A(f"v_mul_f32 v{mean}, 0x3a800000, v{a0}")
for i in range(16):
    acc = a0 if i % 2 == 0 else a1
    dd = vF + 2*(i % 4)
    pk("add", dd, vU+2*i, mean, None, NEG)
    if i < 2: pk("mul", acc, dd, dd)
    else: pk("fma", acc, dd, dd, acc)
pk("add", a0, a0, a1); A(f"v_add_f32 v{a0}, v{a0}, v{a0+1}")
allred(a0, "v_add_f32", ["q1", "q2", "hm", "m", "p16"], a1)
A(f"v_mul_f32 v{a0}, 0x3a800000, v{a0}\nv_cvt_pk_bf16_f32 v{a0}, v{a0}, v{mean}")
A(f"v_and_b32 v{mean}, s{sHI}, v{a0}\nv_lshlrev_b32 v{a0}, 16, v{a0}\nv_add_f32 v{a0}, 0x3727c5ac, v{a0}")
A(f"v_cvt_pk_bf16_f32 v{a0}, v{a0}, v{a0}\nv_lshlrev_b32 v{a0}, 16, v{a0}\nv_sqrt_f32 v{a0}, v{a0}")
A(f"v_cvt_pk_bf16_f32 v{a0}, v{a0}, v{a0}\nv_lshlrev_b32 v{a0}, 16, v{a0}\nv_rcp_f32 v{a0}, v{a0}")
norm(0)
A(f"s_setpc_b64 s[{sRA}:{sRA+1}]")

order = {0: "top common ln proj ld2 attn mlp", 1: "top common ld2 ln proj attn mlp"}[OPT["lay"]].split()
ALL = [x for n in order for x in SEC[n]] + ["L_codeend:"]
body, nadd = hz.pad("\n".join(ALL))
if STN: body += "\n; STAMPS start," + ",".join(STN) + ",end"
hdr = open(os.path.join(os.path.dirname(__file__), "header.txt")).read()
out = f"""{hdr}; @launch grid=(256,1,1) block=(448,1,1) lds={LDS_END}
.amdgcn_target "amdgcn-amd-amdhsa--gfx950"
.text
.globl {NAME}_kernel
.p2align 8
.type {NAME}_kernel,@function
{NAME}_kernel:
{body}
.section .rodata,"a"
.p2align 6
.amdhsa_kernel {NAME}_kernel
  .amdhsa_next_free_vgpr {NV}
  .amdhsa_next_free_sgpr 102
  .amdhsa_accum_offset {NV}
  .amdhsa_group_segment_fixed_size 0
  .amdhsa_kernarg_size 104
  .amdhsa_user_sgpr_count 2
  .amdhsa_user_sgpr_kernarg_segment_ptr 1
  .amdhsa_system_sgpr_workgroup_id_x 1
  .amdhsa_float_denorm_mode_32 3
.end_amdhsa_kernel
"""
open(sys.argv[1], "w").write(out)
print("NV", NV, "LDS", LDS_END, "nops added", nadd, file=sys.stderr)
```

```python
import sys, os
sys.path.insert(0, os.path.dirname(__file__))
import hz
NAME = "parallel_sum__sliding_block_cached__mixer_channel_mlp__decode"
OPT = dict(stamps=0, nt=1, spin=1 << 16, swave=1, Wk=20, Wv=20, Wkb=0, W1=20, Wo=20, W2=20, W2x=40,
           g1=76, g2=148, g2r=160, g4=148, rs2=3, Wvb=0, cpf=1, dry=1, qmap=3, lay=0, loc4=1, pr4=1, rs4=4, pr1=0, pr2=0)
STN = None
for a in sys.argv[2:]:
    k, v = a.split("=")
    if k == "st": STN = v.split(","); OPT["stamps"] = 1
    elif k == "W":
        for kk in ("Wk", "Wv", "W1", "Wo", "W2"): OPT[kk] = int(v)
    else: OPT[k] = int(v)
NT = " nt" if OPT["nt"] else ""
SEC = {}; L = []
def sec(name):
    global L
    L = SEC.setdefault(name, [])
def A(s):
    for x in s.split("\n"): L.append("    " + x.strip() if not x.strip().endswith(":") else x.strip())
class Alloc:
    def __init__(s, start): s.n = start
    def __call__(s, cnt=1, al=1):
        s.n = (s.n + al - 1) // al * al
        r = s.n; s.n += cnt; return r
VA = Alloc(1)
def vr(r, n): return f"v[{r}:{r+n-1}]"
def srd(r): return f"s[{r}:{r+3}]"
sLive = 6
sX, sWQ, sK, sV, sW1, sWO, sW2 = range(8, 36, 4)
sB1, sWS = sWQ, sW1
(sx8, si32, sS, sCG2, sWave, sT, sT2, sT3, sT4, sT5, sT32, sT6, sHI, sSpin, sC63, sRetry, sW8, sGi, sNeed, sPB, sCnt, sM, sG, sR4) = range(36, 60)
sPub = sW8
sRA = 60; sMk = 62; sTgM, sTgR, sTgV, sRes = 32, 33, 34, 35
STB = 68
P1, P4, P5, P2L, P2, P3, WSSZ = 0x10000, 0x40000, 0x60000, 0x80000, 0x100000, 0x200000, 0x400000
S0, S1, S2, S3, M = 0, 32768, 65536, 98304, 131072
XR, PX, XN, YN, QL = M, M + 4096, M + 8192, M + 9216, M + 10240
ML = QL + 2304; OL = ML + 256; HL = OL + 256; FLG = HL + 256
S2C = FLG + 256
LDS_END = S2C + 2048 + 64
assert XR == 0x20000
LCO = 24
pX, pWQ, pK, pV, pW1, pWO, pW2, pEND = 0, 4, 36, 68, 100, 132, 164, 196
if OPT.get("bal"): pEND = 188
vLane, vG4, vN16, vJ, vTmp2, vTmp3 = [VA() for _ in range(6)]
aFL = VA(); aPW = VA()
aW = VA(4); aK = VA(4); aV = VA(2); aQ = VA(); aXB = VA(); aXW = VA(); aPj = VA(2)
vPub = VA(); vG1 = VA(); aQW = VA(); aPXW = VA(); aPXR = VA(); aMLW = VA(); aMLR = VA(); vS2o = VA(); vS2l = VA()
vG2 = VA(); vG2l = VA(); vP3 = VA(); aOLW = VA(); aOLR = VA(); vSig = VA(); vE = VA(4); vE2 = VA(4)
vP = VA(16, 4); vU = VA(32, 4); vS = VA(8, 4); vXB = VA(32, 4); vF = VA(32, 4); vAcc = VA(32, 4)
vQ = VA(16, 4); vG = VA(16, 4); vSm = VA(8, 2); vFl = VA(4, 2)
vKF = vXB
NV = (VA.n + 7) // 8 * 8
assert NV <= 256, NV
t0, t1, t2 = vS, vS+1, vS+2
nst = [0]; slots = {}
def stamp(name):
    if OPT["stamps"] and (name in STN or name in ("start", "end")):
        i = nst[0]; nst[0] += 1
        slots[name] = (i, 0 if name == "start" else (len(STN) + 1 if name == "end" else STN.index(name) + 1))
        assert STB + 2*i + 1 <= 101
        A(f"s_memrealtime s[{STB+2*i}:{STB+2*i+1}]")
lab = [0]
def newlab(p):
    lab[0] += 1; return f"L_{p}{lab[0]}"
DPP = dict(q1="quad_perm:[1,0,3,2]", q2="quad_perm:[2,3,0,1]", hm="row_half_mirror", m="row_mirror",
           r2="row_ror:2", r4="row_ror:4", r8="row_ror:8")
def allred(reg, op, steps, tmp):
    regs_ = reg if isinstance(reg, list) else [reg]
    tmps = tmp if isinstance(tmp, list) else [tmp]
    for st in steps:
        if st in DPP:
            for r in regs_: A(f"{op}_dpp v{r}, v{r}, v{r} {DPP[st]} row_mask:0xf bank_mask:0xf")
        else:
            ins = "v_permlane16_swap_b32" if st == "p16" else "v_permlane32_swap_b32"
            for r, t in zip(regs_, tmps): A(f"v_mov_b32 v{t}, v{r}")
            for r, t in zip(regs_, tmps): A(f"{ins} v{r}, v{t}")
            for r, t in zip(regs_, tmps): A(f"{op} v{r}, v{r}, v{t}")
def unpack(dlo, dhi, src): A(f"v_lshlrev_b32 v{dlo}, 16, v{src}\nv_and_b32 v{dhi}, s{sHI}, v{src}")
def pk(op, d, a, b, c=None, mods=""):
    A(f"v_pk_{op}_f32 {vr(d,2)}, {vr(a,2)}, {vr(b,2)}" + (f", {vr(c,2)}" if c is not None else "") + (" " + mods if mods else ""))
BC = "op_sel_hi:[1,0]"; BC3 = "op_sel_hi:[1,0,1]"; NEG = "op_sel_hi:[1,0] neg_lo:[0,1] neg_hi:[0,1]"
def setexec(m):
    lo, hi = m & 0xffffffff, (m >> 32) & 0xffffffff
    if lo == hi: A(f"s_and_b32 exec_lo, s{sLive}, {lo:#x}\ns_mov_b32 exec_hi, exec_lo")
    else: A(f"s_and_b32 exec_lo, s{sLive}, {lo:#x}\ns_and_b32 exec_hi, s{sLive}, {hi:#x}")
def fullexec(): A(f"s_mov_b64 exec, s[{sLive}:{sLive+1}]")
ABL = OPT.get("abl", 0)
def vm(s_):
    if ABL in (2, 3, 4) and "load" in s_: return
    if ABL == 7 and ("v{}".format(vG2) + "," in s_ or "v{}".format(vS2o) + "," in s_ or "v{}".format(vS2l) + "," in s_): return
    if ABL == 8 and "v{}".format(vG2) + "," in s_: return
    if ABL == 3 and "store" in s_: return
    if ABL == 4: s_ = s_.replace(" sc1", "")
    if ABL == 10 and ("v{}".format(vS2o) + "," in s_ or "v{}".format(vS2l) + "," in s_): s_ = s_.replace(" sc1", "")
    l = newlab("vm"); A(f"s_cbranch_execz {l}"); A(s_); A(f"{l}:")
def dry_on(): A(f"s_mov_b64 s[{sLive}:{sLive+1}], 0\ns_mov_b64 exec, 0")
def dry_off(): A(f"s_mov_b64 s[{sLive}:{sLive+1}], -1\ns_mov_b64 exec, -1")
def waitLC(base, sreg=None):
    l = newlab("lc")
    if sreg is None: A(f"s_movk_i32 s{sNeed}, {base}")
    else: A(f"s_add_u32 s{sNeed}, s{sreg}, {base}")
    A(f"{l}:\nds_read_b32 v{vFl}, v{aFL} offset:{LCO}\ns_waitcnt lgkmcnt(0)\nv_cmp_gt_i32 vcc, s{sNeed}, v{vFl}\ns_cbranch_vccnz {l}")
def signal(stage): A(f"v_mov_b32 v{vFl}, {stage}\nds_write_b32 v{aPW}, v{vFl}")
def pwtest(stage): A(f"v_min3_i32 v{vFl}, v{vFl}, v{vFl+1}, v{vFl+2}\nv_min_i32 v{vFl}, v{vFl}, v{vFl+3}\nv_cmp_gt_i32 vcc, {stage}, v{vFl}")
def waitPW(stage):
    l = newlab("pw")
    A(f"{l}:\nds_read_b128 {vr(vFl,4)}, v{aFL}\ns_waitcnt lgkmcnt(0)"); pwtest(stage); A(f"s_cbranch_vccnz {l}")
def waitMW(stage):
    l = newlab("mw")
    A(f"{l}:\nds_read_b64 {vr(vFl,2)}, v{aFL} offset:16\ns_waitcnt lgkmcnt(0)\nv_min_i32 v{vFl}, v{vFl}, v{vFl+1}\nv_cmp_gt_i32 vcc, {stage}, v{vFl}\ns_cbranch_vccnz {l}")
def LB(stage): signal(stage); waitPW(stage)
def orred(dst, regs_):
    regs_ = list(regs_)
    A(f"v_or3_b32 v{dst}, v{regs_[0]}, v{regs_[1]}, v{regs_[2]}"); r = 3
    while r + 1 < len(regs_):
        A(f"v_or3_b32 v{dst}, v{dst}, v{regs_[r]}, v{regs_[r+1]}"); r += 2
    if r < len(regs_): A(f"v_or_b32 v{dst}, v{dst}, v{regs_[r]}")
def retry_tail(name, reissue, inc, masked):
    A(f"v_cmp_ne_u32 vcc, 0, v{vS}\n" + ("s_branch" if ABL else "s_cbranch_vccz") + f" L_{name}ok")
    A(f"s_add_u32 s{sRetry}, s{sRetry}, {inc}\ns_sub_u32 s{sSpin}, s{sSpin}, 1\ns_cbranch_scc1 L_bail")
    if masked: A("s_mov_b64 exec, vcc")
    reissue()
    A(f"s_waitcnt vmcnt(0)\ns_branch L_{name}chk\nL_{name}ok:")
    if masked: fullexec()
def chk6(base, n, name, reissue, inc):
    A(f"L_{name}chk:")
    for r in range(n): A(f"v_xor_b32 v{base+r}, s{sT6}, v{base+r}")
    orred(vS, range(base, base + n))
    A(f"v_and_b32 v{vS}, 63, v{vS}")
    retry_tail(name, reissue, inc, False)
DUMP = OPT["stamps"] and "probe" not in OPT
def dump_stamps(pred, retry_slot):
    A("s_mov_b64 exec, 1\ns_load_dwordx2 s[4:5], s[0:1], 96")
    A(f"s_waitcnt lgkmcnt(0)\ns_lshl_b32 s{sT}, s2, 8\ns_add_u32 s4, s4, s{sT}\ns_addc_u32 s5, s5, 0\ns_add_u32 s4, s4, 0x8000000\ns_addc_u32 s5, s5, 0\nv_mov_b32 v{vS+2}, 0")
    for nm, (i, sl) in slots.items():
        if pred(nm):
            A(f"v_mov_b32 v{vS}, s{STB+2*i}\nv_mov_b32 v{vS+1}, s{STB+2*i+1}\nglobal_store_dwordx2 v{vS+2}, {vr(vS,2)}, s[4:5] offset:{8*sl}\ns_nop 1")
    if retry_slot is not None:
        A(f"v_mov_b32 v{vS}, s{sRetry}\nglobal_store_dword v{vS+2}, v{vS}, s[4:5] offset:{retry_slot}")
def probe_pad():
    k = slots[STN[0]][0]; l = newlab("pad")
    A(f"s_waitcnt lgkmcnt(0)\ns_sub_u32 s{sT}, s{STB+2*k}, s{STB}\ns_lshl_b32 s{sT}, s{sT}, 2\ns_add_u32 s{sT}, s{sT}, 2000")
    A(f"{l}:\ns_memrealtime s[4:5]\ns_waitcnt lgkmcnt(0)\ns_sub_u32 s4, s4, s{STB}\ns_cmp_lt_u32 s4, s{sT}\ns_cbranch_scc1 {l}")
def qidx(cg, ks, tmp):
    A(f"s_lshr_b32 s{cg}, s2, 5\ns_xor_b32 s{cg}, s{cg}, 4\ns_and_b32 s{tmp}, s2, 8\ns_or_b32 s{cg}, s{cg}, s{tmp}\ns_and_b32 s{tmp}, s2, 6\ns_lshl3_add_u32 s{cg}, s{tmp}, s{cg}")
    A(f"s_bfe_u32 s{ks}, s2, 0x10004\ns_and_b32 s{tmp}, s2, 1\ns_lshl1_add_u32 s{ks}, s{tmp}, s{ks}")
def midx(cg, ks, tmp):
    A(f"s_mul_i32 s{cg}, s{sx8}, 7\ns_lshr_b32 s{tmp}, s{si32}, 2\ns_add_u32 s{cg}, s{cg}, s{tmp}\ns_add_u32 s{tmp}, s{sx8}, 56\ns_cmp_lt_u32 s{si32}, 28\ns_cselect_b32 s{cg}, s{cg}, s{tmp}\ns_and_b32 s{ks}, s{si32}, 3")

sec("top")
stamp("start")
A(f"s_load_dwordx2 s[{sX}:{sX+1}], s[0:1], 0\ns_load_dwordx2 s[{sWQ}:{sWQ+1}], s[0:1], 24")
A(f"v_readfirstlane_b32 s{sWave}, v0\ns_lshr_b32 s{si32}, s2, 3\ns_cmp_ge_u32 s{si32}, 32\ns_cbranch_scc1 L_end")
A(f"s_cmp_eq_u32 s{sWave}, 0\ns_cbranch_scc1 L_loader\nv_subrev_u32 v0, 64, v0\ns_cmpk_gt_u32 s{sWave}, 128\ns_cbranch_scc1 L_notloader")
A(f"s_getpc_b64 s[4:5]\nL_pc:\nv_lshlrev_b32 v{vU}, 7, v0\nglobal_load_dword v{vU+1}, v{vU}, s[4:5]\ns_branch L_notloader\nL_loader:")
lX, lT8, lT7, lK, lV, lC = vP, vP+1, vP+2, vP+4, vP+8, vP+10
A(f"s_mov_b32 s{sWQ+3}, 0x20000\ns_lshl_b32 s{sWQ+2}, s{sWQ+3}, 6\ns_mov_b64 s[{sX+2}:{sX+3}], s[{sWQ+2}:{sWQ+3}]\nv_lshlrev_b32 v{lX}, 4, v0\ns_mov_b32 m0, s{sWQ+3}")
A(f"v_lshrrev_b32 v{vTmp2}, 3, v0\nv_and_b32 v{vS}, 6, v{vTmp2}\nv_and_b32 v{vTmp3}, 7, v0\nv_xor_b32 v{vTmp3}, v{vTmp3}, v{vS}\nv_lshlrev_b32 v{vTmp3}, 4, v{vTmp3}")
A(f"v_lshl_add_u32 v{lT8}, v{vTmp2}, 13, v{vTmp3}")
qidx(sG, sT3, sT)
A(f"s_lshl_b32 s{sT}, s{sT3}, 9\ns_add_u32 s{sG}, s{sG}, s{sT}\ns_waitcnt lgkmcnt(0)")
stamp("l_karg")
for q in range(4): A(f"buffer_load_dwordx4 v{lX}, {srd(sX)}, 0 offen offset:{1024*q} lds")
A(f"s_mov_b32 m0, {S0}\ns_lshl_b32 s{sG}, s{sG}, 7")
curW = [36]
sThr = 3
def thr():
    if not OPT.get("thr") or curW[0] < OPT["thrW"]: return
    l = newlab("th")
    A(f"s_cmp_ge_i32 s{sCnt}, s{sThr}\ns_cbranch_scc1 {l}\ns_waitcnt vmcnt({OPT['thrW']-4})\ns_add_u32 s{sNeed}, s{sCnt}, {curW[0] - OPT['thrW'] + 4}\ns_max_i32 s{sPub}, s{sPub}, s{sNeed}\n{l}:")
def pub(): A(f"s_add_u32 s{sCnt}, s{sCnt}, 4\ns_max_i32 s{sPub}, s{sPub}, s{sCnt}\nv_mov_b32 v{lC}, s{sPub}\nds_write_b32 v{aFL}, v{lC} offset:{LCO}")
def trans(Wn):
    Wo = curW[0]; assert Wn % 4 == 0
    if Wn < Wo:
        for k in range(Wo - 4, Wn - 1, -4): A(f"s_waitcnt vmcnt({k})"); pub()
    elif Wn > Wo: A(f"s_sub_u32 s{sCnt}, s{sCnt}, {Wn - Wo}")
    curW[0] = Wn
def loop(n_end, body):
    l = newlab("ld"); A(f"{l}:"); body()
    A(f"s_cmp_lg_u32 s{sCnt}, {(n_end - curW[0]) & 0xffffffff}\ns_cbranch_scc1 {l}")
def aloop(n_end, body, Wb, stage):
    Wa = curW[0]
    if Wb <= Wa: loop(n_end, body); return
    la, ld = newlab("aa"), newlab("ad")
    if stage > 0: A(f"{la}:\nds_read_b128 {vr(vFl,4)}, v{aFL}")
    else: A(f"{la}:\nds_read_b64 {vr(vFl,2)}, v{aFL} offset:16")
    body()
    A(f"s_cmp_eq_u32 s{sCnt}, {(n_end - Wa) & 0xffffffff}\ns_cbranch_scc1 {ld}\ns_waitcnt lgkmcnt(1)")
    if stage > 0: pwtest(stage)
    else: A(f"v_min_i32 v{vFl}, v{vFl}, v{vFl+1}\nv_cmp_gt_i32 vcc, {-stage}, v{vFl}")
    A(f"s_cbranch_vccnz {la}")
    trans(Wb); loop(n_end, body); trans(Wa)
    A(f"{ld}:")
A(f"L_pre:")
for q in range(OPT.get("unr", 4)):
    A(f"buffer_load_dwordx4 v{lT8}, {srd(sWQ)}, s{sG} offen{NT} lds\ns_addk_i32 m0, 0x400\ns_lshl1_add_u32 s{sG}, s{sX+3}, s{sG}")
A(f"s_cmpk_lg_u32 m0, 0x8000\ns_cbranch_scc1 L_pre\nL_preend:")
stamp("l_wq")
A(f"s_mov_b32 s{sCnt}, 0\ns_and_b32 s{sx8}, s2, 7\ns_movk_i32 s{sX+2}, 4096")
for r, off in ((sK, 8), (sV, 16), (sW1, 48), (sWO, 32), (sW2, 64), (sMk, 96)):
    A(f"s_load_dwordx2 s[{r}:{r+1}], s[0:1], {off}")
A(f"s_mov_b32 s{sPub}, 0\ns_mov_b32 s{sRetry}, 0\nv_mov_b32 v{aFL}, {FLG}\ns_setprio 3\ns_barrier")
trans(32)
stamp("l_x")
A("s_branch L_loader2")
sec("ld2")
A("L_loader2:")
A(f"v_mov_b32 v{vLane}, v0")
A(f"v_lshrrev_b32 v{vG4}, 4, v{vLane}\nv_and_b32 v{vN16}, 15, v{vLane}")
A(f"v_mul_u32_u24 v{lT7}, 7168, v{vTmp2}\nv_add_u32 v{lT7}, v{lT7}, v{vTmp3}")
A(f"v_lshlrev_b32 v{vTmp2}, 8, v{vG4}\nv_xor_b32 v{vTmp3}, v{vN16}, v{vG4}\nv_lshl_add_u32 v{lK}, v{vTmp3}, 4, v{vTmp2}")
for q in (1, 2, 3): A(f"v_xor_b32 v{lK+q}, {64*q}, v{lK}")
A(f"v_xor_b32 v{vTmp3}, v{vN16}, v{vS}\nv_lshl_add_u32 v{lV}, v{vTmp3}, 4, v{vTmp2}\nv_xor_b32 v{lV+1}, 128, v{lV}")
A(f"s_mov_b32 s{sK+2}, {1<<25:#x}\ns_mov_b32 s{sV+2}, s{sK+2}\ns_mov_b32 s{sWO+2}, s{sWQ+2}")
for r in (sK, sV, sW1, sWO, sW2): A(f"s_mov_b32 s{r+3}, 0x20000")
A(f"s_cmp_lt_u32 s{si32}, 28\ns_cselect_b32 s{sW1+2}, {1024*7168}, {1024*7168 if OPT.get('bal') else 0}\ns_mov_b32 s{sW2+2}, s{sW1+2}")
sKV = sT4
A(f"s_and_b32 s{sKV}, s{sx8}, 1\ns_lshl_b32 s{sKV}, s{sKV}, 2\ns_lshr_b32 s{sT}, s{sx8}, 1\ns_add_u32 s{sKV}, s{sKV}, s{sT}\ns_lshl_b32 s{sKV}, s{sKV}, 22\ns_add_u32 s{sKV}, s{sKV}, 0x300000")
A(f"s_waitcnt lgkmcnt(0)\ns_load_dword s{sT32}, s[{sMk}:{sMk+1}], 0")
def kv_group(s_, voff, nreg):
    thr()
    A(f"s_and_b32 s{sM}, s{sM}, 0x1ffff\ns_add_u32 s{sG}, s{sT2}, s{sM}\ns_add_u32 s{sM}, s{sM}, {5*4096}\ns_add_u32 s{sT2}, s{sT2}, 131072")
    for q in range(4):
        A(f"s_waitcnt vmcnt({curW[0]-1})\nbuffer_load_dwordx4 v{voff + q % nreg}, {srd(s_)}, s{sG} offen offset:{1024*q}{NT} lds")
    A(f"s_add_u32 m0, m0, 4096")
    pub()
def w1_group():
    thr()
    for q in range(4):
        A(f"s_waitcnt vmcnt({curW[0]-1})\nbuffer_load_dwordx4 v{lT7}, {srd(sW1)}, s{sG} offen{NT} lds\ns_add_u32 m0, m0, 1024\ns_add_u32 s{sG}, s{sG}, {32*7168}")
    pub()
if OPT.get("thr") == 256: A(f"s_cmp_lt_u32 s{si32}, 28\ns_cselect_b32 s{sThr}, {OPT['thrN']}, -16")
stamp("l_set")
trans(OPT["Wk"])
stamp("l_tk")
A(f"s_mov_b32 s{sT2}, s{sKV}\ns_lshl_b32 s{sM}, s{si32}, 12")
loop(pV, lambda: kv_group(sK, lK, 4))
stamp("l_K")
A("s_waitcnt lgkmcnt(0)")
trans(OPT["Wv"])
A(f"s_mov_b32 s{sT2}, s{sKV}\ns_lshl_b32 s{sM}, s{si32}, 12")
aloop(pW1, lambda: kv_group(sV, lV, 2), OPT["Wvb"], 3)
stamp("l_V")
midx(sCG2, sT3, sT)
A(f"s_lshl_b32 s{sG}, s{sCG2}, 7\ns_mul_i32 s{sT}, s{sT3}, {8*7168}\ns_add_u32 s{sG}, s{sG}, s{sT}\ns_lshl_b32 s{sT3}, s{sT3}, 9")
trans(OPT["W1"])
loop(pWO, w1_group)
stamp("l_W1")
lF = lK
A(f"v_lshrrev_b32 v{vTmp2}, 5, v{vLane}\nv_and_b32 v{vTmp3}, 31, v{vLane}\nv_lshlrev_b32 v{lF}, 1, v{vTmp2}\nv_xor_b32 v{vTmp3}, v{vTmp3}, v{lF}\nv_lshlrev_b32 v{vTmp3}, 4, v{vTmp3}\nv_lshl_add_u32 v{lF}, v{vTmp2}, 11, v{vTmp3}")
for q in (1, 2, 3): A(f"v_xor_b32 v{lF+q}, {64*q}, v{lF}")
A(f"s_lshl_b32 s{sS}, s{sx8}, 5\ns_add_u32 s{sS}, s{sS}, s{si32}\ns_lshr_b32 s{sR4}, s{si32}, 2")
def fin_group(s_, slot, kshift):
    thr()
    A(f"s_add_u32 s{sM}, s{sGi}, s{sR4}\ns_and_b32 s{sM}, s{sM}, 3\ns_xor_b32 s{sT2}, s{sGi}, s{sR4}\ns_bfe_u32 s{sT2}, s{sT2}, 0x10002")
    A(f"s_lshl_b32 s{sG}, s{sT2}, {kshift}\ns_add_u32 s{sG}, s{sG}, s{sT}\ns_lshl_b32 s{sT5}, s{sM}, 14\ns_add_u32 s{sG}, s{sG}, s{sT5}")
    A(f"s_lshl_b32 s{sT2}, s{sT2}, 2\ns_add_u32 s{sM}, s{sM}, s{sT2}\ns_lshl_b32 s{sM}, s{sM}, 12\ns_add_u32 m0, s{sM}, {slot}\ns_add_u32 s{sGi}, s{sGi}, 1")
    for q in range(4):
        A(f"s_waitcnt vmcnt({curW[0]-1})\nbuffer_load_dwordx4 v{lF+q}, {srd(s_)}, s{sG} offen{NT} lds")
        if q < 3: A(f"s_add_u32 m0, m0, 1024\ns_add_u32 s{sG}, s{sG}, 4096")
    pub()
trans(OPT["Wo"])
waitPW(1)
A(f"s_lshr_b32 s{sT}, s{sS}, 4\ns_lshl_b32 s{sT}, s{sT}, 19\ns_and_b32 s{sT2}, s{sR4}, 3\ns_lshl_b32 s{sT2}, s{sT2}, 16\ns_add_u32 s{sT}, s{sT}, s{sT2}\ns_add_u32 s{sT}, s{sT}, s{sT3}\ns_mov_b32 s{sGi}, 0")
loop(pW2, lambda: fin_group(sWO, S0, 18))
stamp("l_WO")
trans(OPT["W2"])
waitPW(3)
if OPT.get("bal"): A(f"s_min_u32 s{sCG2}, s{sCG2}, 55")
A(f"s_lshl_b32 s{sT}, s{sCG2}, 17\ns_add_u32 s{sT}, s{sT}, s{sT3}\ns_mov_b32 s{sGi}, 0")
aloop(pEND, lambda: fin_group(sW2, S1, 16), OPT["W2x"], 7)
stamp("l_W2")
fWS, fB2, fOUT = sWQ, sK, sV
vOo, vG3 = vP+12, vP+13
A(f"s_load_dwordx2 s[{fB2}:{fB2+1}], s[0:1], 72\ns_load_dwordx2 s[{fOUT}:{fOUT+1}], s[0:1], 80")
A(f"s_mov_b32 s{fWS}, s{sMk}\ns_mov_b32 s{fWS+1}, s{sMk+1}\ns_mov_b32 s{fWS+2}, {WSSZ:#x}\ns_movk_i32 s{fB2+2}, 2048\ns_movk_i32 s{fOUT+2}, 4096")
A(f"v_and_b32 v{vTmp2}, 1, v{vLane}\nv_lshlrev_b32 v{vOo}, 3, v{vTmp2}\nv_lshrrev_b32 v{vTmp3}, 1, v{vLane}\nv_lshlrev_b32 v{vG3}, 4, v{vTmp2}\nv_lshl_add_u32 v{vG3}, v{vTmp3}, 11, v{vG3}")
sOo = sM
A(f"s_lshr_b32 s{sT}, s{sS}, 6\ns_lshl_b32 s{sT3}, s{sT}, 9\ns_and_b32 s{sT2}, s{sS}, 31\ns_lshl_b32 s{sT2}, s{sT2}, 4\ns_add_u32 s{sT3}, s{sT3}, s{sT2}")
A(f"s_bfe_u32 s{sT2}, s{sS}, 0x10005\ns_lshl_b32 s{sT2}, s{sT2}, 11\ns_add_u32 s{sOo}, s{sT3}, s{sT2}")
A(f"s_lshl_b32 s{sT}, s{sT}, 17\ns_and_b32 s{sT2}, s{sS}, 63\ns_lshl_b32 s{sT2}, s{sT2}, 5\ns_add_u32 s{sT}, s{sT}, s{sT2}\ns_add_u32 s{sT}, s{sT}, {P3:#x}\ns_add_u32 s{sT2}, s{sT}, 65536")
A(f"s_add_u32 s{sT32}, s{sT32}, 9\ns_and_b32 s{sT6}, s{sT32}, 0xfff\ns_mov_b32 s{sHI}, 0xffff0000\ns_mov_b32 s{sSpin}, {OPT['spin']}")
trans(0)
stamp("l_end")
if OPT.get("abl") and OPT["abl"] < 10: A("s_branch L_lend")
A("s_waitcnt lgkmcnt(0)")
A(f"buffer_load_dwordx2 {vr(vSm,2)}, v{vOo}, {srd(sX)}, s{sOo} offen\nbuffer_load_dwordx2 {vr(vSm+2,2)}, v{vOo}, {srd(fB2)}, s{sT3} offen")
if OPT.get("g3s"): A(f"s_sleep {OPT['g3s']}")
A("L_g3:")
for k, so in enumerate((sT, sT2)): A(f"buffer_load_dwordx4 {vr(vG+4*k,4)}, v{vG3}, {srd(fWS)}, s{so} offen sc1")
A(f"s_add_u32 s{sRetry}, s{sRetry}, 0x1000000\ns_sub_u32 s{sSpin}, s{sSpin}, 1\ns_cbranch_scc1 L_end\ns_waitcnt vmcnt(0)")
for r in range(8): A(f"v_xor_b32 v{vG+r}, s{sT6}, v{vG+r}")
orred(vS, range(vG, vG+8))
A(f"v_and_b32 v{vS}, 0xfff, v{vS}\nv_cmp_ne_u32 vcc, 0, v{vS}\ns_and_b64 exec, exec, vcc\ns_cbranch_scc1 L_g3\ns_mov_b64 exec, -1")
stamp("l_g3ok")
vH = vQ
pk("add", vG, vG, vG+4); pk("add", vG+2, vG+2, vG+6)
unpack(vH, vH+1, vSm); unpack(vH+2, vH+3, vSm+1)
A(f"v_permlane32_swap_b32 v{vG}, v{vG+2}\nv_permlane32_swap_b32 v{vG+1}, v{vG+3}")
unpack(vH+4, vH+5, vSm+2)
pk("add", vG, vG, vG+2)
unpack(vH+6, vH+7, vSm+3)
A(f"v_permlane16_swap_b32 v{vG}, v{vG+1}")
pk("add", vH, vH, vH+4)
A(f"v_add_f32 v{vG}, v{vG}, v{vG+1}")
pk("add", vH+2, vH+2, vH+6)
A(f"s_mov_b32 vcc_lo, 0xffff0000\ns_mov_b32 vcc_hi, 0xffff0000")
allred(vG, "v_add_f32", ["r2"], None)
A(f"v_cndmask_b32 v{vH}, v{vH}, v{vH+1}, vcc\nv_cndmask_b32 v{vH+2}, v{vH+2}, v{vH+3}, vcc")
allred(vG, "v_add_f32", ["r4"], None)
A(f"s_mov_b32 vcc_lo, 0\ns_mov_b32 vcc_hi, -1\nv_cndmask_b32 v{vH}, v{vH}, v{vH+2}, vcc")
allred(vG, "v_add_f32", ["r8"], None)
A(f"v_lshrrev_b32 v{vTmp2}, 4, v{vLane}\nv_lshl_add_u32 v{vOo}, v{vTmp2}, 1, v{vOo}")
A(f"v_add_f32 v{vH}, v{vH}, v{vG}\nv_cvt_pk_bf16_f32 v{vH}, v{vH}, v{vH}")
A("s_mov_b32 exec_lo, 0x00030003\ns_mov_b32 exec_hi, 0x00030003")
A(f"buffer_store_short v{vH}, v{vOo}, {srd(fOUT)}, s{sOo} offen" + (" sc1" if OPT.get("osc") else ""))
A(f"s_cmp_lg_u32 s2, 0\ns_cbranch_scc1 L_lend")
A(f"v_mov_b32 v{vS}, s{sT32}\nv_mov_b32 v{vS+1}, 0\ns_mov_b64 exec, 1\nbuffer_store_dword v{vS}, v{vS+1}, {srd(fWS)}, 0 offen" + (" sc1" if OPT.get("esc") else ""))
A("L_lend:")
stamp("l_fin")
if DUMP: dump_stamps(lambda n: n.startswith("l_") or (OPT.get("mini") and n == "start"), 8*30)
if "probe" in OPT and STN[0].startswith("l_"): probe_pad()
A("L_end:\ns_endpgm")
nst[0] = 1 if OPT["stamps"] else 0
sec("common")
A("L_notloader:")
dry_off()
A(f"v_and_b32 v{vLane}, 63, v0\ns_load_dwordx2 s[{sMk}:{sMk+1}], s[0:1], 96\ns_and_b32 s{sx8}, s2, 7")
j = vJ
A(f"v_mov_b32 v{aFL}, {FLG}\nv_mov_b32 v{vFl}, 0\nv_lshl_add_u32 v{aPW}, v{vLane}, 2, v{aFL}\nds_write_b32 v{aPW}, v{vFl}")
A(f"s_lshr_b32 s{sWave}, s{sWave}, 6\ns_sub_u32 s{sWave}, s{sWave}, 1\nv_lshrrev_b32 v{vJ}, 6, v0\nv_lshrrev_b32 v{vG4}, 4, v{vLane}")
A(f"s_waitcnt lgkmcnt(0)\ns_load_dword s{sT32}, s[{sMk}:{sMk+1}], 0\ns_mov_b32 s{sWS}, s{sMk}\ns_mov_b32 s{sWS+1}, s{sMk+1}\ns_barrier")
A(f"v_lshl_add_u32 v{aPW}, v{j}, 2, v{aFL}\nv_and_b32 v{vN16}, 15, v{vLane}")
A(f"s_mov_b32 s{sWS+2}, {WSSZ:#x}\ns_mov_b32 s{sWS+3}, 0x20000\ns_mov_b32 s{sHI}, 0xffff0000")
if OPT["dry"]:
    A(f"s_cmp_lt_u32 s{sWave}, 4\ns_cbranch_scc1 L_nodry1")
    dry_on()
    A(f"s_cmp_eq_u32 s{sWave}, 4\ns_cbranch_scc1 L_dry4\ns_call_b64 s[{sRA}:{sRA+1}], L_proj\ns_branch L_dry5\nL_dry4:\ns_call_b64 s[{sRA}:{sRA+1}], L_ln\nL_dry5:")
    dry_off()
    A("L_nodry1:")
if OPT.get("abl") == 1:
    A(f"v_mov_b32 v{vFl}, 100\nds_write_b32 v{aPW}, v{vFl}\ns_cmp_eq_u32 s{sWave}, 0\ns_cbranch_scc1 L_ablend\ns_endpgm")
A(f"s_mov_b32 s{sRetry}, 0\ns_mov_b32 s{sSpin}, {OPT['spin']}")
r_, c4 = vTmp2, vTmp3
A(f"v_lshrrev_b32 v{r_}, 2, v{vN16}\nv_and_b32 v{c4}, 3, v{vN16}\nv_lshlrev_b32 v{c4}, 3, v{c4}\nv_lshl_add_u32 v{r_}, v{vG4}, 2, v{r_}")
A(f"s_cmp_lt_u32 s{sWave}, 2\ns_cbranch_scc1 L_attn")
sCGp, sKSp = sCnt, sG
qidx(sCGp, sKSp, sT)
A(f"s_cmp_lt_u32 s{sWave}, 4\ns_cbranch_scc1 L_isq")
midx(sCGp, sKSp, sT)
A("L_isq:")
A(f"v_lshrrev_b32 v{t1}, 5, v{vLane}\nv_and_b32 v{t2}, 31, v{vLane}\nv_lshlrev_b32 v{t0}, 6, v{t2}\nv_lshl_add_u32 v{t0}, v{t1}, 11, v{t0}\nv_add_u32 v{t0}, {XR}, v{t0}\ns_lshl_b32 s{sT}, s{sKSp}, 4")
for t in range(4):
    A(f"v_add_u32 v{vXB+t}, s{sT}, v{t0}")
    if t < 3: A(f"s_add_u32 s{sT}, s{sT}, 16\ns_and_b32 s{sT}, s{sT}, 63")
A(f"s_cmp_lt_u32 s{sWave}, 4\ns_cselect_b32 s{sT2}, {S0}, {S3}\ns_cselect_b32 s{sPB}, {pWQ}, {pW1}\ns_cselect_b32 s{sT3}, 0, {YN-XN}\ns_cselect_b32 s{sT4}, 1, 0\ns_cselect_b32 s{sT5}, 14, 8\ns_add_u32 s{sT3}, s{sT3}, {XN}")
A(f"v_lshlrev_b32 v{aXW}, 4, v{t2}\nv_lshl_add_u32 v{aXW}, v{t1}, 9, v{aXW}\nv_add_u32 v{aXW}, s{sT3}, v{aXW}")
stamp("c_set")
waitLC(pX + 4)
for t in range(4): A(f"ds_read_b128 {vr(vP+4*t,4)}, v{vXB+t}")
stamp("x")
A(f"s_and_b32 s{sT}, s{sWave}, 1\ns_lshl_b32 s{sT}, s{sT}, 1\nv_bfe_u32 v{t1}, v{r_}, 1, 2\nv_xor_b32 v{t1}, s{sT}, v{t1}\nv_lshl_add_u32 v{aPj}, v{r_}, 7, v{c4}\nv_lshl_add_u32 v{aPj}, v{t1}, 5, v{aPj}")
A(f"v_add_u32 v{aPj}, s{sT2}, v{aPj}\nv_xor_b32 v{aPj+1}, 32, v{aPj}\nv_mov_b32 v{vSig}, s{sT4}")
A(f"v_and_b32 v{t0}, 1, v{vN16}\nv_lshlrev_b32 v{t1}, 3, v{vG4}\nv_lshl_add_u32 v{aXB}, v{t0}, 9, v{t1}\nv_add_u32 v{aXB}, s{sT3}, v{aXB}")
A(f"v_lshlrev_b32 v{vPub}, s{sT5}, v{t0}\nv_lshl_add_u32 v{vPub}, v{t1}, 1, v{vPub}\nv_bfe_u32 v{t0}, v{vN16}, 1, 1\nv_lshl_add_u32 v{vPub}, v{t0}, 6, v{vPub}\ns_lshl_b32 s{sT}, s{sT}, 6\nv_add_u32 v{vPub}, s{sT}, v{vPub}")
A(f"s_mov_b32 s{sMk}, 0x0c0c0c0c\ns_mov_b32 s{sMk+1}, s{sMk}")
A(f"s_waitcnt lgkmcnt(0)\ns_add_u32 s{sT32}, s{sT32}, 9\ns_and_b32 s{sT6}, s{sT32}, 63")
A(f"s_call_b64 s[{sRA}:{sRA+1}], L_ln")
A(f"s_cmp_lt_u32 s{sWave}, 4\ns_cbranch_scc0 L_mlp")
A(f"s_lshr_b32 s{sT3}, s{sCGp}, 4\ns_lshl_b32 s{sT3}, s{sT3}, 15\ns_and_b32 s{sT}, s{sCGp}, 15\ns_lshl_b32 s{sT}, s{sT}, 8\ns_add_u32 s{sT3}, s{sT3}, s{sT}")
A(f"s_lshl_b32 s{sT}, s{sKSp}, 12\ns_add_u32 s{sT3}, s{sT3}, s{sT}\ns_add_u32 s{sT3}, s{sT3}, {P1:#x}")
A(f"s_mov_b32 s{sTgM}, 63\ns_mov_b32 s{sTgR}, 32\ns_mov_b32 s{sTgV}, s{sT6}")
stamp("ln1")
A(f"s_call_b64 s[{sRA}:{sRA+1}], L_proj")
stamp("S1")
A("s_branch L_attn2")
sec("mlp")
A("L_mlp:")
mlp_first = nst[0]
def norm(q):
    a0, mean = vS, vS+6
    for i in range(4*q, 4*q+4): pk("add", vU+2*i, vU+2*i, mean, None, NEG)
    for i in range(4*q, 4*q+4): A(f"v_cvt_pk_bf16_f32 v{vP+i}, v{vU+2*i}, v{vU+2*i+1}")
    for i in range(4*q, 4*q+4): unpack(vU+2*i, vU+2*i+1, vP+i)
    for i in range(4*q, 4*q+4): pk("mul", vU+2*i, vU+2*i, a0, None, BC)
    for i in range(4*q, 4*q+4): A(f"v_cvt_pk_bf16_f32 v{vP+i}, v{vU+2*i}, v{vU+2*i+1}")
A(f"s_load_dwordx2 s[{sB1}:{sB1+1}], s[0:1], 56")
A(f"s_cmp_lt_u32 s{si32}, 28\ns_cselect_b32 s{sB1+2}, 7168, 0\ns_mov_b32 s{sB1+3}, 0x20000")
for q in (1, 2, 3): norm(q)
A(f"s_call_b64 s[{sRA}:{sRA+1}], L_ln")
A(f"s_lshl_b32 s{sM}, s{sCGp}, 11\ns_add_u32 s{sM}, s{sM}, {P4:#x}")
A(f"s_getreg_b32 s{sTgV}, hwreg(HW_REG_XCC_ID, 0, 3)\ns_and_b32 s{sT}, s{sT32}, 0x3f8\ns_or_b32 s{sTgV}, s{sTgV}, s{sT}\ns_movk_i32 s{sTgM}, 1023\ns_movk_i32 s{sTgR}, 512\ns_mov_b32 s{sRes}, 0")
stamp("m_ln2")
vG4o, vB1o, aHW = vG1, aQW, aPXW
sG4 = sPB + 0
A(f"s_and_b32 s{sT}, s{sWave}, 1\ns_lshl_b32 s{sT2}, s{sT}, 8\nv_lshlrev_b32 v{vB1o}, 3, v{vN16}\nv_lshlrev_b32 v{vG4o}, 9, v{vG4}\nv_lshl_add_u32 v{vG4o}, v{vN16}, 4, v{vG4o}\nv_add_u32 v{vG4o}, s{sT2}, v{vG4o}")
A(f"s_lshl_b32 s{sT}, s{sT}, 7\ns_add_u32 s{sT}, s{sT}, {HL}\nv_and_b32 v{t0}, 3, v{vN16}\nv_lshlrev_b32 v{t0}, 4, v{t0}\nv_bfe_u32 v{t1}, v{vN16}, 2, 1\nv_lshl_add_u32 v{t0}, v{t1}, 3, v{t0}\nv_lshrrev_b32 v{t1}, 3, v{vN16}\nv_lshl_add_u32 v{t0}, v{t1}, 6, v{t0}\nv_add_u32 v{aHW}, s{sT}, v{t0}")
A(f"s_lshl_b32 s{sT}, s{sCGp}, 7\ns_waitcnt lgkmcnt(0)\nbuffer_load_dwordx2 {vr(vSm,2)}, v{vB1o}, {srd(sB1)}, s{sT} offen")
if OPT["pr4"]: A(f"buffer_load_dword v{vQ}, v{vG4o}, {srd(sWS)}, s{sM} offen sc1")
A("s_waitcnt vmcnt(0)")
unpack(vSm+4, vSm+5, vSm); unpack(vSm+6, vSm+7, vSm+1)
if OPT["dry"]:
    dry_on(); A("s_branch L_mtail\nL_mreal:"); dry_off()
A(f"s_lshl_b32 s{sT}, s{sKSp}, 9\ns_add_u32 s{sT3}, s{sM}, s{sT}\ns_mov_b32 s{sGi}, s{sT3}")
A(f"s_call_b64 s[{sRA}:{sRA+1}], L_proj")
stamp("m_S4")
A("L_mtail:")
waitLC(OPT["g4"])
if OPT.get("ackw"): vm("s_waitcnt vmcnt(0)")

stamp("m_g4i")
def g4(): vm(f"buffer_load_dwordx4 {vr(vQ,4)}, v{vG4o}, {srd(sWS)}, s{sM} offen sc1")
g4()
vm("s_waitcnt vmcnt(0)")
def restore4():
    l = newlab("rs")
    A(f"s_cmp_lg_u32 s{sRes}, 0\ns_cbranch_scc1 {l}\ns_mov_b32 s{sRes}, 1")
    setexec(0x000f000f000f000f)
    vm(f"buffer_store_dwordx4 {vr(vAcc,4)}, v{vPub}, {srd(sWS)}, s{sGi} offen sc1")
    fullexec()
    A(f"{l}:")
def g4retry():
    if OPT["loc4"]:
        l = newlab("nr")
        A(f"s_bfe_u32 s{sNeed}, s{sRetry}, 0x80010\ns_cmp_lt_u32 s{sNeed}, {OPT['rs4']}\ns_cbranch_scc1 {l}")
        restore4(); A(f"{l}:")
    g4()
A("L_g4chk:")
for r in range(4): A(f"v_xor_b32 v{vQ+r}, s{sTgV}, v{vQ+r}")
orred(vS+1, range(vQ, vQ+4))
A(f"v_and_b32 v{vS}, 0x3f8, v{vS+1}")
retry_tail("g4", g4retry, 0x10000, False)
if OPT["loc4"]:
    A(f"v_and_b32 v{vS}, 7, v{vS+1}\nv_cmp_ne_u32 vcc, 0, v{vS}\ns_cbranch_vccz L_alllocal")
    restore4()
    for r in range(4): A(f"v_and_b32 v{vQ+r}, -8, v{vQ+r}")
    A("L_alllocal:")
stamp("m_g4ok")
vH = vQ
allred([vH, vH+1, vH+2, vH+3], "v_add_f32", ["p16", "p32"], [vH+4, vH+5, vH+6, vH+7])
A(f"v_cvt_pk_bf16_f32 v{vH+4}, v{vH}, v{vH+1}\nv_cvt_pk_bf16_f32 v{vH+5}, v{vH+2}, v{vH+3}")
unpack(vH, vH+1, vH+4); unpack(vH+2, vH+3, vH+5)
pk("add", vH, vH, vSm+4); pk("add", vH+2, vH+2, vSm+6)
A(f"v_cvt_pk_bf16_f32 v{vH+4}, v{vH}, v{vH+1}\nv_cvt_pk_bf16_f32 v{vH+5}, v{vH+2}, v{vH+3}")
unpack(vH, vH+1, vH+4); unpack(vH+2, vH+3, vH+5)
pk("mul", vH+4, vH, vH); pk("mul", vH+6, vH+2, vH+2)
for r in range(4): A(f"v_mul_f32 v{vH+4+r}, 0xbdd2d3e8, v{vH+4+r}")
for r in range(4): A(f"v_add_f32 v{vH+4+r}, 0xc0135761, v{vH+4+r}")
pk("mul", vH+4, vH+4, vH); pk("mul", vH+6, vH+6, vH+2)
for r in range(4): A(f"v_exp_f32 v{vH+4+r}, v{vH+4+r}")
for r in range(4): A(f"v_add_f32 v{vH+4+r}, 1.0, v{vH+4+r}")
for r in range(4): A(f"v_rcp_f32 v{vH+4+r}, v{vH+4+r}")
pk("mul", vH, vH, vH+4); pk("mul", vH+2, vH+2, vH+6)
A(f"v_cvt_pk_bf16_f32 v{vH}, v{vH}, v{vH+1}\nv_cvt_pk_bf16_f32 v{vH+1}, v{vH+2}, v{vH+3}")
A(f"ds_write_b64 v{aHW}, {vr(vH,2)}")
signal(1)
if OPT["dry"]: A("s_cbranch_execz L_mreal")
stamp("m_h")
if DUMP and not OPT.get("mini"):
    A(f"s_cmp_lg_u32 s{sWave}, 5\ns_cbranch_scc1 L_end"); dump_stamps(lambda n: n.startswith("m_"), 8*31+4)
if "probe" in OPT and STN[0].startswith("m_"): probe_pad()
A("s_endpgm")
nst[0] = mlp_first
sec("attn")
A("L_attn:")
if OPT.get("tlb"):
    A(f"s_cmp_lg_u32 s{sWave}, 1\ns_cbranch_scc1 L_notlb")
    A("s_load_dwordx4 s[8:11], s[0:1], 8\ns_load_dwordx2 s[12:13], s[0:1], 32\ns_load_dwordx2 s[14:15], s[0:1], 48\ns_load_dwordx2 s[16:17], s[0:1], 64")
    A(f"s_and_b32 s{sT}, s{sx8}, 1\ns_lshl_b32 s{sT}, s{sT}, 2\ns_lshr_b32 s{sT2}, s{sx8}, 1\ns_add_u32 s{sT}, s{sT}, s{sT2}\ns_lshl_b32 s{sT}, s{sT}, 22\ns_add_u32 s{sT}, s{sT}, 0x300000\ns_lshl_b32 s{sT2}, s{si32}, 12\ns_add_u32 s{sT}, s{sT}, s{sT2}\nv_mov_b32 v{vU+8}, s{sT}")
    A(f"s_lshl_b32 s{sT}, s{sx8}, 20\ns_lshl_b32 s{sT2}, s{si32}, 15\ns_add_u32 s{sT}, s{sT}, s{sT2}\nv_mov_b32 v{vU+9}, s{sT}")
    A(f"s_mul_i32 s{sT}, s{sx8}, {7*131072}\ns_min_u32 s{sT2}, s{si32}, 27\ns_lshl_b32 s{sT2}, s{sT2}, 15\ns_add_u32 s{sT}, s{sT}, s{sT2}\nv_mov_b32 v{vU+10}, s{sT}")
    A(f"v_lshlrev_b32 v{vU+11}, 21, v{vLane}\ns_lshl_b32 s{sT2}, s2, 8\nv_add_u32 v{vU+11}, s{sT2}, v{vU+11}")
    A(f"s_waitcnt lgkmcnt(0)\ns_mov_b64 exec, 1")
    A(f"global_load_dword v{vU+12}, v{vU+8}, s[8:9]\nglobal_load_dword v{vU+13}, v{vU+8}, s[10:11]\nglobal_load_dword v{vU+14}, v{vU+9}, s[12:13]\nglobal_load_dword v{vU+15}, v{vU+10}, s[16:17]")
    A(f"s_mov_b64 exec, 15\nglobal_load_dword v{vU+16}, v{vU+11}, s[14:15]\ns_mov_b64 exec, -1\nL_notlb:")
signal(1)
A(f"s_waitcnt lgkmcnt(0)\ns_add_u32 s{sT32}, s{sT32}, 9\ns_and_b32 s{sT6}, s{sT32}, 63")
A("L_attn2:")
A(f"s_lshl_b32 s{sS}, s{sx8}, 5\ns_add_u32 s{sS}, s{sS}, s{si32}\ns_lshl_b32 s{sW8}, s{sWave}, 3\ns_add_u32 s{sW8}, s{sW8}, 8")
A(f"s_bfe_u32 s{sR4}, s{si32}, 0x10004\ns_lshl_b32 s{sT}, s{sR4}, 14")
A(f"v_and_b32 v{t0}, 7, v{r_}\nv_lshlrev_b32 v{t2}, 2, v{j}\nv_xor_b32 v{t1}, v{t0}, v{t2}\nv_lshl_add_u32 v{aW}, v{r_}, 9, v{c4}\nv_lshl_add_u32 v{aW}, v{t1}, 5, v{aW}\nv_add_u32 v{aW}, s{sT}, v{aW}")
for ct in (1, 2, 3): A(f"v_xor_b32 v{aW+ct}, {32*ct}, v{aW}")
A(f"v_lshlrev_b32 v{t2}, 1, v{j}\nv_xor_b32 v{t1}, v{t0}, v{t2}\nv_lshl_add_u32 v{aV}, v{r_}, 8, v{c4}\nv_lshl_add_u32 v{aV}, v{t1}, 5, v{aV}\nv_add_u32 v{aV}, {S2}, v{aV}\nv_xor_b32 v{aV+1}, 32, v{aV}")
A(f"v_xor_b32 v{t1}, v{vG4}, v{vN16}\nv_lshlrev_b32 v{t1}, 4, v{t1}\nv_lshl_add_u32 v{t1}, v{vN16}, 8, v{t1}\nv_lshl_add_u32 v{t1}, v{j}, 13, v{t1}\nv_add_u32 v{aK}, {S1}, v{t1}")
for s_ in (1, 2, 3): A(f"v_xor_b32 v{aK+s_}, {64*s_}, v{aK}")
A(f"v_and_b32 v{t1}, 7, v{vN16}\nv_mul_u32_u24 v{aQ}, 272, v{t1}\nv_lshl_add_u32 v{aQ}, v{vG4}, 4, v{aQ}\nv_add_u32 v{aQ}, {QL}, v{aQ}")
A(f"v_lshlrev_b32 v{vS2l}, 3, v{t1}\nv_add_u32 v{aMLR}, {ML}, v{vS2l}\nv_lshl_add_u32 v{aMLW}, v{j}, 6, v{aMLR}")
A(f"v_lshlrev_b32 v{vS2o}, 6, v{t1}\nv_lshl_add_u32 v{vS2o}, v{j}, 9, v{vS2o}\nv_lshl_add_u32 v{vS2o}, v{vG4}, 4, v{vS2o}")
A(f"v_lshlrev_b32 v{vG1}, 4, v0\nv_add_u32 v{aPXW}, {PX}, v{vG1}\nv_lshlrev_b32 v{aPXR}, 4, v{vLane}\nv_add_u32 v{aPXR}, {PX}, v{aPXR}")
A(f"v_lshrrev_b32 v{t1}, 5, v0\nv_and_b32 v{t2}, 31, v0\nv_mul_u32_u24 v{aQW}, 272, v{t1}\nv_lshl_add_u32 v{aQW}, v{t2}, 3, v{aQW}\nv_add_u32 v{aQW}, {QL}, v{aQW}")
A(f"v_lshrrev_b32 v{t0}, 3, v{vLane}\nv_and_b32 v{t1}, 7, v{vLane}\nv_lshlrev_b32 v{t2}, 4, v{t1}\nv_lshl_add_u32 v{vG2}, v{t0}, 11, v{t2}")
A(f"v_lshrrev_b32 v{t1}, 2, v{t1}\nv_lshlrev_b32 v{t1}, 3, v{t1}\nv_lshl_add_u32 v{vG2l}, v{t0}, 8, v{t1}")
A(f"v_lshl_add_u32 v{aOLW}, v{t0}, 1, v{t2}\ns_xor_b32 s{sT}, s{sWave}, s{sx8}\ns_and_b32 s{sT}, s{sT}, 1\ns_lshl_b32 s{sT}, s{sT}, 7\ns_add_u32 s{sT}, s{sT}, {OL}\nv_add_u32 v{aOLW}, s{sT}, v{aOLW}")
A(f"v_and_b32 v{t0}, 7, v{vLane}\nv_xor_b32 v{t0}, s{sT32}, v{t0}")
for k in range(4): A(f"v_bfe_u32 v{vE2+k}, v{t0}, {k}, 1")
A(f"v_and_b32 v{t1}, 1, v{vLane}\nv_lshlrev_b32 v{aOLR}, 4, v{vG4}\nv_lshl_add_u32 v{aOLR}, v{t1}, 7, v{aOLR}\ns_lshl_b32 s{sT}, s{sR4}, 6\ns_add_u32 s{sT}, s{sT}, {OL}\nv_add_u32 v{aOLR}, s{sT}, v{aOLR}")
A(f"v_lshlrev_b32 v{vP3}, 10, v{t1}\nv_lshl_add_u32 v{vP3}, v{j}, 8, v{vP3}\nv_lshl_add_u32 v{vP3}, v{vG4}, 4, v{vP3}\nv_bfe_u32 v{t2}, v{vLane}, 1, 2\nv_lshl_add_u32 v{vP3}, v{t2}, 6, v{vP3}")
for i, mk in enumerate((0x0c0c0c0c, 0x30303030, 0xc0c0c0c0)):
    A(f"s_mov_b32 s{sMk+2*i}, {mk:#x}\ns_mov_b32 s{sMk+2*i+1}, s{sMk+2*i}")
A(f"v_and_b32 v{t0}, 1, v{vLane}\nv_lshl_add_u32 v{t0}, v{t0}, 2, v{vG4}\nv_xor_b32 v{t0}, s{sT32}, v{t0}")
for k in range(4): A(f"v_bfe_u32 v{vE+k}, v{t0}, {k}, 1")
A(f"s_getreg_b32 s{sTgV}, hwreg(HW_REG_XCC_ID, 0, 3)\ns_and_b32 s{sT}, s{sT32}, -8\ns_or_b32 s{sTgV}, s{sTgV}, s{sT}")
if OPT["pr2"]:
    A(f"s_lshl_b32 s{sT}, s{sS}, 11\ns_add_u32 s{sT}, s{sT}, {P2:#x}\ns_lshl_b32 s{sT2}, s{sS}, 7\ns_add_u32 s{sT2}, s{sT2}, {P2L:#x}")
    A(f"s_cmp_lg_u32 s{sWave}, 1\ns_cbranch_scc1 L_nopr2\nv_lshlrev_b32 v{t0}, 6, v{vLane}\ns_mov_b32 exec_hi, 0")
    A(f"buffer_load_dword v{vU+3}, v{t0}, {srd(sWS)}, s{sT} offen sc1\ns_mov_b64 exec, 1\nbuffer_load_dword v{vU+4}, v{t0}, {srd(sWS)}, s{sT2} offen sc1\ns_mov_b64 exec, -1\nL_nopr2:")
if 0:
    A(f"s_cmp_lg_u32 s{sWave}, 1\ns_cbranch_scc1 L_nopr2")
    A(f"s_and_b32 s{sT5}, s{sx8}, 6\ns_lshl_b32 s{sT}, s{sT5}, 16\ns_bfe_u32 s{sT2}, s{sS}, 0x20002\ns_lshl_b32 s{sT2}, s{sT2}, 9\ns_add_u32 s{sT}, s{sT}, s{sT2}\ns_bfe_u32 s{sT2}, s{sS}, 0x20004\ns_lshl_b32 s{sT2}, s{sT2}, 7\ns_add_u32 s{sT}, s{sT}, s{sT2}")
    A(f"s_and_b32 s{sT2}, s{si32}, 3\ns_lshl_b32 s{sT2}, s{sT2}, 15\ns_add_u32 s{sT}, s{sT}, s{sT2}\ns_add_u32 s{sT}, s{sT}, {P2:#x}")
    A(f"s_lshl_b32 s{sT5}, s{sT5}, 12\ns_lshl_b32 s{sT2}, s{si32}, 8\ns_add_u32 s{sT5}, s{sT5}, s{sT2}\ns_add_u32 s{sT5}, s{sT5}, {P2L:#x}")
    A(f"v_lshrrev_b32 v{t0}, 1, v{vLane}\nv_and_b32 v{t1}, 1, v{vLane}\nv_lshlrev_b32 v{t1}, 6, v{t1}\nv_lshl_add_u32 v{t0}, v{t0}, 11, v{t1}\nv_lshlrev_b32 v{t1}, 7, v{vLane}")
    A(f"s_mov_b64 exec, 0xffffffff\nbuffer_load_dword v{vU+3}, v{t0}, {srd(sWS)}, s{sT} offen sc1\ns_mov_b64 exec, 3\nbuffer_load_dword v{vU+4}, v{t1}, {srd(sWS)}, s{sT5} offen sc1\ns_mov_b64 exec, -1\nL_nopr2:")
if OPT["pr1"]:
    A(f"s_cmp_lg_u32 s{sWave}, 0\ns_cbranch_scc1 L_nopr\ns_lshl_b32 s{sT}, s{sS}, 9\ns_add_u32 s{sT}, s{sT}, {P1:#x}\nv_lshlrev_b32 v{t0}, 6, v{vLane}\ns_mov_b64 exec, 0xff")
    A(f"buffer_load_dword v{vU+3}, v{t0}, {srd(sWS)}, s{sT} offen sc1\ns_mov_b64 exec, -1\nL_nopr:")
if OPT["dry"]:
    A(f"s_cmp_ge_u32 s{sWave}, 2\ns_cbranch_scc1 L_partA")
    dry_on()
    A(f"s_cmp_eq_u32 s{sWave}, 1\ns_cbranch_scc1 L_partB\ns_branch L_partA\nL_areal:")
    dry_off()
A("L_partA:")
A(f"s_lshl_b32 s{sT}, s{sx8}, 14\ns_add_u32 s{sT}, s{sT}, {P1:#x}\ns_add_u32 s{sT2}, s{sT}, 4096\ns_add_u32 s{sT3}, s{sT}, 8192\ns_add_u32 s{sT4}, s{sT}, 12288")
def g1():
  if ABL != 6: vm("\n".join(f"buffer_load_dwordx4 {vr(vG+4*k,4)}, v{vG1}, {srd(sWS)}, s{so} offen sc1" for k, so in enumerate((sT, sT2, sT3, sT4))))
def kfrags():
    waitLC(pK, sW8)
    for T in range(2):
        for s_ in range(4): A(f"ds_read_b128 {vr(vKF+16*T+4*s_,4)}, v{aK+s_} offset:{4096*T}")
if OPT["g1"] >= pV: kfrags()
A(f"s_cmp_lt_u32 s{si32}, 28\ns_cselect_b32 s{sM}, 0, {OPT.get('g1x', 0)}")
waitLC(OPT["g1"], sM)
stamp("g1i")
g1()
if OPT["g1"] < pV: kfrags()
signal(3)
A(f"v_mov_b32 v{vS+4}, 0x3db504f3\nv_mov_b32 v{vS+6}, 0x3fb8aa3b")
A("s_waitcnt vmcnt(0)")
stamp("g1a")
chk6(vG, 16, "g1", g1, 1)
stamp("g1ok")
pk("add", vG, vG, vG+4); pk("add", vG+8, vG+8, vG+12); pk("add", vG+2, vG+2, vG+6); pk("add", vG+10, vG+10, vG+14)
pk("add", vG, vG, vG+8); pk("add", vG+2, vG+2, vG+10)
A(f"v_cvt_pk_bf16_f32 v{vG}, v{vG}, v{vG+1}\nv_cvt_pk_bf16_f32 v{vG+1}, v{vG+2}, v{vG+3}\nds_write_b64 v{aQW}, {vr(vG,2)}")
LB(4)
stamp("lb3")
for s_ in range(4): A(f"ds_read_b128 {vr(vQ+4*s_,4)}, v{aQ} offset:{64*s_}")
for s_ in range(4):
    A(f"s_waitcnt lgkmcnt({3-s_})")
    for T in range(2):
        c = "0" if s_ == 0 else vr(vU+4*T, 4)
        A(f"v_mfma_f32_16x16x32_bf16 {vr(vU+4*T,4)}, {vr(vKF+16*T+4*s_,4)}, {vr(vQ+4*s_,4)}, {c}")
vM, vL = vS, vS+1
for p in range(4): A(f"v_cvt_pk_bf16_f32 v{vU+8+p}, v{vU+2*p}, v{vU+2*p+1}")
for p in range(4): unpack(vU+2*p, vU+2*p+1, vU+8+p)
for p in range(4): pk("mul", vU+2*p, vU+2*p, vS+4, None, BC)
for p in range(4): A(f"v_cvt_pk_bf16_f32 v{vU+8+p}, v{vU+2*p}, v{vU+2*p+1}")
for p in range(4): unpack(vU+2*p, vU+2*p+1, vU+8+p)
A(f"v_max3_f32 v{vM}, v{vU}, v{vU+1}, v{vU+2}\nv_max3_f32 v{vS+2}, v{vU+3}, v{vU+4}, v{vU+5}\nv_max3_f32 v{vM}, v{vM}, v{vU+6}, v{vU+7}\nv_max_f32 v{vM}, v{vM}, v{vS+2}")
allred(vM, "v_max_f32", ["p16", "p32"], vS+2)
A(f"v_mul_f32 v{vM}, v{vM}, v{vS+6}")
for p in range(4): pk("fma", vU+2*p, vU+2*p, vS+6, vM, "op_sel_hi:[1,0,0] neg_lo:[0,0,1] neg_hi:[0,0,1]")
for r in range(8): A(f"v_exp_f32 v{vU+r}, v{vU+r}")
for p in range(4): A(f"v_cvt_pk_bf16_f32 v{vU+8+p}, v{vU+2*p}, v{vU+2*p+1}")
A(f"ds_write_b128 v{aPXW}, {vr(vU+8,4)}")
pk("add", vU, vU, vU+2); pk("add", vU+4, vU+4, vU+6); pk("add", vU, vU, vU+4)
A(f"v_add_f32 v{vL}, v{vU}, v{vU+1}")
allred(vL, "v_add_f32", ["p16", "p32"], vS+2)
A(f"ds_write_b64 v{aMLW}, {vr(vM,2)}")
signal(5)
stamp("sm")
waitLC(pW1)
for w in range(4):
    for d in range(2):
        f = vF + 8*w + 4*d
        A(f"ds_read_b64_tr_b16 {vr(f,2)}, v{aV+d} offset:{8192*w}\nds_read_b64_tr_b16 {vr(f+2,2)}, v{aV+d} offset:{8192*w + 4096}")
A(f"s_lshl_b32 s{sT}, s{sS}, 11\ns_add_u32 s{sT}, s{sT}, {P2:#x}\ns_lshl_b32 s{sT2}, s{sS}, 8\ns_add_u32 s{sT2}, s{sT2}, {P2L:#x}\ns_mov_b32 s{sT3}, 0xfffe0000\ns_mov_b32 s{sT4}, 0x10000")
A(f"s_bitcmp1_b32 s{sx8}, 0\ns_mov_b32 s{sT5}, 0x00f000f0\ns_cselect_b32 s{sT5}, 0x000f000f, s{sT5}")
waitPW(5)
stamp("lb4")
for w in range(4): A(f"ds_read_b128 {vr(vQ+4*w,4)}, v{aPXR} offset:{1024*w}")
for w in range(4): A(f"ds_read_b64 {vr(vU+16+2*w,2)}, v{aMLR} offset:{64*w}")
for w in range(4):
    A(f"s_waitcnt lgkmcnt({7-w})")
    for d in range(2): A(f"v_mfma_f32_16x16x32_bf16 {vr(vAcc+8*w+4*d,4)}, {vr(vF+8*w+4*d,4)}, {vr(vQ+4*w,4)}, 0")
A("s_waitcnt lgkmcnt(0)")
m = lambda w: vU + 16 + 2*w
A(f"v_max3_f32 v{vM}, v{m(0)}, v{m(1)}, v{m(2)}\nv_max_f32 v{vM}, v{vM}, v{m(3)}")
for w in range(4): A(f"v_sub_f32 v{m(w)}, v{m(w)}, v{vM}")
for w in range(4): A(f"v_exp_f32 v{m(w)}, v{m(w)}")
A(f"v_mul_f32 v{vL}, v{m(0)}, v{m(0)+1}")
for w in range(1, 4): A(f"v_fmac_f32 v{vL}, v{m(w)}, v{m(w)+1}")
A(f"v_rcp_f32 v{vS+2}, v{vL}\nv_log_f32 v{vS+3}, v{vL}")
for w in range(4): A(f"v_mul_f32 v{m(w)}, v{m(w)}, v{vS+2}")
for h in (0, 2, 4, 6): pk("mul", vAcc+h, vAcc+h, m(0), None, BC)
for w in range(1, 4):
    for h in (0, 2, 4, 6): pk("fma", vAcc+h, vAcc+8*w+h, m(w), vAcc+h, BC3)
for k in range(4): A(f"v_add_u32 v{vAcc+2*k}, s{sT4}, v{vAcc+2*k}")
for k in range(4): A(f"v_and_b32 v{vAcc+2*k}, s{sT3}, v{vAcc+2*k}")
for k in range(4): A(f"v_cvt_pk_bf16_f32 v{vU+k}, v{vAcc+2*k}, v{vAcc+2*k+1}")
for k in range(4): A(f"v_or_b32 v{vU+k}, v{vE+k}, v{vU+k}")
A(f"v_add_f32 v{vU+4}, v{vM}, v{vS+3}\nv_mov_b32 v{vU+5}, s{sTgV}")
A(f"s_and_b32 exec_lo, s{sLive}, s{sT5}\ns_mov_b32 exec_hi, exec_lo")
vm(f"buffer_store_dwordx4 {vr(vU,4)}, v{vS2o}, {srd(sWS)}, s{sT} offen sc1")
A(f"s_xor_b32 s{sT5}, s{sT5}, 0x00ff00ff\ns_and_b32 exec_lo, s{sLive}, s{sT5}\ns_mov_b32 exec_hi, exec_lo")
vm(f"buffer_store_dwordx4 {vr(vU,4)}, v{vS2o}, {srd(sWS)}, s{sT} offen")
setexec(0x00ff00ff00ff00ff)
A(f"s_cmp_lg_u32 s{sWave}, 0\ns_cbranch_scc1 L_nolse")
setexec(0xff)
vm(f"buffer_store_dwordx2 {vr(vU+4,2)}, v{vS2l}, {srd(sWS)}, s{sT2} offen offset:128 sc1\nbuffer_store_dwordx2 {vr(vU+4,2)}, v{vS2l}, {srd(sWS)}, s{sT2} offen")
A(f"v_add_u32 v{vS+4}, {S2C + 2048}, v{vS2l}\nds_write_b64 v{vS+4}, {vr(vU+4,2)}")
setexec(0x00ff00ff00ff00ff)
A("L_nolse:")
A(f"v_add_u32 v{vS+4}, {S2C}, v{vS2o}\nds_write_b128 v{vS+4}, {vr(vU,4)}")
fullexec()
signal(6)
if OPT["dry"]: A("s_cbranch_execz L_areal")
stamp("S2")
A("L_partB:")
def frag_reads(fb, base, k):
    for ct in range(4):
        f = fb + 16*k + 4*ct
        A(f"ds_read_b64_tr_b16 {vr(f,2)}, v{aW+ct} offset:{base}\nds_read_b64_tr_b16 {vr(f+2,2)}, v{aW+ct} offset:{base + 8192}")
def flipW():
    for ct in range(4): A(f"v_xor_b32 v{aW+ct}, 0x4000, v{aW+ct}")
def mfmas(fb, xb, first, wait=None, acc=vAcc):
    for ct in range(4):
        if wait is not None: A(f"s_waitcnt lgkmcnt({wait + 6 - 2*ct})")
        c = "0" if first else vr(acc+4*ct, 4)
        A(f"v_mfma_f32_16x16x32_bf16 {vr(acc+4*ct,4)}, {vr(fb+4*ct,4)}, {vr(xb,4)}, {c}")
A(f"s_mov_b32 s{sRes}, 0\ns_cmp_ge_u32 s{sWave}, 2\ns_cbranch_scc1 L_sig7")
vM, vL = vS, vS+1
vZ = vSm
def g2():
    vm("\n".join(f"buffer_load_dwordx4 {vr(vG+4*k,4)}, v{vG2}, {srd(sWS)}, s{so} offen sc1" for k, so in enumerate((sT, sT2, sT3, sT4))) + "\n" +
       "\n".join(f"buffer_load_dwordx2 {vr(vZ+2*k,2)}, v{vG2l}, {srd(sWS)}, s{sT5 if k < 2 else sGi} offen offset:{2048*(k%2)} sc1" for k in range(4)))
A(f"s_xor_b32 s{sT2}, s{sx8}, s{sWave}\ns_lshl_b32 s{sT}, s{sT2}, 16\ns_lshl_b32 s{sT5}, s{sT2}, 13\ns_lshl_b32 s{sT2}, s{sWave}, 7\ns_add_u32 s{sT5}, s{sT5}, s{sT2}")
A(f"s_bfe_u32 s{sT2}, s{sS}, 0x20002\ns_lshl_b32 s{sT2}, s{sT2}, 9\ns_add_u32 s{sT}, s{sT}, s{sT2}\ns_bfe_u32 s{sT2}, s{sS}, 0x20004")
A(f"s_lshl_b32 s{sT3}, s{sT2}, 7\ns_add_u32 s{sT}, s{sT}, s{sT3}\ns_add_u32 s{sT}, s{sT}, {P2:#x}")
A(f"s_lshl_b32 s{sT2}, s{sT2}, 4\ns_add_u32 s{sT5}, s{sT5}, s{sT2}\ns_add_u32 s{sT5}, s{sT5}, {P2L:#x}\ns_add_u32 s{sGi}, s{sT5}, 4096")
A(f"s_add_u32 s{sT2}, s{sT}, 16384\ns_add_u32 s{sT3}, s{sT}, 32768\ns_add_u32 s{sT4}, s{sT}, 49152")
A(f"s_mul_i32 s{sM}, s{sWave}, {OPT['g2r'] - OPT['g2']}")
waitLC(OPT["g2"], sM)
stamp("g2i")
g2()
signal(7)
def wofrags():
    waitLC(pW2)
    frag_reads(vF, S0, 0); flipW(); frag_reads(vF, S0, 1); flipW()
wofrags()
vm("s_waitcnt vmcnt(0)")
stamp("g2a")
A("L_g2chk:")
for t in range(4):
    for k in range(4): A(f"v_xor_b32 v{vG+4*t+k}, v{vE2+k}, v{vG+4*t+k}")
for t in range(4): A(f"v_xor_b32 v{vZ+2*t+1}, s{sTgV}, v{vZ+2*t+1}")
orred(vS, range(vG, vG+16))
A(f"v_or3_b32 v{vS+1}, v{vZ+1}, v{vZ+3}, v{vZ+5}\nv_and_b32 v{vS}, 1, v{vS}\nv_or_b32 v{vS+1}, v{vS+1}, v{vZ+7}\nv_and_or_b32 v{vS}, v{vS+1}, -8, v{vS}")
def restore2():
    l = newlab("rs")
    A(f"s_or_b32 s{sNeed}, s{sRes}, s{sWave}\ns_cbranch_scc1 {l}\ns_mov_b32 s{sRes}, 1")
    waitPW(6)
    A(f"v_lshlrev_b32 v{vP}, 4, v{vLane}\nv_add_u32 v{vP+1}, {S2C}, v{vP}\nv_lshlrev_b32 v{vP+2}, 3, v{vLane}\nv_add_u32 v{vP+3}, {S2C + 2048}, v{vP+2}")
    A(f"ds_read_b128 {vr(vP+4,4)}, v{vP+1}\nds_read_b128 {vr(vP+8,4)}, v{vP+1} offset:1024\nds_read_b64 {vr(vP+12,2)}, v{vP+3}")
    A(f"s_lshl_b32 s{sNeed}, s{sS}, 11\ns_add_u32 s{sNeed}, s{sNeed}, {P2:#x}\ns_waitcnt lgkmcnt(0)\nbuffer_store_dwordx4 {vr(vP+4,4)}, v{vP}, {srd(sWS)}, s{sNeed} offen sc1\nbuffer_store_dwordx4 {vr(vP+8,4)}, v{vP}, {srd(sWS)}, s{sNeed} offen offset:1024 sc1")
    A(f"s_lshl_b32 s{sNeed}, s{sS}, 8\ns_add_u32 s{sNeed}, s{sNeed}, {P2L:#x}\ns_mov_b64 exec, 0xff\nbuffer_store_dwordx2 {vr(vP+12,2)}, v{vP+2}, {srd(sWS)}, s{sNeed} offen sc1\ns_mov_b64 exec, -1\n{l}:")
def g2retry():
    l = newlab("nr")
    A(f"s_bfe_u32 s{sNeed}, s{sRetry}, 0x80008\ns_cmp_lt_u32 s{sNeed}, {OPT['rs2']}\ns_cbranch_scc1 {l}")
    restore2(); A(f"{l}:")
    g2()
retry_tail("g2", g2retry, 0x100, False)
A(f"v_and_b32 v{vS}, 7, v{vS+1}\nv_cmp_ne_u32 vcc, 0, v{vS}\ns_cbranch_vccz L_alllocal2")
restore2()
A("L_alllocal2:")
stamp("g2ok")
ls = lambda t: vZ + 2*t
A(f"v_max3_f32 v{vM}, v{ls(0)}, v{ls(1)}, v{ls(2)}\nv_max_f32 v{vM}, v{vM}, v{ls(3)}")
up = [(vU + 8*t + 2*k, vG + 4*t + k) for t in range(4) for k in range(4)]
def ups(n):
    for _ in range(n):
        d, s_ = up.pop(0); unpack(d, d+1, s_)
ups(1); allred(vM, "v_max_f32", ["r8"], None)
A(f"v_mov_b32 v{vS+2}, v{vM}"); ups(1); A(f"v_permlane16_swap_b32 v{vM}, v{vS+2}\nv_max_f32 v{vM}, v{vM}, v{vS+2}")
A(f"v_mov_b32 v{vS+2}, v{vM}"); ups(1); A(f"v_permlane32_swap_b32 v{vM}, v{vS+2}\nv_max_f32 v{vM}, v{vM}, v{vS+2}")
for t in range(4): A(f"v_sub_f32 v{ls(t)}, v{ls(t)}, v{vM}")
for t in range(4): A(f"v_exp_f32 v{ls(t)}, v{ls(t)}")
ups(13)
A(f"v_add_f32 v{vL}, v{ls(0)}, v{ls(1)}\nv_add_f32 v{vS+2}, v{ls(2)}, v{ls(3)}\nv_add_f32 v{vL}, v{vL}, v{vS+2}")
for h in (0, 2, 4, 6): pk("mul", vU+h, vU+h, ls(0), None, BC)
allred(vL, "v_add_f32", ["r8"], None)
for h in (0, 2, 4, 6): pk("fma", vU+h, vU+8+h, ls(1), vU+h, BC3)
A(f"v_mov_b32 v{vS+2}, v{vL}")
for h in (0, 2, 4, 6): pk("fma", vU+h, vU+16+h, ls(2), vU+h, BC3)
A(f"v_permlane16_swap_b32 v{vL}, v{vS+2}\nv_add_f32 v{vL}, v{vL}, v{vS+2}\nv_mov_b32 v{vS+2}, v{vL}")
for h in (0, 2, 4, 6): pk("fma", vU+h, vU+24+h, ls(3), vU+h, BC3)
A(f"v_permlane32_swap_b32 v{vL}, v{vS+2}\nv_add_f32 v{vL}, v{vL}, v{vS+2}")
for k in range(4): A(f"v_permlane32_swap_b32 v{vU+k}, v{vU+4+k}")
A(f"v_rcp_f32 v{vL}, v{vL}")
pk("add", vU, vU, vU+4); pk("add", vU+2, vU+2, vU+6)
A(f"s_mov_b32 vcc_lo, 0xff00ff00\ns_mov_b32 vcc_hi, vcc_lo")
A(f"v_permlane16_swap_b32 v{vU}, v{vU+2}\nv_permlane16_swap_b32 v{vU+1}, v{vU+3}")
pk("add", vU, vU, vU+2)
A(f"v_cndmask_b32 v{vU+2}, v{vU}, v{vU+1}, vcc\nv_cndmask_b32 v{vU+3}, v{vU+1}, v{vU}, vcc")
A(f"v_add_f32_dpp v{vU+2}, v{vU+3}, v{vU+2} row_ror:8 row_mask:0xf bank_mask:0xf")
A(f"v_mul_f32 v{vU+2}, v{vU+2}, v{vL}\nv_cvt_pk_bf16_f32 v{vU+2}, v{vU+2}, v{vU+2}")
stamp("oc")
A(f"ds_write_b16 v{aOLW}, v{vU+2}")
signal(8)
A("s_branch L_tail\nL_sig7:")
signal(8)
wofrags()
A("L_tail:")
A(f"s_and_b32 s{sT}, s{sS}, 3\ns_lshl_b32 s{sT}, s{sT}, 17\ns_lshr_b32 s{sT2}, s{sS}, 2\ns_lshl_b32 s{sT2}, s{sT2}, 11\ns_add_u32 s{sT}, s{sT}, s{sT2}\ns_add_u32 s{sT}, s{sT}, {P3:#x}")
A(f"s_movk_i32 s{sC63}, 0xfff\ns_and_b32 s{sT2}, s{sT32}, s{sC63}\nv_mov_b32 v{vS}, s{sT2}\nv_xor_b32 v{vS+1}, 64, v{aOLR}")
A(f"s_movk_i32 s{sNeed}, {pW2 + 16}\nL_hw:\nds_read_b128 {vr(vFl,4)}, v{aFL} offset:16\ns_waitcnt lgkmcnt(0)")
A(f"v_min_i32 v{vFl}, v{vFl}, v{vFl+1}\nv_cmp_gt_i32 vcc, s{sNeed}, v{vFl+2}\nv_cmp_gt_i32 s[{sRA}:{sRA+1}], 1, v{vFl}\ns_or_b64 vcc, vcc, s[{sRA}:{sRA+1}]\ns_cbranch_vccnz L_hw")
A(f"ds_read_b128 {vr(vQ+8,4)}, v{aOLR} offset:256\nds_read_b128 {vr(vQ+12,4)}, v{vS+1} offset:256")
frag_reads(vXB, S1, 0); flipW()
stamp("h")
mfmas(vXB, vQ+8, True, 0)
def opart():
    A(f"ds_read_b128 {vr(vQ,4)}, v{aOLR}\nds_read_b128 {vr(vQ+4,4)}, v{vS+1}")
    A("s_waitcnt lgkmcnt(1)"); mfmas(vF, vQ, True, None, vAcc+16)
    A("s_waitcnt lgkmcnt(0)"); mfmas(vF+16, vQ+4, False, None, vAcc+16)
def wpart():
    frag_reads(vXB, S1, 1)
    mfmas(vXB+16, vQ+12, False, 0)
A(f"s_movk_i32 s{sNeed}, {pEND}\nL_race:\nds_read_b32 v{vS+2}, v{aFL} offset:{LCO}\nds_read_b128 {vr(vFl,4)}, v{aFL}\ns_waitcnt lgkmcnt(0)")
A(f"v_cmp_gt_i32 vcc, s{sNeed}, v{vS+2}\ns_cbranch_vccz L_wfirst")
pwtest(8); A("s_cbranch_vccnz L_race")
A("L_ofirst:")
def select(acc):
    for ct in range(1, 4):
        for r in range(4): A(f"v_cndmask_b32 v{acc+r}, v{acc+r}, v{acc+4*ct+r}, s[{sMk+2*ct-2}:{sMk+2*ct-1}]")
opart()
A(f"ds_read_b32 v{vFl}, v{aFL} offset:{LCO}")
select(vAcc+16)
A(f"s_waitcnt lgkmcnt(0)\nv_cmp_gt_i32 vcc, s{sNeed}, v{vFl}\ns_cbranch_vccz L_wnow")
waitLC(pEND)
A("L_wnow:")
wpart(); select(vAcc)
A("s_branch L_accdone\nL_wfirst:")
wpart()
A(f"ds_read_b128 {vr(vFl,4)}, v{aFL}")
select(vAcc)
A("s_waitcnt lgkmcnt(0)"); pwtest(8); A("s_cbranch_vccz L_onow")
waitPW(8)
A("L_onow:")
opart(); select(vAcc+16)
if OPT["dry"]: A("s_cbranch_execz L_ofirst")
A("L_accdone:")
stamp("fin")
pk("add", vAcc, vAcc, vAcc+16); pk("add", vAcc+2, vAcc+2, vAcc+18)
for r in range(4): A(f"v_bfi_b32 v{vAcc+r}, s{sC63}, v{vS}, v{vAcc+r}")
setexec(0x00ff00ff00ff00ff)
if OPT["dry"]: A("s_cbranch_execz L_areal")
A(f"buffer_store_dwordx4 {vr(vAcc,4)}, v{vP3}, {srd(sWS)}, s{sT} offen sc1")
A("L_ablend:")
if "probe" in OPT:
    stamp("end")
    if STN[0][:2] not in ("l_", "m_"):
        A(f"s_cmp_lg_u32 s{sWave}, {OPT['swave']}\ns_cbranch_scc1 L_end"); probe_pad()
elif DUMP and not OPT.get("mini"):
    stamp("end")
    l3 = ("x", "ln1", "S1", "c_set")
    A(f"s_cmp_lg_u32 s{sWave}, 3\ns_cbranch_scc1 L_d0")
    dump_stamps(lambda n: n in l3, None)
    A(f"s_endpgm\nL_d0:\ns_cmp_lg_u32 s{sWave}, {OPT['swave']}\ns_cbranch_scc1 L_end")
    dump_stamps(lambda n: n not in l3 and n[:2] not in ("l_", "m_"), 8*31)
A("s_endpgm")
A(f"L_bail:\ns_mov_b64 exec, -1\nv_mov_b32 v{vFl}, 0x7fffffff\nds_write_b32 v{aPW}, v{vFl}\ns_waitcnt lgkmcnt(0)\ns_endpgm")
sec("proj")
A("L_proj:")
A(f"ds_write_b128 v{aXW}, {vr(vP,4)}")
for k in range(8): A(f"ds_read2_b64 {vr(vXB+4*k,4)}, v{aXB} offset0:{8*k} offset1:{8*k+4}")
A(f"v_mov_b32 v{vS}, s{sTgV}")
def pj_batch(ks):
    waitLC(4*(ks[-1]+1), sPB)
    for i, k in enumerate(ks):
        for c in range(2):
            f = vF + 8*i + 4*c
            A(f"ds_read_b64_tr_b16 {vr(f,2)}, v{aPj+c} offset:{4096*k}\nds_read_b64_tr_b16 {vr(f+2,2)}, v{aPj+c} offset:{4096*k + 2048}")
    if ks[-1] == 7: A(f"ds_write_b32 v{aPW}, v{vSig}")
    n = 4*len(ks) + (1 if ks[-1] == 7 else 0)
    for i, k in enumerate(ks):
        for c in range(2):
            n -= 2
            cc = "0" if k == 0 else vr(vAcc+4*c, 4)
            A(f"s_waitcnt lgkmcnt({n})\nv_mfma_f32_16x16x32_bf16 {vr(vAcc+4*c,4)}, {vr(vF+8*i+4*c,4)}, {vr(vXB+4*k,4)}, {cc}")
pj_batch([0, 1, 2, 3]); pj_batch([4, 5, 6]); pj_batch([7])
for r in range(4): A(f"v_cndmask_b32 v{vAcc+r}, v{vAcc+r}, v{vAcc+4+r}, s[{sMk}:{sMk+1}]")
for r in range(4): A(f"v_add_u32 v{vAcc+r}, s{sTgR}, v{vAcc+r}")
for r in range(4): A(f"v_bfi_b32 v{vAcc+r}, s{sTgM}, v{vS}, v{vAcc+r}")
setexec(0x000f000f000f000f)
if OPT["loc4"]:
    A(f"s_cbranch_execz L_pjdone\ns_cmp_lt_u32 s{sWave}, 4\ns_cbranch_scc0 L_pjloc")
    A(f"buffer_store_dwordx4 {vr(vAcc,4)}, v{vPub}, {srd(sWS)}, s{sT3} offen sc1\ns_branch L_pjdone")
    A(f"L_pjloc:\nbuffer_store_dwordx4 {vr(vAcc,4)}, v{vPub}, {srd(sWS)}, s{sT3} offen\nL_pjdone:")
else: vm(f"buffer_store_dwordx4 {vr(vAcc,4)}, v{vPub}, {srd(sWS)}, s{sT3} offen sc1")
fullexec()
A(f"s_setpc_b64 s[{sRA}:{sRA+1}]")
sec("ln")
A("L_ln:")
for i in range(16): unpack(vU+2*i, vU+2*i+1, vP+i)
a0, a1, mean = vS, vS+2, vS+6
pk("add", a0, vU, vU+2); pk("add", a1, vU+4, vU+6)
for i in range(4, 16, 2): pk("add", a0, a0, vU+2*i); pk("add", a1, a1, vU+2*i+2)
pk("add", a0, a0, a1); A(f"v_add_f32 v{a0}, v{a0}, v{a0+1}")
allred(a0, "v_add_f32", ["q1", "q2", "hm", "m", "p16"], a1)
A(f"v_mul_f32 v{mean}, 0x3a800000, v{a0}")
for i in range(16):
    acc = a0 if i % 2 == 0 else a1
    dd = vF + 2*(i % 4)
    pk("add", dd, vU+2*i, mean, None, NEG)
    if i < 2: pk("mul", acc, dd, dd)
    else: pk("fma", acc, dd, dd, acc)
pk("add", a0, a0, a1); A(f"v_add_f32 v{a0}, v{a0}, v{a0+1}")
allred(a0, "v_add_f32", ["q1", "q2", "hm", "m", "p16"], a1)
A(f"v_mul_f32 v{a0}, 0x3a800000, v{a0}\nv_cvt_pk_bf16_f32 v{a0}, v{a0}, v{mean}")
A(f"v_and_b32 v{mean}, s{sHI}, v{a0}\nv_lshlrev_b32 v{a0}, 16, v{a0}\nv_add_f32 v{a0}, 0x3727c5ac, v{a0}")
A(f"v_cvt_pk_bf16_f32 v{a0}, v{a0}, v{a0}\nv_lshlrev_b32 v{a0}, 16, v{a0}\nv_sqrt_f32 v{a0}, v{a0}")
A(f"v_cvt_pk_bf16_f32 v{a0}, v{a0}, v{a0}\nv_lshlrev_b32 v{a0}, 16, v{a0}\nv_rcp_f32 v{a0}, v{a0}")
norm(0)
A(f"s_setpc_b64 s[{sRA}:{sRA+1}]")

order = {0: "top common ln proj ld2 attn mlp", 1: "top common ld2 ln proj attn mlp"}[OPT["lay"]].split()
ALL = [x for n in order for x in SEC[n]] + ["L_codeend:", "    .fill (L_pc + 16384 - L_codeend + 3) / 4, 4, 0xbf810000    ; s_endpgm words: the 16 KiB code prefetch stays inside .text"]
body, nadd = hz.pad("\n".join(ALL))
if STN: body += "\n; STAMPS start," + ",".join(STN) + ",end"
hdr = open(os.path.join(os.path.dirname(__file__), "header.txt")).read()
out = f"""{hdr}; @launch grid=(256,1,1) block=(448,1,1) lds={LDS_END}
.amdgcn_target "amdgcn-amd-amdhsa--gfx950"
.text
.globl {NAME}_kernel
.p2align 8
.type {NAME}_kernel,@function
{NAME}_kernel:
{body}
.section .rodata,"a"
.p2align 6
.amdhsa_kernel {NAME}_kernel
  .amdhsa_next_free_vgpr {NV}
  .amdhsa_next_free_sgpr 102
  .amdhsa_accum_offset {NV}
  .amdhsa_group_segment_fixed_size 0
  .amdhsa_kernarg_size 104
  .amdhsa_user_sgpr_count 2
  .amdhsa_user_sgpr_kernarg_segment_ptr 1
  .amdhsa_system_sgpr_workgroup_id_x 1
  .amdhsa_float_denorm_mode_32 3
.end_amdhsa_kernel
"""
open(sys.argv[1], "w").write(out)
print("NV", NV, "LDS", LDS_END, "nops added", nadd, file=sys.stderr)
```
